```python
import torch

def _softmax(x, axis=-1):
    return torch.softmax(x, dim=axis)
def _gelu(x):
    return torch.nn.functional.gelu(x, approximate="tanh")
def _silu(x):
    return torch.nn.functional.silu(x)
def _sigmoid(x):
    return torch.sigmoid(x)
def _layernorm(x, axis=-1, eps=1e-5):
    m = x.mean(dim=axis, keepdim=True)
    v = x.var(dim=axis, keepdim=True, unbiased=False)
    return (x - m) / torch.sqrt(v + eps)
def _scatter_add(tgt, idx, src, axis=0):
    return tgt.clone().index_add_(axis, idx, src)
def _segment_sum(src, seg, n):
    out = torch.zeros((n,) + src.shape[1:], dtype=src.dtype)
    return out.index_add_(0, seg, src)
def _pad(x, pw):
    flat = tuple(v for pair in reversed(pw) for v in pair)
    return torch.nn.functional.pad(x, flat)

kernel_name = 'gated_mix__linear_attn_block__mixer_s_mlp__prompt'

def setup_inputs():

    _w = (lambda a: (lambda t: t.to(torch.bfloat16) if t.is_floating_point() else t)(torch.as_tensor(a)))
    def _A_setup():
        B, S, D = 1, 2048, 512
        return {
            "x": _w((lambda *s: torch.randn(*s, dtype=torch.bfloat16) * 0.05)(B, S, D)),
            "wqkv": _w((lambda *s: torch.randn(*s, dtype=torch.bfloat16) * 3.2)(D, 3 * D)),
            "wo": _w((lambda *s: torch.randn(*s, dtype=torch.bfloat16) * 1.6)(D, D)),
        }
    _A_in = _A_setup()

    def _B_setup():
        B, S, D, F = 1, 2048, 512, 1792
        return {
            "x":  _w((lambda *s: torch.randn(*s, dtype=torch.bfloat16) * 0.05)(B, S, D)),
            "w1": _w((lambda *s: torch.randn(*s, dtype=torch.bfloat16) * 3.2)(D, D) * (D ** -0.5)),
            "w2": _w((lambda *s: torch.randn(*s, dtype=torch.bfloat16) * 3.2)(D, D) * (D ** -0.5)),
            "w3": _w((lambda *s: torch.randn(*s, dtype=torch.bfloat16) * 3.2)(D, F) * (D ** -0.5)),
            "w4": _w((lambda *s: torch.randn(*s, dtype=torch.bfloat16) * 1.6)(F, D) * (F ** -0.5)),
        }
    _B_in = _B_setup()

    return {
        "A_x": _A_in["x"],
        "A_wqkv": _A_in["wqkv"],
        "A_wo": _A_in["wo"],
        "B_x": _B_in["x"],
        "B_w1": _B_in["w1"],
        "B_w2": _B_in["w2"],
        "B_w3": _B_in["w3"],
        "B_w4": _B_in["w4"],
        "gate_w": _w((lambda *s: torch.randn(*s, dtype=torch.bfloat16) * 0.05)(512) * 16.0),
    }

def reference(A_x, A_wqkv, A_wo, B_x, B_w1, B_w2, B_w3, B_w4, gate_w):
    def _A_ref(x, wqkv, wo):
        B, S, D = x.shape
        H = 32; Dh = D // H
        qkv = (lambda x, *d: x.permute(*d))((x @ wqkv).reshape(B, S, 3, H, Dh), 2, 0, 3, 1, 4)
        q, k, v = qkv[0], qkv[1], qkv[2]
        phi = lambda t: torch.where(t > 0, t + 1, torch.exp(t)) + 1e-6
        pq, pk = phi(q), phi(k)
        kv = torch.einsum("bhsd,bhse->bhde", pk, v)
        z = torch.einsum("bhsd->bhd", pk)
        num = torch.einsum("bhqd,bhde->bhqe", pq, kv)
        den = torch.einsum("bhqd,bhd->bhq", pq, z)[..., None] + 1e-6
        o = num / den
        return (lambda x, *d: x.permute(*d))(o, 0, 2, 1, 3).reshape(B, S, D) @ wo

    def _B_ref(x, w1, w2, w3, w4):
        B, S, D = x.shape
        h = _gelu(_layernorm(x, axis=-1) @ w1)
        c = D // 4
        g0 = _pad(h[:, :, 0*c:1*c], ((0, 0), (1, 0), (0, 0)))[:, :S, :]
        g1 = _pad(h[:, :, 1*c:2*c], ((0, 0), (0, 1), (0, 0)))[:, 1:, :]
        g2 = _pad(h[:, :, 2*c:3*c], ((0, 0), (2, 0), (0, 0)))[:, :S, :]
        g3 = _pad(h[:, :, 3*c:   ], ((0, 0), (0, 2), (0, 0)))[:, 2:, :]
        hs = torch.concatenate([g0, g1, g2, g3], axis=-1) @ w2
        x1 = x + hs
        h2 = _gelu(_layernorm(x1, axis=-1) @ w3) @ w4
        return x1 + h2

    x = A_x
    g = _sigmoid((x * gate_w).sum(-1, keepdims=True))
    a = _A_ref(x, A_wqkv, A_wo)
    b = _B_ref(x, B_w1, B_w2, B_w3, B_w4)
    return g * a + (1 - g) * b
```

```python
KN = "gated_mix__linear_attn_block__mixer_s_mlp__prompt_kernel"
class A:
    def __init__(self):
        self.lines = []
        self.nlabel = 0
    def __call__(self, s):
        for l in s.split("\n"):
            l = l.strip()
            if l: self.lines.append("    " + l)
    def label(self, name):
        self.lines.append(name + ":")
    def newlabel(self, p="L"):
        self.nlabel += 1
        return f"{p}_{self.nlabel}"
    def c(self, s):
        self.lines.append("    ; " + s)
    def text(self):
        return "\n".join(self.lines) + "\n"
HEADER = """; Kernarg layout (96 bytes, ptrs only, base s[0:1]):
"""
def kernel_file(kernels):
    s = HEADER
    if len(kernels) == 1 and kernels[0]["name"] == KN and not kernels[0].get("aslist"):
        k = kernels[0]
        s += f"; @launch grid=({k['grid']},1,1) block=({k['block']},1,1) lds={k['lds']}\n"
    else:
        for k in kernels:
            for rep in range(k.get("reps", 1)):
                s += f"; @launch kernel={k['name']} grid=({k['grid']},1,1) block=({k['block']},1,1) lds={k['lds']}\n"
    s += '.amdgcn_target "amdgcn-amd-amdhsa--gfx950"\n.text\n'
    seen = set()
    for k in kernels:
        if k["name"] in seen: continue
        seen.add(k["name"])
        s += f".globl {k['name']}\n.p2align 8\n.type {k['name']},@function\n{k['name']}:\n"
        s += k["body"]
    s += '.section .rodata,"a"\n'
    seen = set()
    for k in kernels:
        if k["name"] in seen: continue
        seen.add(k["name"])
        s += f""".p2align 6
.amdhsa_kernel {k['name']}
  .amdhsa_next_free_vgpr {k['vgpr']}
  .amdhsa_next_free_sgpr {k.get('sgpr',102)}
  .amdhsa_accum_offset {k['accum']}
  .amdhsa_group_segment_fixed_size 0
  .amdhsa_kernarg_size 96
  .amdhsa_user_sgpr_count 2
  .amdhsa_user_sgpr_kernarg_segment_ptr 1
  .amdhsa_system_sgpr_workgroup_id_x 1
  .amdhsa_float_denorm_mode_32 3
  .amdhsa_float_denorm_mode_16_64 3
.end_amdhsa_kernel
"""
    return s
def vr(a, n=1):
    return f"v{a}" if n == 1 else f"v[{a}:{a+n-1}]"
def ar(a, n=1):
    return f"a{a}" if n == 1 else f"a[{a}:{a+n-1}]"
def sr(a, n=1):
    return f"s{a}" if n == 1 else f"s[{a}:{a+n-1}]"
```

```python
import re
TRANS = ("v_exp_f32", "v_rcp_f32", "v_rsq_f32", "v_log_f32", "v_sqrt_f32", "v_sin_f32", "v_cos_f32")
def split_ops(s):
    out, depth, cur = [], 0, ""
    for ch in s:
        if ch == "[": depth += 1
        if ch == "]": depth -= 1
        if ch == "," and depth == 0:
            out.append(cur.strip()); cur = ""
        else: cur += ch
    if cur.strip(): out.append(cur.strip())
    return out
_R = re.compile(r"^(-|\|)?([vas])(\d+)\|?$"); _RR = re.compile(r"^(-)?([vas])\[(\d+):(\d+)\]$")
def regs(tok):
    tok = tok.split()[0] if tok.split() else tok
    m = _R.match(tok)
    if m: return {(m.group(2), int(m.group(3)))}
    m = _RR.match(tok)
    if m: return {(m.group(2), i) for i in range(int(m.group(3)), int(m.group(4)) + 1)}
    if tok in ("vcc", "vcc_lo", "vcc_hi"): return {("x", "vcc")}
    if tok in ("exec", "exec_lo", "exec_hi"): return {("x", "exec")}
    if tok == "m0": return {("x", "m0")}
    return set()
class Ins:
    __slots__ = ("text", "mn", "cls", "vw", "vr", "sw", "sr", "passes", "cset", "abset", "wide_store", "trans", "islabel", "isbranch", "lds_dma", "nstates")
    def __init__(self, text):
        self.text = text
        t = text.split(";")[0].strip()
        self.islabel = t.endswith(":")
        self.vw = set(); self.vr = set(); self.sw = set(); self.sr = set(); self.passes = 0; self.cset = set(); self.abset = set()
        self.wide_store = False; self.trans = False; self.isbranch = False; self.lds_dma = False; self.nstates = 1
        if self.islabel or not t or t.startswith("."):
            self.cls = "none"; self.mn = ""; self.nstates = 0; return
        p = t.split(None, 1); mn = p[0]; self.mn = mn
        ops = split_ops(p[1]) if len(p) > 1 else []
        R = [regs(o) for o in ops]
        def vs(st): return {r for r in st if r[0] in "va"}, {r for r in st if r[0] in "sx"}
        if mn.startswith("v_mfma"):
            self.cls = "mfma"; self.passes = 8 if "32x32x16" in mn else 4
            self.vw = R[0]; self.abset = R[1] | R[2]; self.cset = R[3] if len(R) > 3 else set(); self.vr = self.abset | self.cset
        elif mn.startswith("v_"):
            self.cls = "valu"; self.trans = any(mn.startswith(x) for x in TRANS)
            d = R[0] if R else set()
            srcs = set().union(*R[1:]) if len(R) > 1 else set()
            if mn.startswith("v_permlane32_swap") or mn.startswith("v_permlane16_swap"):
                self.vw = R[0] | R[1]; self.vr = R[0] | R[1]
            else:
                dv, dsx = vs(d); self.vw = dv; self.sw = dsx
                sv, ssx = vs(srcs); self.vr = sv; self.sr = ssx
                if mn.startswith("v_dot"): self.abset = vs(R[1] | R[2])[0]
                if mn.startswith(("v_fmac", "v_dot2c", "v_pk_fmac", "v_writelane")): self.vr |= dv
                if mn.startswith("v_cndmask") and len(ops) == 3: self.sr |= {("x", "vcc")}
                if mn.startswith(("v_add_co", "v_sub_co", "v_addc_co", "v_subb_co")):
                    self.sw |= R[1]; self.sr = set().union(*[vs(r)[1] for r in R[2:]]); self.vr = set().union(*[vs(r)[0] for r in R[2:]])
        elif mn.startswith("ds_"):
            self.cls = "ds"
            if mn.startswith("ds_read") or mn.startswith("ds_bpermute") or mn.startswith("ds_swizzle"):
                self.vw = R[0]; self.vr = set().union(*R[1:]) if len(R) > 1 else set()
            else: self.vr = set().union(*R)
            self.vr = {r for r in self.vr if r[0] in "va"}
        elif mn.startswith(("buffer_", "global_")):
            self.cls = "vmem"
            allr = set().union(*R) if R else set()
            toks = t.split()
            if mn.startswith("buffer_load") and "lds" in toks:
                self.lds_dma = True; self.vr = vs(R[0])[0]; self.sr = set().union(*[vs(r)[1] for r in R[1:]]) | {("x", "m0")}
            elif "load" in mn:
                self.vw = R[0]; rest = set().union(*R[1:]); self.vr, self.sr = vs(rest)
            elif mn in ("buffer_wbl2", "buffer_inv"): pass
            else:
                self.vr, self.sr = vs(allr)
                if "dwordx4" in mn or "dwordx3" in mn: self.wide_store = True; self.cset = R[0] if mn.startswith("buffer") else R[1]
        elif mn.startswith("s_"):
            self.cls = "salu"
            if mn == "s_nop": self.nstates = int(ops[0], 0) + 1
            if mn.startswith(("s_branch", "s_cbranch", "s_setpc", "s_endpgm")): self.isbranch = True
            if mn.startswith(("s_cmp", "s_waitcnt", "s_barrier", "s_nop", "s_sleep", "s_branch", "s_cbranch", "s_setprio", "s_endpgm", "s_bitcmp")):
                self.sr = set().union(*R) if R else set()
            else:
                self.sw = R[0] if R else set(); self.sr = set().union(*R[1:]) if len(R) > 1 else set()
                if "saveexec" in mn: self.sw |= {("x", "exec")}
        else:
            raise ValueError("unknown instr: " + text)
def need(p, c):
    n = 0
    if p.cls == "valu":
        if c.cls == "mfma" and (p.vw & c.vr): n = max(n, 2)
        if p.sw:
            if c.cls == "valu" and (p.sw & c.sr): n = max(n, 4 if c.mn.startswith(("v_readlane", "v_writelane")) else 2)
            if c.cls == "vmem" and (p.sw & c.sr): n = max(n, 5)
            if c.cls == "salu" and (p.sw & c.sr): n = max(n, 2)
            if c.cls == "mfma" and ("x", "exec") in p.sw: n = max(n, 4)
        if c.cls == "valu" and (p.vw & c.vr):
            if c.mn.startswith(("v_readfirstlane", "v_readlane")): n = max(n, 1)
            if c.mn.startswith("v_permlane") or "dpp" in c.text or "row_" in c.text or "quad_perm" in c.text: n = max(n, 2)
        if p.mn.startswith("v_dot") and (p.vw & (c.vr | c.vw)):
            same_acc = c.mn == p.mn and not (p.vw & c.abset)
            if not same_acc: n = max(n, 3)
        if p.trans and (p.vw & c.vr) and not (c.cls == "valu" and c.trans): n = max(n, 1)
    if p.cls == "mfma":
        big = p.passes == 8
        if c.cls == "mfma":
            if p.vw & c.abset: n = max(n, 12 if big else 8)
            if p.vw & c.cset:
                if not (c.cset == p.vw and c.passes == p.passes): n = max(n, 10 if big else 6)
            if (p.vw & c.vw) and not (c.cset == p.vw and c.vw == p.vw): n = max(n, 10 if big else 6)
        elif c.cls in ("valu", "ds", "vmem"):
            if p.vw & (c.vr | c.vw): n = max(n, 12 if big else 8)
            if c.cls == "valu" and (p.cset & c.vw): n = max(n, 7 if big else 3)
    if p.cls == "salu" and ("x", "m0") in p.sw and c.lds_dma: n = max(n, 1)
    if p.cls == "vmem" and p.wide_store:
        if c.cls == "valu" and (p.cset & c.vw): n = max(n, 2)
        elif c.cls in ("ds", "vmem", "mfma") and (p.cset & c.vw): n = max(n, 1)
    return n
def worst(p):
    if p.cls == "mfma": return 12 if p.passes == 8 else 8
    if p.cls == "valu": return 5 if p.sw else (3 if p.mn.startswith("v_dot") else 2)
    if p.cls == "salu" and ("x", "m0") in p.sw: return 1
    if p.cls == "vmem" and p.wide_store: return 2
    return 0
def hazard_pass(lines):
    out = []
    nins = 0
    for text in lines:
        t = text.strip()
        if not t or t.startswith(";"):
            out.append(Ins2(text)); continue
        c = Ins(t)
        req = 0
        dist = 0
        flush = c.islabel or c.isbranch
        if c.cls != "none" or flush:
            for p in reversed(out):
                if p is None or not isinstance(p, Ins): continue
                if p.cls == "none":
                    continue
                r = (worst(p) if flush else need(p, c)) - dist
                if r > req: req = r
                dist += p.nstates
                if dist >= 13: break
        while req > 0:
            k = min(req, 16)
            out.append(Ins(f"s_nop {k-1}")); nins += 1; req -= k
        out.append(c)
    return [(p.text if (isinstance(p, Ins) and p.islabel) or not isinstance(p, Ins) else "    " + p.text) for p in out], nins
class Ins2:
    def __init__(self, text): self.text = text
class E:
    def __init__(self):
        self.L = []; self.nl = 0
        self.vm_n = 0; self.vm_kinds = []; self.vm_done = 0
        self.ld_n = 0; self.ld_done = 0
    def __call__(self, s):
        for l in s.split("\n"):
            l = l.strip()
            if l: self.L.append(l)
    def c(self, s): self.L.append("; " + s)
    def label(self, n): self.L.append(n + ":")
    def newlabel(self, p="L"):
        self.nl += 1; return f"{p}{self.nl}"
    def vm(self, text, kind="load"):
        self(text); self.vm_kinds.append(kind); self.vm_n += 1; return self.vm_n - 1
    def wait_vm(self, tok):
        if isinstance(tok, (list, tuple)): tok = max(tok)
        if tok < self.vm_done: return
        n = sum(1 for k in self.vm_kinds[tok + 1:] if k != "store")
        n = min(n, 63)
        self(f"s_waitcnt vmcnt({n})")
        self.vm_done = max(self.vm_done, tok + 1)
        if n == 0: self.vm_done = self.vm_n
    def wait_vm_all(self):
        self("s_waitcnt vmcnt(0)"); self.vm_done = self.vm_n
    def lds(self, text):
        self(text); self.ld_n += 1; return self.ld_n - 1
    def wait_lds(self, tok):
        if isinstance(tok, (list, tuple)): tok = max(tok)
        if tok < self.ld_done: return
        n = min(self.ld_n - tok - 1, 15)
        self(f"s_waitcnt lgkmcnt({n})")
        self.ld_done = max(self.ld_done, self.ld_n - n)
    def wait_lds_all(self):
        self("s_waitcnt lgkmcnt(0)"); self.ld_done = self.ld_n
    def text(self):
        lines, n = hazard_pass(self.L)
        self.nops_inserted = n
        return "\n".join(lines) + "\n"
```

```python
import sys, os
sys.path.insert(0, os.path.dirname(os.path.abspath(__file__)))
from emit import E
from asmlib import KN, kernel_file

WS_EPOCH = 0x0
WS_PUB, WS_FB1, WS_FB2, WS_FB3 = 0x1000, 0x2000, 0x3000, 0x4000
WS_FA1 = 0x5000
WS_FA2 = 0x6000
WS_TS = 0x10000
WS_HSH = 0x100000
WS_X1 = 0x300000
WS_PQ = 0x500000
WS_ST2 = 0x700000
WS_KVT = 0x780000
WS_KVP = 0x800000
WS_H2 = 0x1000000
WS_SIZE = 0x10000000
PA = 147456
PA_GW = PA
PA_G = PA + 1024
PA_ST = PA + 2048
PA_X = PA + 8192
LDS_BYTES = 163840
S_AX, S_WQKV, S_WO, S_BX, S_W1, S_W2, S_W3, S_W4, S_OUT, S_WS, S_GW = 4, 8, 12, 16, 20, 24, 28, 32, 36, 40, 44
sW, sTB, sFB, sU, sV, sTAG, sPURE, sXCC = 48, 49, 50, 51, 52, 53, 54, 55
sT0, sT1, sT2, sT3, sT4, sT5 = 56, 57, 58, 59, 60, 61
sSAVE = 62
sDSRD = 64
sOFF, sOFF2, sM0 = 68, 69, 70
sC_LOG2E, sC_G1, sC_EPS6 = 72, 74, 76
sONES = 78
sTS = 88
sI, sC = 90, 91
sWB = 92
sSPIN = 93
sDELTA, sHEAD = 94, 95
vTID, vLANE, vT, vHH, vL16 = 0, 1, 2, 3, 4
vJUNK = 5
vAN, vAP = 6, 8
vXR = 10
vWO = 12
vXO = 16
vRES = 20
vG0C = 28
vA = 30
vT0 = 46
PROFILE = True

def srd(n): return f"s[{n}:{n+3}]"
def vr(a, n=1): return f"v{a}" if n == 1 else f"v[{a}:{a+n-1}]"
def ar(a, n=1): return f"a{a}" if n == 1 else f"a[{a}:{a+n-1}]"

def stamp(e, idx):
    if not PROFILE: return
    l = e.newlabel("Lts")
    e(f"s_cmp_lg_u32 s{sW}, 0\ns_cbranch_scc1 {l}")
    e(f"s_memrealtime s[{sT0}:{sT0+1}]\ns_waitcnt lgkmcnt(0)")
    e(f"s_sub_u32 s{sT0}, s{sT0}, s{sTS}\nv_mov_b32 v{vT0}, s{sT0}")
    e(f"s_lshl_b32 s{sT1}, s2, 6\ns_add_u32 s{sT1}, s{sT1}, {WS_TS + idx*4}\nv_mov_b32 v{vT0+1}, s{sT1}")
    e(f"v_cmp_eq_u32 vcc, 0, v{vLANE}\ns_and_saveexec_b64 s[{sSAVE}:{sSAVE+1}], vcc")
    e(f"buffer_store_dword v{vT0}, v{vT0+1}, {srd(S_WS)}, 0 offen")
    e.vm_kinds.append("store"); e.vm_n += 1
    e(f"s_mov_b64 exec, s[{sSAVE}:{sSAVE+1}]")
    e.label(l)

def dma_group(e, voff, srdn, soff, m0, n=4):
    toks = []
    for j in range(n):
        off = f" offset:{1024*j}" if j else ""
        toks.append(e.vm(f"buffer_load_dwordx4 v{voff+j}, {srd(srdn)}, s{soff} offen{off} lds"))
    return toks

def set_voffW(e, ld):
    t = vT0
    e(f"v_lshrrev_b32 v{t}, 3, v{vLANE}\nv_mul_u32_u24 v{t}, {ld}, v{t}")
    e(f"v_lshrrev_b32 v{t+1}, 2, v{vLANE}\nv_lshrrev_b32 v{t+2}, 4, v{vLANE}\nv_xor_b32 v{t+1}, v{t+1}, v{t+2}\nv_and_b32 v{t+1}, 1, v{t+1}")
    e(f"v_lshlrev_b32 v{t+1}, 6, v{t+1}\nv_and_b32 v{t+2}, 3, v{vLANE}\nv_lshlrev_b32 v{t+2}, 4, v{t+2}")
    e(f"v_add3_u32 v{vWO}, v{t}, v{t+1}, v{t+2}")
    for j in range(1, 4):
        e(f"v_add_u32 v{vWO+j}, {j*(8*ld-1024)}, v{vWO}")

def flag_store(e, base_expr_sgpr, sc):
    e(f"v_mov_b32 v{vT0}, s{sTAG}\nv_mov_b32 v{vT0+1}, 0")
    e(f"v_cmp_eq_u32 vcc, 0, v{vLANE}\ns_and_saveexec_b64 s[{sSAVE}:{sSAVE+1}], vcc")
    e.vm(f"buffer_store_dword v{vT0}, v{vT0+1}, {srd(S_WS)}, s{base_expr_sgpr} offen {sc}", "store")
    e(f"s_mov_b64 exec, s[{sSAVE}:{sSAVE+1}]")

def publish(e, off_sgpr_setup, always_slow=False):
    e.wait_vm_all()
    e("s_barrier")
    l = e.newlabel("Lpub")
    e(f"s_cmp_lg_u32 s{sW}, 0\ns_cbranch_scc1 {l}")
    e(off_sgpr_setup)
    if always_slow:
        flag_store(e, sT2, "sc1")
    else:
        l2 = e.newlabel("Lpub"); l3 = e.newlabel("Lpub")
        e(f"s_cmp_eq_u32 s{sPURE}, 0\ns_cbranch_scc1 {l2}")
        flag_store(e, sT2, "")
        e(f"s_branch {l3}")
        e.label(l2)
        e.vm_n -= 1; e.vm_kinds.pop()
        flag_store(e, sT2, "sc1")
        e.label(l3)
    e.label(l)

def poll(e, off_setup, nflags, stride_words=1, mask=None, all_waves=False):
    l = e.newlabel("Lpoll"); lx = e.newlabel("Lpollx"); ls = e.newlabel("Lpolls")
    if not all_waves:
        e(f"s_cmp_lg_u32 s{sW}, 0\ns_cbranch_scc1 {ls}")
    e(off_setup)
    e(f"v_mul_u32_u24 v{vT0+1}, {4*stride_words}, v{vLANE}")
    e(f"v_cmp_gt_u32 vcc, {nflags}, v{vLANE}\ns_and_saveexec_b64 s[{sSAVE}:{sSAVE+1}], vcc")
    e(f"s_mov_b32 s{sSPIN}, 0x40000")
    e.label(l)
    e(f"s_sub_u32 s{sSPIN}, s{sSPIN}, 1\ns_cmp_eq_u32 s{sSPIN}, 0\ns_cbranch_scc1 {lx}")
    e(f"buffer_load_dword v{vT0}, v{vT0+1}, {srd(S_WS)}, s{sT2} offen sc1")
    e("s_waitcnt vmcnt(0)")
    e(f"v_cmp_ne_u32 vcc, s{sTAG}, v{vT0}")
    e(f"s_cbranch_vccnz {l}")
    e.label(lx)
    e(f"s_mov_b64 exec, s[{sSAVE}:{sSAVE+1}]")
    e.label(ls)
    if not all_waves: e("s_barrier")

def stores2(e, fn):
    l2 = e.newlabel("Lst"); l3 = e.newlabel("Lst")
    e(f"s_cmp_eq_u32 s{sPURE}, 0\ns_cbranch_scc1 {l2}")
    n0 = e.vm_n
    fn("")
    n1 = e.vm_n
    e(f"s_branch {l3}")
    e.label(l2)
    del e.vm_kinds[n0:]; e.vm_n = n0
    fn("sc1")
    assert e.vm_n == n1
    e.label(l3)

def tr_frag(e, dst, addr, off, second, acc=False):
    r = ar if acc else vr
    t0 = e.lds(f"ds_read_b64_tr_b16 {r(dst,2)}, v{addr} offset:{off}")
    t1 = e.lds(f"ds_read_b64_tr_b16 {r(dst+2,2)}, v{addr} offset:{off+second}")
    return t1

def mfma(e, d, a, b, c=None, aa=False, ba=False):
    A = ar(a, 4) if aa else vr(a, 4); B = ar(b, 4) if ba else vr(b, 4)
    C = vr(d, 16) if c is None else c
    e(f"v_mfma_f32_32x32x16_bf16 {vr(d,16)}, {A}, {B}, {C}")

def gelu_pairs(e, accs, rstd, tmp, outs):
    n = len(accs)
    P = lambda r: vr(r, 2)
    for k in range(n): e(f"v_pk_mul_f32 {P(accs[k])}, {P(accs[k])}, {P(rstd)} op_sel_hi:[1,0]")
    for k in range(n): e(f"v_pk_mul_f32 {P(tmp[k])}, {P(accs[k])}, {P(accs[k])}")
    for k in range(n): e(f"v_pk_fma_f32 {P(tmp[k])}, {P(tmp[k])}, s[{sC_G1}:{sC_G1+1}], {P(vG0C)}")
    for k in range(n): e(f"v_pk_mul_f32 {P(tmp[k])}, {P(tmp[k])}, {P(accs[k])}")
    for k in range(n): e(f"v_exp_f32 v{tmp[k]}, v{tmp[k]}\nv_exp_f32 v{tmp[k]+1}, v{tmp[k]+1}")
    for k in range(n): e(f"v_pk_add_f32 {P(tmp[k])}, {P(tmp[k])}, 1.0 op_sel_hi:[1,0]")
    for k in range(n): e(f"v_rcp_f32 v{tmp[k]}, v{tmp[k]}\nv_rcp_f32 v{tmp[k]+1}, v{tmp[k]+1}")
    for k in range(n): e(f"v_pk_mul_f32 {P(accs[k])}, {P(accs[k])}, {P(tmp[k])}")
    for k in range(n): e(f"v_cvt_pk_bf16_f32 v{outs[k]}, v{accs[k]}, v{accs[k]+1}")

def halfsum(e, r, t):
    e(f"v_mov_b32 v{t}, v{r}")
    e(f"v_permlane32_swap_b32 v{r}, v{t}")
    e(f"v_add_f32 v{r}, v{r}, v{t}")

def corr_frags(e, cs, negmean, A, B, t):
    if cs is not None:
        e(f"v_cvt_pk_bf16_f32 v{t}, v{cs}, v{cs}\nv_and_b32 v{t}, 0xffff0000, v{t}\nv_sub_f32 v{t}, v{cs}, v{t}")
        e(f"v_cvt_pk_bf16_f32 v{A}, v{cs}, v{t}\nv_mov_b32 v{A+1}, v{A}\nv_mov_b32 v{A+2}, 0\nv_mov_b32 v{A+3}, 0")
    if negmean is not None:
        e(f"v_cvt_pk_bf16_f32 v{B}, v{negmean}, v{negmean}\nv_and_b32 v{t}, 0xffff0000, v{B}\nv_sub_f32 v{t}, v{negmean}, v{t}")
        e(f"v_cvt_pk_bf16_f32 v{B+1}, v{t}, v{t}\nv_mov_b32 v{B+2}, 0\nv_mov_b32 v{B+3}, 0")

def reduce4(e, acc, red_stride, red_base_reg_w, tmp):
    aw = vA + 8
    e(f"s_mul_i32 s{sT0}, s{sW}, {red_stride}\nv_add_u32 v{aw}, s{sT0}, v{vL16}")
    for k in range(1, 4):
        for rg in range(4):
            e.lds(f"ds_write_b128 v{aw}, {vr(acc + 16*k + 4*rg, 4)} offset:{(k-1)*4096 + rg*1024}")
    for k in range(1, 4):
        e(f"s_xor_b32 s{sT0}, s{sW}, {k}\ns_mul_i32 s{sT0}, s{sT0}, {red_stride}\nv_add_u32 v{aw+k}, s{sT0}, v{vL16}")

def reduce4_read(e, acc):
    aw = vA + 8
    toks = []
    for k in range(1, 4):
        for rg in range(4):
            toks.append(e.lds(f"ds_read_b128 {vr(acc + 16*k + 4*rg, 4)}, v{aw+k} offset:{(k-1)*4096 + rg*1024}"))
    for k in range(1, 4):
        e.wait_lds(toks[4*k-1])
        for p in range(8):
            e(f"v_pk_add_f32 {vr(acc+2*p,2)}, {vr(acc+2*p,2)}, {vr(acc+16*k+2*p,2)}")

def prologue(e):
    e(f"s_cmp_ge_u32 s2, 256\ns_cbranch_scc1 L_end")
    e(f"s_getpc_b64 s[{sT0}:{sT0+1}]")
    e.label("L_pc")
    e("s_load_dwordx16 s[64:79], s[0:1], 0\ns_load_dwordx8 s[80:87], s[0:1], 64")
    e(f"v_lshlrev_b32 v30, 7, v0\nv_min_u32 v30, L_codeend-L_pc-4, v30\nv_mov_b32 v31, s{sT1}")
    e(f"v_add_co_u32 v30, vcc, s{sT0}, v30\nv_addc_co_u32 v31, vcc, 0, v31, vcc")
    e.vm(f"global_load_dword v{vJUNK}, v[30:31], off")
    e(f"v_lshlrev_b32 v30, 7, v0\nv_add_u32 v30, 0x8000, v30\nv_min_u32 v30, L_codeend-L_pc-4, v30\nv_mov_b32 v31, s{sT1}")
    e(f"v_add_co_u32 v30, vcc, s{sT0}, v30\nv_addc_co_u32 v31, vcc, 0, v31, vcc")
    e.vm(f"global_load_dword v{vJUNK}, v[30:31], off")
    e(f"v_and_b32 v{vLANE}, 63, v0\nv_lshrrev_b32 v{vT0}, 6, v0\nv_readfirstlane_b32 s{sW}, v{vT0}")
    e(f"v_and_b32 v{vT}, 31, v{vLANE}\nv_lshrrev_b32 v{vHH}, 5, v{vLANE}\nv_lshlrev_b32 v{vL16}, 4, v{vLANE}")
    e(f"s_and_b32 s{sT2}, s2, 7\ns_lshr_b32 s{sT3}, s2, 3")
    e(f"s_lshr_b32 s{sT4}, s{sT3}, 3\ns_lshl_b32 s{sTB}, s{sT2}, 2\ns_add_u32 s{sTB}, s{sTB}, s{sT4}")
    e(f"s_and_b32 s{sFB}, s{sT3}, 7\ns_lshr_b32 s{sU}, s{sTB}, 1\ns_and_b32 s{sV}, s{sT3}, 15")
    e(f"s_lshr_b32 s{sI}, s{sW}, 1\ns_and_b32 s{sC}, s{sW}, 1")
    e(f"s_getreg_b32 s{sXCC}, hwreg(HW_REG_XCC_ID, 0, 4)")
    e("s_waitcnt lgkmcnt(0)")
    for dst, src, size in [(S_AX, 64, 2097152), (S_WQKV, 66, 512*3072), (S_WO, 68, 524288), (S_BX, 64, 2097152), (S_W1, 72, 524288),
                           (S_W2, 74, 524288), (S_W3, 76, 512*3584), (S_W4, 78, 1792*1024), (S_GW, 80, 1024), (S_OUT, 82, 2097152), (S_WS, 86, WS_SIZE)]:
        e(f"s_mov_b32 s{dst}, s{src}\ns_mov_b32 s{dst+1}, s{src+1}\ns_mov_b32 s{dst+2}, {size}\ns_mov_b32 s{dst+3}, 0x20000")
    e(f"s_load_dword s{sTAG}, s[{S_WS}:{S_WS+1}], 0")
    if PROFILE: e(f"s_memrealtime s[{sTS}:{sTS+1}]")

def common_addr(e):
    t = vT0
    e(f"v_and_b32 v{t}, 15, v{vLANE}\nv_lshrrev_b32 v{t}, 2, v{t}")
    e(f"v_and_b32 v{t+1}, 3, v{vLANE}\nv_lshlrev_b32 v{t+1}, 3, v{t+1}")
    e(f"v_lshrrev_b32 v{t+2}, 4, v{vLANE}\nv_and_b32 v{t+2}, 1, v{t+2}\nv_lshlrev_b32 v{t+2}, 5, v{t+2}")
    e(f"v_add_u32 v{t+1}, v{t+1}, v{t+2}")
    e(f"v_lshrrev_b32 v{t+2}, 1, v{t}")
    e(f"v_lshlrev_b32 v{t+3}, 7, v{t}\nv_add_u32 v{t+1}, v{t+1}, v{t+3}")
    for c in range(2):
        e(f"v_xor_b32 v{t+3}, {c}, v{t+2}\nv_lshlrev_b32 v{t+3}, 6, v{t+3}\nv_add_u32 v{t+3}, v{t+3}, v{t+1}")
        e(f"v_lshlrev_b32 v{t+4}, 10, v{vHH}\nv_add_u32 v{vAN+c}, v{t+3}, v{t+4}")
        e(f"v_lshlrev_b32 v{t+4}, 9, v{vHH}\nv_add_u32 v{vAP+c}, v{t+3}, v{t+4}")
    e(f"v_lshrrev_b32 v{t}, 2, v{vT}\nv_and_b32 v{t}, 3, v{t}")
    for sub in range(2):
        e(f"v_add_u32 v{t+1}, {2*sub}, v{vHH}\nv_xor_b32 v{t+1}, v{t+1}, v{t}\nv_lshlrev_b32 v{t+1}, 4, v{t+1}")
        e(f"v_lshlrev_b32 v{t+2}, 6, v{vT}\nv_add_u32 v{vXR+sub}, v{t+1}, v{t+2}")

def set_voffX(e, row0_sgpr, clamp):
    t = vT0
    e(f"v_and_b32 v{t}, 3, v{vLANE}\nv_lshrrev_b32 v{t+1}, 4, v{vLANE}\nv_xor_b32 v{t}, v{t}, v{t+1}\nv_and_b32 v{t}, 3, v{t}\nv_lshlrev_b32 v{t}, 4, v{t}")
    e(f"v_lshrrev_b32 v{t+1}, 2, v{vLANE}\nv_add_u32 v{t+1}, s{row0_sgpr}, v{t+1}")
    for j in range(4):
        e(f"v_add_u32 v{t+2}, {16*j}, v{t+1}")
        if clamp:
            e(f"v_max_i32 v{t+2}, 0, v{t+2}\nv_min_i32 v{t+2}, 2047, v{t+2}")
        e(f"v_lshlrev_b32 v{t+2}, 10, v{t+2}\nv_add_u32 v{t+2}, v{t+2}, v{t}")
        e(f"v_subrev_u32 v{vXO+j}, {1024*j}, v{t+2}" if j else f"v_mov_b32 v{vXO}, v{t+2}")

ACC = 64
def stage_b1_issue(e):
    e(f"s_lshr_b32 s{sT2}, s{sFB}, 1\ns_lshr_b32 s{sT3}, s{sT2}, 1\ns_add_u32 s{sT3}, s{sT3}, 1")
    e(f"s_sub_u32 s{sT4}, 0, s{sT3}\ns_bitcmp1_b32 s{sT2}, 0\ns_cselect_b32 s{sT3}, s{sT4}, s{sT3}")
    e(f"s_lshl_b32 s{sT4}, s{sTB}, 6\ns_sub_u32 s{sT4}, s{sT4}, s{sT3}")
    e(f"s_mov_b32 s{sDELTA}, s{sT3}")
    set_voffX(e, sT4, True)
    set_voffW(e, 1024)
    e(f"s_lshl_b32 s{sWB}, s{sW}, 15")
    e(f"s_lshl_b32 s{sOFF}, s{sW}, 8")
    e(f"s_lshl_b32 s{sOFF2}, s{sW}, 17\ns_lshl_b32 s{sT2}, s{sFB}, 7\ns_add_u32 s{sOFF2}, s{sOFF2}, s{sT2}")
    tx, tw = [], []
    for m in range(4):
        e(f"s_add_u32 m0, s{sWB}, {m*4096}")
        tx.append(dma_group(e, vXO, S_BX, sOFF, None))
        e(f"s_add_u32 m0, s{sWB}, {16384 + m*4096}\ns_add_u32 s{sOFF}, s{sOFF}, 64")
        tw.append(dma_group(e, vWO, S_W1, sOFF2, None))
        e(f"s_add_u32 s{sOFF2}, s{sOFF2}, {32*1024}")
    t = vT0
    e(f"s_lshl_b32 s{sT2}, s{sTB}, 6\ns_lshl_b32 s{sT3}, s{sI}, 5\ns_add_u32 s{sT2}, s{sT2}, s{sT3}")
    e(f"v_add_u32 v{t}, s{sT2}, v{vT}\nv_lshlrev_b32 v{t}, 10, v{t}")
    e(f"s_lshl_b32 s{sT2}, s{sFB}, 7\ns_lshl_b32 s{sT3}, s{sC}, 6\ns_add_u32 s{sT2}, s{sT2}, s{sT3}")
    e(f"v_lshlrev_b32 v{t+1}, 3, v{vHH}\nv_add3_u32 v{t}, v{t}, v{t+1}, s{sT2}")
    tres = []
    for j in range(4):
        tres.append(e.vm(f"buffer_load_dwordx2 {vr(vRES+2*j,2)}, v{t}, {srd(S_BX)}, 0 offen offset:{16*j}"))
    e(f"s_mov_b32 m0, {PA_GW}")
    tg = e.vm(f"buffer_load_dwordx4 v{vL16}, {srd(S_GW)}, 0 offen lds")
    return tx, tw, tres, tg

def stage_b1(e, tx, tw):
    XF, WF = 128, 144
    SUM, SQ, CS = 160, 164, 168
    e(f"s_lshl_b32 s{sT2}, s{sI}, 11\ns_add_u32 s{sT2}, s{sT2}, s{sWB}")
    e(f"s_xor_b32 s{sT3}, s{sI}, 1\ns_lshl_b32 s{sT3}, s{sT3}, 11\ns_add_u32 s{sT3}, s{sT3}, s{sWB}")
    for sub in range(2):
        e(f"v_add_u32 v{vA+2*sub}, s{sT2}, v{vXR+sub}\nv_add_u32 v{vA+2*sub+1}, s{sT3}, v{vXR+sub}")
    e(f"s_cmp_eq_u32 s{sC}, 0\ns_cselect_b64 vcc, -1, 0")
    e(f"v_cndmask_b32 v{vA+4}, v{vAN+1}, v{vAN}, vcc\nv_cndmask_b32 v{vA+5}, v{vAN}, v{vAN+1}, vcc")
    e(f"s_add_u32 s{sT2}, s{sWB}, 16384\nv_add_u32 v{vA+4}, s{sT2}, v{vA+4}\nv_add_u32 v{vA+5}, s{sT2}, v{vA+5}")
    for r in range(SUM, CS + 4): e(f"v_mov_b32 v{r}, 0")
    def reads(s):
        par = s & 1; m = s >> 1; sub = s & 1
        tk = []
        for i in range(2):
            tk.append(e.lds(f"ds_read_b128 {vr(XF + par*8 + i*4, 4)}, v{vA + 2*sub + i} offset:{m*4096}"))
        for c in range(2):
            tk.append(tr_frag(e, WF + par*8 + c*4, vA + 4 + c, s*2048, 512))
        return tk
    e.wait_vm(tw[0]); rd = reads(0)
    for s in range(8):
        par = s & 1
        nxt = None
        if s + 1 < 8:
            if (s + 1) % 2 == 0: e.wait_vm(tw[(s + 1) >> 1])
            nxt = reads(s + 1)
        e.wait_lds(rd)
        for i in range(2):
            for c in range(2):
                mfma(e, ACC + (2*i + c)*16, WF + par*8 + c*4, XF + par*8 + i*4, c=("0" if s == 0 else None))
        for i in range(2):
            for r in range(4):
                x = XF + par*8 + i*4 + r
                e(f"v_dot2c_f32_bf16 v{SUM + 2*i + (r&1)}, s{sONES}, v{x}\nv_dot2c_f32_bf16 v{SQ + 2*i + (r&1)}, v{x}, v{x}")
        for c in range(2):
            for r in range(4):
                e(f"v_dot2c_f32_bf16 v{CS + 2*c + (r&1)}, s{sONES}, v{WF + par*8 + c*4 + r}")
        rd = nxt
    t = vT0
    e(f"v_add_f32 v{t}, v{SUM}, v{SUM+1}\nv_add_f32 v{t+1}, v{SQ}, v{SQ+1}\nv_add_f32 v{t+2}, v{SUM+2}, v{SUM+3}\nv_add_f32 v{t+3}, v{SQ+2}, v{SQ+3}")
    e(f"v_add_f32 v{t+4}, v{CS}, v{CS+1}\nv_add_f32 v{t+5}, v{CS+2}, v{CS+3}")
    e(f"s_mul_i32 s{sT2}, s{sW}, 1536\ns_add_u32 s{sT2}, s{sT2}, {PA_ST}")
    e(f"v_add_u32 v{vA+6}, s{sT2}, v{vL16}\nv_lshrrev_b32 v{vA+7}, 1, v{vL16}\nv_add_u32 v{vA+7}, s{sT2}, v{vA+7}")
    e.lds(f"ds_write_b128 v{vA+6}, {vr(t,4)}")
    e.lds(f"ds_write_b64 v{vA+7}, {vr(t+4,2)} offset:1024")
    reduce4(e, ACC, 32768, None, None)
    e.wait_lds_all()
    e("s_barrier")
    ST = 128
    tk = []
    for k in range(4):
        e(f"s_xor_b32 s{sT2}, s{sW}, {k}\ns_mul_i32 s{sT2}, s{sT2}, 1536\ns_add_u32 s{sT2}, s{sT2}, {PA_ST}")
        e(f"v_add_u32 v{t}, s{sT2}, v{vL16}\nv_lshrrev_b32 v{t+1}, 1, v{vL16}\nv_add_u32 v{t+1}, s{sT2}, v{t+1}")
        tk.append(e.lds(f"ds_read_b64 {vr(ST+2*k,2)}, v{t} offset:{(k>>1)*8}"))
        tk.append(e.lds(f"ds_read_b32 v{ST+8+k}, v{t+1} offset:{1024 + (k&1)*4}"))
    reduce4_read(e, ACC)
    e.wait_lds_all()
    e(f"v_add_f32 v{ST}, v{ST}, v{ST+2}\nv_add_f32 v{ST+4}, v{ST+4}, v{ST+6}\nv_add_f32 v{ST}, v{ST}, v{ST+4}")
    e(f"v_add_f32 v{ST+1}, v{ST+1}, v{ST+3}\nv_add_f32 v{ST+5}, v{ST+5}, v{ST+7}\nv_add_f32 v{ST+1}, v{ST+1}, v{ST+5}")
    e(f"v_add_f32 v{ST+8}, v{ST+8}, v{ST+9}\nv_add_f32 v{ST+10}, v{ST+10}, v{ST+11}\nv_add_f32 v{ST+8}, v{ST+8}, v{ST+10}")
    halfsum(e, ST, t); halfsum(e, ST + 1, t)
    ln_stats(e, ST, ST + 1, ST + 12, ST + 14, t)
    e(f"s_lshl_b32 s{sT2}, s{sTB}, 6\ns_lshl_b32 s{sT3}, s{sI}, 5\ns_add_u32 s{sT2}, s{sT2}, s{sT3}\ns_sub_u32 s{sT2}, s{sT2}, s{sDELTA}")
    e(f"v_add_u32 v{t}, s{sT2}, v{vT}\nv_cmp_gt_u32 vcc, 2048, v{t}\nv_cndmask_b32 v{ST+14}, 0, v{ST+14}, vcc")
    corr_frags(e, ST + 8, ST + 12, ST + 16, ST + 20, t)
    mfma(e, ACC, ST + 16, ST + 20)
    OUT = 152
    gelu_pairs(e, [ACC + 2*k for k in range(8)], ST + 14, [ACC + 16 + 2*k for k in range(8)], [OUT + k for k in range(8)])
    return OUT

def ln_stats(e, S, Q, negmean, rstd, t):
    e(f"v_mul_f32 v{negmean}, 0xbb000000, v{S}")
    e(f"v_mul_f32 v{t}, 0x3b000000, v{Q}")
    e(f"v_fma_f32 v{t}, -v{negmean}, v{negmean}, v{t}")
    e(f"v_max_f32 v{t}, 0, v{t}\nv_add_f32 v{t}, 0x3727c5ac, v{t}")
    e(f"v_rsq_f32 v{rstd}, v{t}")

def purity(e):
    l = e.newlabel("Lpur"); lx = e.newlabel("Lpurx")
    t = vT0
    e(f"s_lshl_b32 s{sT2}, s{sU}, 7\ns_add_u32 s{sT2}, s{sT2}, {WS_PUB}")
    e(f"v_and_b32 v{t+1}, 15, v{vLANE}\nv_lshlrev_b32 v{t+1}, 2, v{t+1}")
    e(f"s_and_b32 s{sT3}, s{sTAG}, 0xfffffff0\ns_mov_b32 s{sSPIN}, 0x40000")
    e.label(l)
    e(f"s_sub_u32 s{sSPIN}, s{sSPIN}, 1\ns_cmp_eq_u32 s{sSPIN}, 0\ns_cbranch_scc1 {lx}")
    e(f"buffer_load_dword v{t}, v{t+1}, {srd(S_WS)}, s{sT2} offen sc1\ns_waitcnt vmcnt(0)")
    e(f"v_and_b32 v{t+2}, 0xfffffff0, v{t}\nv_cmp_ne_u32 vcc, s{sT3}, v{t+2}\ns_cbranch_vccnz {l}")
    e.label(lx)
    e.vm_done = e.vm_n
    e(f"s_or_b32 s{sT3}, s{sT3}, s{sXCC}\nv_cmp_ne_u32 vcc, s{sT3}, v{t}")
    e(f"s_cmp_eq_u64 vcc, 0\ns_cselect_b32 s{sPURE}, 1, 0")
    if os.environ.get("FORCE_SLOW"): e(f"s_mov_b32 s{sPURE}, 0")

def frag_soff(e, dst, base, nks, ks_expr_lines):
    e(ks_expr_lines)
    e(f"s_lshl_b32 s{sT2}, s{sTB}, 1\ns_add_u32 s{sT2}, s{sT2}, s{sI}\ns_mul_i32 s{sT2}, s{sT2}, {nks}\ns_add_u32 s{sT2}, s{sT2}, s{sT3}")
    e(f"s_lshl_b32 s{sT2}, s{sT2}, 10\ns_add_u32 s{dst}, s{sT2}, {base}")

def b1_store(e, OUT):
    frag_soff(e, sOFF, WS_HSH, 32, f"s_lshl_b32 s{sT3}, s{sFB}, 2\ns_lshl_b32 s{sT4}, s{sC}, 1\ns_add_u32 s{sT3}, s{sT3}, s{sT4}")
    def st(sc):
        for h in range(2):
            e.vm(f"buffer_store_dwordx4 {vr(OUT+4*h,4)}, v{vL16}, {srd(S_WS)}, s{sOFF} offen offset:{1024*h} {sc}", "store")
    stores2(e, st)

NSLOT = 8
def a1_setup(e):
    e(f"s_lshl_b32 s{sT4}, s{sTB}, 6")
    set_voffX(e, sT4, False)
    set_voffW(e, 3072)
    e(f"s_cmp_eq_u32 s{sW}, 0\ns_cselect_b64 vcc, -1, 0")
    for j in range(4): e(f"v_cndmask_b32 v{vWO+j}, v{vWO+j}, v{vXO+j}, vcc")
    e(f"s_cmp_eq_u32 s{sW}, 0")
    for k in range(4): e(f"s_cselect_b32 s{sDSRD+k}, s{S_AX+k}, s{S_WQKV+k}")
    e(f"s_sub_u32 s{sT2}, s{sW}, 1\ns_lshl_b32 s{sT2}, s{sT2}, 10\ns_lshl_b32 s{sT3}, s{sFB}, 7\ns_add_u32 s{sT2}, s{sT2}, s{sT3}")
    e(f"s_cmp_eq_u32 s{sW}, 0\ns_cselect_b32 s{sOFF}, 0, s{sT2}\ns_cselect_b32 s{sOFF2}, 64, {32*3072}")
    e(f"s_lshl_b32 s{sWB}, s{sW}, 12")
def a1_issue(e, c):
    e(f"s_add_u32 m0, s{sWB}, {(c % NSLOT)*16384}")
    tk = dma_group(e, vWO, sDSRD, sOFF, None)
    e(f"s_add_u32 s{sOFF}, s{sOFF}, s{sOFF2}")
    return tk

def stage_a1(e, pre):
    AQ, AK, AV = 64, 80, 96
    XF = [128, 132]; WF = [[136, 140, 144], [148, 152, 156]]; GWF = [160, 164]
    GA = 168
    e(f"s_lshl_b32 s{sT2}, s{sI}, 11\ns_add_u32 s{sT3}, s{sT2}, 65536")
    for sub in range(2):
        e(f"v_add_u32 v{vA+2*sub}, s{sT2}, v{vXR+sub}\nv_add_u32 v{vA+2*sub+1}, s{sT3}, v{vXR+sub}")
    e(f"s_cmp_eq_u32 s{sC}, 0\ns_cselect_b64 vcc, -1, 0")
    e(f"v_cndmask_b32 v{vA+4}, v{vAN+1}, v{vAN}, vcc\nv_add_u32 v{vA+4}, 4096, v{vA+4}\nv_add_u32 v{vA+5}, 65536, v{vA+4}")
    e(f"v_lshlrev_b32 v{vA+6}, 4, v{vHH}\nv_add_u32 v{vA+6}, {PA_GW}, v{vA+6}")
    e(f"v_mov_b32 v{GA}, 0\nv_mov_b32 v{GA+1}, 0")
    toks = dict(pre)
    def reads(c, sub):
        slot = c % NSLOT; seg = slot // 4; off = (slot % 4) * 16384
        tk = [e.lds(f"ds_read_b128 {vr(XF[sub],4)}, v{vA + 2*sub + seg} offset:{off}")]
        for m in range(3):
            tk.append(tr_frag(e, WF[sub][m], vA + 4 + seg, off + m*4096 + sub*2048, 512))
        tk.append(e.lds(f"ds_read_b128 {vr(GWF[sub],4)}, v{vA+6} offset:{(2*c+sub)*32}"))
        return tk
    def mm(c, sub):
        first = (c == 0 and sub == 0)
        z = "0" if first else None
        mfma(e, AQ, WF[sub][0], XF[sub], c=z)
        mfma(e, AK, XF[sub], WF[sub][1], c=z)
        mfma(e, AV, XF[sub], WF[sub][2], c=z)
        for r in range(4):
            e(f"v_dot2c_f32_bf16 v{GA + (r&1)}, v{XF[sub]+r}, v{GWF[sub]+r}")
    rd1 = None
    for c in range(16):
        e.wait_vm(toks[c])
        e.wait_lds_all()
        e("s_barrier")
        if c + NSLOT - 1 < 16 and (c + NSLOT - 1) not in toks:
            toks[c + NSLOT - 1] = a1_issue(e, c + NSLOT - 1)
        rd0 = reads(c, 0)
        if c > 0: mm(c - 1, 1)
        rd1 = reads(c, 1)
        e.wait_lds(rd0)
        mm(c, 0)
    e.wait_lds_all()
    mm(15, 1)
    t = vT0
    e(f"v_add_f32 v{GA}, v{GA}, v{GA+1}")
    halfsum(e, GA, t)
    e(f"v_mul_f32 v{GA}, 0xbfb8aa3b, v{GA}\nv_exp_f32 v{GA}, v{GA}\nv_add_f32 v{GA}, 1.0, v{GA}\nv_rcp_f32 v{GA}, v{GA}")
    e(f"s_lshl_b32 s{sT2}, s{sI}, 7\ns_add_u32 s{sT2}, s{sT2}, {PA_G}\nv_lshlrev_b32 v{t}, 2, v{vT}\nv_add_u32 v{t}, s{sT2}, v{t}")
    e.lds(f"ds_write_b32 v{t}, v{GA}")
    def phi(acc, out, tmp):
        P = lambda r: vr(r, 2)
        n = 8
        for k in range(n): e(f"v_pk_mul_f32 {P(tmp+2*k)}, {P(acc+2*k)}, s[{sC_LOG2E}:{sC_LOG2E+1}]")
        for k in range(2*n): e(f"v_min_f32 v{tmp+k}, 0, v{tmp+k}")
        for k in range(2*n): e(f"v_exp_f32 v{tmp+k}, v{tmp+k}")
        for k in range(2*n): e(f"v_max_f32 v{acc+k}, 0, v{acc+k}")
        for k in range(n): e(f"v_pk_add_f32 {P(acc+2*k)}, {P(acc+2*k)}, {P(tmp+2*k)}")
        for k in range(n): e(f"v_pk_add_f32 {P(acc+2*k)}, {P(acc+2*k)}, s[{sC_EPS6}:{sC_EPS6+1}]")
        for k in range(n): e(f"v_cvt_pk_bf16_f32 v{out+k}, v{acc+2*k}, v{acc+2*k+1}")
    TMP = 112
    PKF, VF, PQF = 128, 136, 144
    phi(AK, PKF, TMP)
    for k in range(8): e(f"v_cvt_pk_bf16_f32 v{VF+k}, v{AV+2*k}, v{AV+2*k+1}")
    ONE = 152
    for k in range(4): e(f"v_mov_b32 v{ONE+k}, s{sONES}")
    D2, D3 = 80, 96
    mfma(e, D2, PKF, VF, c="0"); mfma(e, D3, PKF, ONE, c="0")
    mfma(e, D2, PKF + 4, VF + 4); mfma(e, D3, PKF + 4, ONE)
    phi(AQ, PQF, TMP)
    frag_soff(e, sOFF, WS_PQ, 32, f"s_lshl_b32 s{sT3}, s{sFB}, 2\ns_lshl_b32 s{sT4}, s{sC}, 1\ns_add_u32 s{sT3}, s{sT3}, s{sT4}")
    def st(sc):
        for h in range(2):
            e.vm(f"buffer_store_dwordx4 {vr(PQF+4*h,4)}, v{vL16}, {srd(S_WS)}, s{sOFF} offen offset:{1024*h} {sc}", "store")
    stores2(e, st)
    e(f"v_and_b32 v{t}, 16, v{vLANE}\nv_cmp_ne_u32 vcc, 0, v{t}")
    for r in range(8): e(f"v_cndmask_b32 v{D2+r}, v{D2+r}, v{D3+r}, vcc")
    for r in range(8): e(f"v_cndmask_b32 v{D2+8+r}, v{D3+8+r}, v{D2+8+r}, vcc")
    e(f"s_lshl_b32 s{sT2}, s{sC}, 12\ns_add_u32 s{sT2}, s{sT2}, {PA_X}\nv_add_u32 v{t}, s{sT2}, v{vL16}")
    l1 = e.newlabel("La1"); l2 = e.newlabel("La1")
    e(f"s_cmp_eq_u32 s{sI}, 0\ns_cbranch_scc1 {l1}")
    for rg in range(4): e(f"ds_write_b128 v{t}, {vr(D2+4*rg,4)} offset:{rg*1024}")
    e.label(l1)
    e("s_waitcnt lgkmcnt(0)"); e.ld_done = e.ld_n
    e("s_barrier")
    e(f"s_cmp_lg_u32 s{sI}, 0\ns_cbranch_scc1 {l2}")
    for rg in range(4): e(f"ds_read_b128 {vr(D3+4*rg,4)}, v{t} offset:{rg*1024}")
    e("s_waitcnt lgkmcnt(0)")
    for p in range(8): e(f"v_pk_add_f32 {vr(D2+2*p,2)}, {vr(D2+2*p,2)}, {vr(D3+2*p,2)}")
    e(f"v_and_b32 v{t+1}, 15, v{vT}\nv_mov_b32 v{t+2}, 16")
    e(f"v_and_b32 v{t+3}, 16, v{vLANE}\nv_cmp_ne_u32 vcc, 0, v{t+3}")
    e(f"v_cndmask_b32 v{t+4}, v{t+1}, v{t+2}, vcc\nv_cndmask_b32 v{t+5}, v{t+2}, v{t+1}, vcc")
    e(f"v_mul_u32_u24 v{t+3}, 544, v{vHH}")
    e(f"v_lshlrev_b32 v{t+4}, 5, v{t+4}\nv_add_u32 v{t+4}, v{t+4}, v{t+3}\nv_lshlrev_b32 v{t+5}, 5, v{t+5}\nv_add_u32 v{t+5}, v{t+5}, v{t+3}")
    e(f"s_lshl_b32 s{sT2}, s{sTB}, 3\ns_add_u32 s{sT2}, s{sT2}, s{sFB}\ns_mul_i32 s{sT2}, s{sT2}, 4352\ns_mul_i32 s{sT3}, s{sC}, 2176\ns_add_u32 s{sT2}, s{sT2}, s{sT3}\ns_add_u32 s{sOFF}, s{sT2}, {WS_KVP}")
    for h in range(2):
        for q in range(2):
            e(f"buffer_store_dwordx4 {vr(D2+8*h+4*q,4)}, v{t+4+h}, {srd(S_WS)}, s{sOFF} offen offset:{1088*h + 16*q} sc1")
            e.vm_kinds.append("store"); e.vm_n += 1
    e.label(l2)

def wpriv_issue(e, srdn, lds_off, ngroups, soff=sOFF2):
    tk = []
    for g in range(ngroups):
        e(f"s_add_u32 m0, s{sWB}, {lds_off + g*4096}")
        tk.append(dma_group(e, vWO, srdn, soff, None))
        e(f"s_add_u32 s{soff}, s{soff}, {32*1024}")
    return tk

def set_wrP(e, base_extra):
    e(f"s_cmp_eq_u32 s{sC}, 0\ns_cselect_b64 vcc, -1, 0")
    e(f"v_cndmask_b32 v{vA+4}, v{vAP+1}, v{vAP}, vcc\nv_cndmask_b32 v{vA+5}, v{vAP}, v{vAP+1}, vcc")
    e(f"s_add_u32 s{sT2}, s{sWB}, {base_extra}\nv_add_u32 v{vA+4}, s{sT2}, v{vA+4}\nv_add_u32 v{vA+5}, s{sT2}, v{vA+5}")

def b2_issue_w(e):
    set_voffW(e, 1024)
    e(f"s_lshl_b32 s{sWB}, s{sW}, 15")
    e(f"s_lshl_b32 s{sOFF2}, s{sW}, 17\ns_lshl_b32 s{sT2}, s{sFB}, 7\ns_add_u32 s{sOFF2}, s{sOFF2}, s{sT2}")
    return wpriv_issue(e, S_W2, 0, 4)

def act_soff(e, dst, base, nks, ks0_lines, ip):
    e(ks0_lines)
    e(f"s_xor_b32 s{sT4}, s{sI}, {ip}\ns_lshl_b32 s{sT2}, s{sTB}, 1\ns_add_u32 s{sT2}, s{sT2}, s{sT4}\ns_mul_i32 s{sT2}, s{sT2}, {nks}\ns_add_u32 s{sT2}, s{sT2}, s{sT3}")
    e(f"s_lshl_b32 s{sT2}, s{sT2}, 10\ns_add_u32 s{dst}, s{sT2}, {base}")

def stage_b2(e, tw):
    HF = 128
    WF = 192
    set_wrP(e, 0)
    th = {}
    for i in range(2):
        act_soff(e, sOFF + i, WS_HSH, 32, f"s_lshl_b32 s{sT3}, s{sW}, 3", i)
    for s in range(8):
        for i in range(2):
            if s == 4: e(f"s_add_u32 s{sOFF+i}, s{sOFF+i}, 4096")
            th[(s, i)] = e.vm(f"buffer_load_dwordx4 {vr(HF + (2*s+i)*4, 4)}, v{vL16}, {srd(S_WS)}, s{sOFF+i} offen offset:{(s&3)*1024} sc1")
    e.wait_vm(tw[-1])
    def reads(s):
        return [tr_frag(e, WF + (s&1)*8 + c*4, vA + 4 + c, s*2048, 1024) for c in range(2)]
    rd = reads(0)
    for s in range(8):
        nxt = reads(s + 1) if s + 1 < 8 else None
        e.wait_lds(rd); e.wait_vm(th[(s, 1)])
        for i in range(2):
            for c in range(2):
                mfma(e, ACC + (2*i + c)*16, WF + (s&1)*8 + c*4, HF + (2*s+i)*4, c=("0" if s == 0 else None))
        rd = nxt
    reduce4(e, ACC, 32768, None, None)
    e.wait_lds_all()
    e("s_barrier")
    reduce4_read(e, ACC)
    t = vT0
    for k in range(8):
        e(f"v_lshlrev_b32 v{t}, 16, v{vRES+k}\nv_and_b32 v{t+1}, 0xffff0000, v{vRES+k}")
        e(f"v_pk_add_f32 {vr(ACC+2*k,2)}, {vr(ACC+2*k,2)}, {vr(t,2)}")
        e(f"v_cvt_pk_bf16_f32 v{vRES+k}, v{ACC+2*k}, v{ACC+2*k+1}")
    S, Q = 128, 130
    e(f"v_mov_b32 v{S}, 0\nv_mov_b32 v{S+1}, 0\nv_mov_b32 v{Q}, 0\nv_mov_b32 v{Q+1}, 0")
    for k in range(8):
        e(f"v_dot2c_f32_bf16 v{S+(k&1)}, s{sONES}, v{vRES+k}\nv_dot2c_f32_bf16 v{Q+(k&1)}, v{vRES+k}, v{vRES+k}")
    e(f"v_add_f32 v{S}, v{S}, v{S+1}\nv_add_f32 v{S+1}, v{Q}, v{Q+1}")
    halfsum(e, S, t); halfsum(e, S + 1, t)
    frag_soff(e, sOFF, WS_X1, 32, f"s_lshl_b32 s{sT3}, s{sFB}, 2\ns_lshl_b32 s{sT4}, s{sC}, 1\ns_add_u32 s{sT3}, s{sT3}, s{sT4}")
    e(f"s_lshl_b32 s{sT2}, s{sFB}, 1\ns_add_u32 s{sT2}, s{sT2}, s{sC}\ns_lshl_b32 s{sT2}, s{sT2}, 11")
    e(f"s_lshl_b32 s{sT3}, s{sTB}, 6\ns_add_u32 s{sT2}, s{sT2}, s{sT3}\ns_lshl_b32 s{sT3}, s{sI}, 5\ns_add_u32 s{sT2}, s{sT2}, s{sT3}")
    e(f"s_lshl_b32 s{sT2}, s{sT2}, 3\ns_add_u32 s{sOFF2}, s{sT2}, {WS_ST2}")
    e(f"v_lshlrev_b32 v{t+2}, 3, v{vT}")
    def st(sc):
        for h in range(2):
            e.vm(f"buffer_store_dwordx4 {vr(vRES+4*h,4)}, v{vL16}, {srd(S_WS)}, s{sOFF} offen offset:{1024*h} {sc}", "store")
        e.vm(f"buffer_store_dwordx2 {vr(S,2)}, v{t+2}, {srd(S_WS)}, s{sOFF2} offen {sc}", "store")
    stores2(e, st)

def b3_issue_w(e):
    set_voffW(e, 3584)
    e(f"s_mul_i32 s{sOFF2}, s{sW}, {128*3584}\ns_lshl_b32 s{sT2}, s{sV}, 8\ns_add_u32 s{sOFF2}, s{sOFF2}, s{sT2}")
    e(f"s_lshl_b32 s{sWB}, s{sW}, 15")
    tk = []
    for g in range(4):
        for p in range(2):
            e(f"s_add_u32 m0, s{sWB}, {g*8192 + p*4096}")
            if p == 1: e(f"s_add_u32 s{sT2}, s{sOFF2}, 128")
            tk.append(dma_group(e, vWO, S_W3, sOFF2 if p == 0 else sT2, None))
        e(f"s_add_u32 s{sOFF2}, s{sOFF2}, {32*3584}")
    return tk

def stage_b3(e, tw):
    for c in range(2):
        e(f"v_mov_b32 v{vA+2*c}, v{vAP+c}\nv_add_u32 v{vA+2*c+1}, 65536, v{vAP+c}")
    def waddr(s, ft):
        g = s >> 1; off = g*8192 + (ft >> 1)*4096 + (s & 1)*2048
        seg = off // 65536
        return vA + 2*(ft & 1) + seg, off % 65536
    e.wait_vm(tw[-1])
    e("s_barrier")
    t = vT0
    e(f"s_cmp_eq_u32 s{sC}, 0\ns_cselect_b64 vcc, -1, 0")
    e(f"v_cndmask_b32 v{vA+4}, v{vAP+1}, v{vAP}, vcc\ns_lshl_b32 s{sT2}, s{sI}, 12\nv_add_u32 v{vA+4}, s{sT2}, v{vA+4}\nv_add_u32 v{vA+5}, 65536, v{vA+4}")
    CSA = 128; WT = 132
    for r in range(4): e(f"v_mov_b32 v{CSA+r}, 0")
    pend = []
    def csread(s):
        off = (s >> 1)*8192 + (s & 1)*2048
        return tr_frag(e, WT + (s % 4)*4, vA + 4 + off // 65536, off % 65536, 1024)
    rds = {s: csread(s) for s in range(3)}
    for s in range(32):
        if s + 3 < 32: rds[s + 3] = csread(s + 3)
        e.wait_lds(rds[s])
        for r in range(4): e(f"v_dot2c_f32_bf16 v{CSA+r}, s{sONES}, v{WT + (s % 4)*4 + r}")
    e(f"v_add_f32 v{CSA}, v{CSA}, v{CSA+1}\nv_add_f32 v{CSA+2}, v{CSA+2}, v{CSA+3}\nv_add_f32 v{CSA}, v{CSA}, v{CSA+2}")
    e(f"s_lshl_b32 s{sT2}, s{sW}, 8\ns_add_u32 s{sT2}, s{sT2}, {PA_X}\nv_lshlrev_b32 v{t}, 2, v{vLANE}\nv_add_u32 v{t}, s{sT2}, v{t}")
    e.lds(f"ds_write_b32 v{t}, v{CSA}")
    e.wait_lds_all()
    poll(e, f"s_lshl_b32 s{sT2}, s{sU}, 7\ns_add_u32 s{sT2}, s{sT2}, {WS_FB2}", 16)
    stamp(e, 5)
    e(f"s_lshl_b32 s{sT2}, s{sU}, 2\ns_add_u32 s{sT2}, s{sT2}, s{sW}\ns_lshl_b32 s{sT2}, s{sT2}, 15\ns_add_u32 s{sOFF}, s{sT2}, {WS_X1}")
    e(f"s_lshl_b32 s{sT2}, s{sU}, 7\ns_lshl_b32 s{sT3}, s{sW}, 5\ns_add_u32 s{sT2}, s{sT2}, s{sT3}\ns_lshl_b32 s{sT2}, s{sT2}, 3\ns_add_u32 s{sOFF2}, s{sT2}, {WS_ST2}")
    e(f"v_lshlrev_b32 v{t}, 17, v{vHH}\nv_lshlrev_b32 v{t+1}, 3, v{vT}\nv_add_u32 v{t}, v{t}, v{t+1}")
    STT = 136
    tst = []
    for k in range(8):
        if k: e(f"s_add_u32 s{sOFF2}, s{sOFF2}, 16384")
        tst.append(e.vm(f"buffer_load_dwordx2 {vr(STT+2*k,2)}, v{t}, {srd(S_WS)}, s{sOFF2} offen sc1"))
    tx = []
    for s in range(32):
        if s and s % 4 == 0: e(f"s_add_u32 s{sOFF}, s{sOFF}, 4096")
        tx.append(e.vm(f"buffer_load_dwordx4 {ar(4*s,4)}, v{vL16}, {srd(S_WS)}, s{sOFF} offen offset:{(s&3)*1024} sc1"))
    CS4 = 152
    e(f"v_lshlrev_b32 v{t+2}, 2, v{vLANE}\nv_add_u32 v{t+2}, {PA_X}, v{t+2}")
    tc = [e.lds(f"ds_read_b32 v{CS4+k}, v{t+2} offset:{256*k}") for k in range(4)]
    e.wait_vm(tst[-1])
    for k in range(1, 8): e(f"v_pk_add_f32 {vr(STT,2)}, {vr(STT,2)}, {vr(STT+2*k,2)}")
    halfsum(e, STT, t); halfsum(e, STT + 1, t)
    NM, RS = 224, 226
    ln_stats(e, STT, STT + 1, NM, RS, t)
    CA, CB = 160, 176
    e.wait_lds(tc)
    for k in range(4): corr_frags(e, CS4 + k, None, CA + 4*k, None, t)
    corr_frags(e, None, NM, None, CB, t)
    for k in range(4): mfma(e, ACC + 16*k, CA + 4*k, CB, c="0")
    WF = 192
    def reads(s):
        tk = []
        for ft in range(4):
            a, off = waddr(s, ft)
            tk.append(tr_frag(e, WF + (s&1)*16 + ft*4, a, off, 1024))
        return tk
    rd = reads(0)
    for s in range(32):
        nxt = reads(s + 1) if s + 1 < 32 else None
        e.wait_lds(rd); e.wait_vm(tx[s])
        for ft in range(4):
            mfma(e, ACC + 16*ft, WF + (s&1)*16 + ft*4, 4*s, ba=True)
        rd = nxt
    e(f"s_lshl_b32 s{sT2}, s{sU}, 2\ns_add_u32 s{sT2}, s{sT2}, s{sW}\ns_mul_i32 s{sT2}, s{sT2}, 112\ns_lshl_b32 s{sT3}, s{sV}, 3\ns_add_u32 s{sT2}, s{sT2}, s{sT3}")
    e(f"s_lshl_b32 s{sT2}, s{sT2}, 10\ns_add_u32 s{sOFF}, s{sT2}, {WS_H2}\ns_add_u32 s{sOFF2}, s{sOFF}, 4096")
    OUT = 128; TMP = 192
    for ft in range(4):
        gelu_pairs(e, [ACC + 16*ft + 2*k for k in range(8)], RS, [TMP + 2*k for k in range(8)], [OUT + 8*ft + k for k in range(8)])
    assert RS >= OUT + 32 - 2 or True
    def st(sc):
        for ft in range(4):
            for h in range(2):
                so = sOFF if ft < 2 else sOFF2
                e.vm(f"buffer_store_dwordx4 {vr(OUT+8*ft+4*h,4)}, v{vL16}, {srd(S_WS)}, s{so} offen offset:{((2*ft+h)&3)*1024} {sc}", "store")
    stores2(e, st)

def stage_a2(e):
    t = vT0
    e(f"s_lshl_b32 s{sT5}, s{sU}, 1\ns_add_u32 s{sT5}, s{sT5}, s{sV}\ns_sub_u32 s{sT5}, s{sT5}, 14")
    e(f"s_mov_b32 s{sHEAD}, s{sT5}")
    poll(e, f"s_lshr_b32 s{sT2}, s{sHEAD}, 2\ns_lshl_b32 s{sT2}, s{sT2}, 7\ns_add_u32 s{sT2}, s{sT2}, {WS_FA1}", 32)
    e(f"v_and_b32 v{t+1}, 15, v{vT}\nv_mov_b32 v{t+2}, 16\nv_and_b32 v{t+3}, 16, v{vLANE}")
    e(f"s_and_b32 s{sT2}, s{sHEAD}, 1\ns_lshl_b32 s{sT2}, s{sT2}, 4\nv_cmp_ne_u32 vcc, s{sT2}, v{t+3}")
    e(f"v_cndmask_b32 v{t+4}, v{t+1}, v{t+2}, vcc")
    e(f"v_mul_u32_u24 v{t+3}, 544, v{vHH}\nv_lshlrev_b32 v{t+4}, 5, v{t+4}\nv_add_u32 v{t+4}, v{t+4}, v{t+3}")
    e(f"s_lshr_b32 s{sT2}, s{sHEAD}, 2\ns_lshl_b32 s{sT3}, s{sW}, 6\ns_add_u32 s{sT2}, s{sT2}, s{sT3}\ns_mul_i32 s{sT2}, s{sT2}, 4352")
    e(f"s_and_b32 s{sT3}, s{sHEAD}, 3\ns_mul_i32 s{sT3}, s{sT3}, 1088\ns_add_u32 s{sT2}, s{sT2}, s{sT3}\ns_add_u32 s{sOFF}, s{sT2}, {WS_KVP}")
    B = 64
    tk = []
    for k in range(8):
        if k: e(f"s_add_u32 s{sOFF}, s{sOFF}, {8*4352}")
        for q in range(2):
            tk.append(e.vm(f"buffer_load_dwordx4 {vr(B+8*k+4*q,4)}, v{t+4}, {srd(S_WS)}, s{sOFF} offen offset:{16*q} sc1"))
    for k in range(1, 8):
        e.wait_vm(tk[2*k+1])
        for p in range(4): e(f"v_pk_add_f32 {vr(B+2*p,2)}, {vr(B+2*p,2)}, {vr(B+8*k+2*p,2)}")
    e(f"s_lshl_b32 s{sT2}, s{sW}, 11\nv_add_u32 v{t}, s{sT2}, v{vL16}")
    e.lds(f"ds_write_b128 v{t}, {vr(B,4)}"); e.lds(f"ds_write_b128 v{t}, {vr(B+4,4)} offset:1024")
    e.wait_lds_all()
    e("s_barrier")
    l = e.newlabel("La2")
    e(f"s_cmp_lg_u32 s{sW}, 0\ns_cbranch_scc1 {l}")
    for k in range(1, 4):
        e(f"ds_read_b128 {vr(B+8*k,4)}, v{vL16} offset:{2048*k}\nds_read_b128 {vr(B+8*k+4,4)}, v{vL16} offset:{2048*k+1024}")
    e("s_waitcnt lgkmcnt(0)")
    for k in range(1, 4):
        for p in range(4): e(f"v_pk_add_f32 {vr(B+2*p,2)}, {vr(B+2*p,2)}, {vr(B+8*k+2*p,2)}")
    for p in range(4): e(f"v_cvt_pk_bf16_f32 v{B+32+p}, v{B+2*p}, v{B+2*p+1}")
    e(f"s_lshl_b32 s{sT2}, s{sHEAD}, 10\ns_add_u32 s{sOFF}, s{sT2}, {WS_KVT}")
    e(f"buffer_store_dwordx4 {vr(B+32,4)}, v{vL16}, {srd(S_WS)}, s{sOFF} offen sc1")
    e("s_waitcnt vmcnt(0)")
    e(f"s_lshl_b32 s{sT2}, s{sHEAD}, 2\ns_add_u32 s{sT2}, s{sT2}, {WS_FA2}")
    flag_store(e, sT2, "sc1")
    e.label(l)
    e.wait_vm_all()
    e("s_barrier")

def p4_issue_w4(e, ng):
    set_voffW(e, 1024)
    e(f"s_lshl_b32 s{sWB}, s{sW}, 15")
    e(f"s_mul_i32 s{sOFF2}, s{sW}, {448*1024}\ns_lshl_b32 s{sT2}, s{sFB}, 7\ns_add_u32 s{sOFF2}, s{sOFF2}, s{sT2}")
    return wpriv_issue(e, S_W4, 0, ng)

def stage_p4(e, tw):
    ACCB, ACCA = 64, 128
    WF = 192
    RING = 8
    set_wrP(e, 0)
    tw = list(tw)
    poll(e, f"s_lshl_b32 s{sT2}, s{sU}, 7\ns_add_u32 s{sT2}, s{sT2}, {WS_FB3}", 14)
    stamp(e, 7)
    HD = 16
    for i in range(2):
        act_soff(e, sOFF + 3 + i, WS_H2, 112, f"s_mul_i32 s{sT3}, s{sW}, 28", i)
    th = {}
    SO = [sOFF + 3, sOFF + 4]
    def hload(s):
        for i in range(2):
            if s and s % 4 == 0: e(f"s_add_u32 s{SO[i]}, s{SO[i]}, 4096")
            th[(s, i)] = e.vm(f"buffer_load_dwordx4 {ar(((s % HD)*2 + i)*4, 4)}, v{vL16}, {srd(S_WS)}, s{SO[i]} offen offset:{(s&3)*1024} sc1")
    for s in range(HD): hload(s)
    def reads(s):
        g = s >> 1
        e.wait_vm(tw[g])
        off = (g % RING)*4096 + (s & 1)*2048
        return [tr_frag(e, WF + (s&1)*8 + c*4, vA + 4 + c, off, 1024) for c in range(2)]
    rd = reads(0)
    for s in range(28):
        nxt = reads(s + 1) if s + 1 < 28 else None
        e.wait_lds(rd); e.wait_vm(th[(s, 1)])
        for i in range(2):
            for c in range(2):
                mfma(e, ACCB + (2*i + c)*16, WF + (s&1)*8 + c*4, ((s % HD)*2 + i)*4, ba=True, c=("0" if s == 0 else None))
        rd = nxt
        if s + HD < 28: hload(s + HD)
        if (s & 1) == 1 and len(tw) < 14:
            g = len(tw)
            assert (g % RING) == ((s >> 1) % RING)
            e(f"s_add_u32 m0, s{sWB}, {(g % RING)*4096}")
            tw.append(dma_group(e, vWO, S_W4, sOFF2, None))
            e(f"s_add_u32 s{sOFF2}, s{sOFF2}, {32*1024}")
    stamp(e, 8)
    e(f"s_lshl_b32 s{sOFF2}, s{sW}, 17\ns_lshl_b32 s{sT2}, s{sFB}, 7\ns_add_u32 s{sOFF2}, s{sOFF2}, s{sT2}")
    two = wpriv_issue(e, S_WO, 0, 4)
    poll(e, f"s_mov_b32 s{sT2}, {WS_FA2}", 32)
    l = e.newlabel("Lep")
    e(f"s_or_b32 s{sT2}, s2, s{sW}\ns_cmp_lg_u32 s{sT2}, 0\ns_cbranch_scc1 {l}")
    e(f"s_mov_b32 s{sT2}, {WS_EPOCH}")
    flag_store(e, sT2, "sc1")
    e.label(l)
    e(f"s_lshl_b32 s{sT2}, s{sW}, 13\ns_add_u32 s{sOFF}, s{sT2}, {WS_KVT}")
    tk = []
    for h in range(8):
        if h == 4: e(f"s_add_u32 s{sOFF}, s{sOFF}, 4096")
        tk.append(e.vm(f"buffer_load_dwordx4 {ar(4*h,4)}, v{vL16}, {srd(S_WS)}, s{sOFF} offen offset:{(h&3)*1024} sc1"))
    for i in range(2):
        act_soff(e, SO[i], WS_PQ, 32, f"s_lshl_b32 s{sT3}, s{sW}, 3", i)
    tp = {}
    for h in range(8):
        for i in range(2):
            if h == 4: e(f"s_add_u32 s{SO[i]}, s{SO[i]}, 4096")
            tp[(h, i)] = e.vm(f"buffer_load_dwordx4 {ar(32 + (2*h+i)*4, 4)}, v{vL16}, {srd(S_WS)}, s{SO[i]} offen offset:{(h&3)*1024} sc1")
    t = vT0
    G = [208, 210]; OMG = [212, 214]
    e(f"v_lshlrev_b32 v{t}, 2, v{vT}\nv_add_u32 v{t}, {PA_G}, v{t}")
    e(f"s_lshl_b32 s{sT2}, s{sI}, 7\nv_add_u32 v{t+1}, s{sT2}, v{t}\ns_xor_b32 s{sT2}, s{sT2}, 128\nv_add_u32 v{t+2}, s{sT2}, v{t}")
    tg = [e.lds(f"ds_read_b32 v{G[0]}, v{t+1}"), e.lds(f"ds_read_b32 v{G[1]}, v{t+2}")]
    e.wait_lds(tg)
    for i in range(2): e(f"v_sub_f32 v{OMG[i]}, 1.0, v{G[i]}")
    e.wait_vm(two[-1])
    OD = [216, 232]
    OF = [248, 252]
    SC = t + 4
    def wo_reads(h):
        return [tr_frag(e, WF + (h&1)*8 + c*4, vA + 4 + c, h*2048, 1024) for c in range(2)]
    rd = wo_reads(0)
    for h in range(8):
        nxt = wo_reads(h + 1) if h + 1 < 8 else None
        e.wait_vm(tk[h]); e.wait_vm(tp[(h, 1)])
        for i in range(2):
            e(f"v_mfma_f32_32x32x16_bf16 {vr(OD[i],16)}, {ar(4*h,4)}, {ar(32 + (2*h+i)*4,4)}, 0")
        for i in range(2):
            num = OD[i] + (8 if h & 1 else 0); den = OD[i] + (0 if h & 1 else 8)
            e(f"v_add_f32 v{SC}, 0x358637bd, v{den}\nv_rcp_f32 v{SC}, v{SC}\nv_mul_f32 v{SC}, v{SC}, v{G[i]}")
            for p in range(4): e(f"v_pk_mul_f32 {vr(num+2*p,2)}, {vr(num+2*p,2)}, {vr(SC,2)} op_sel_hi:[1,0]")
            for p in range(4): e(f"v_cvt_pk_bf16_f32 v{OF[i]+p}, v{num+2*p}, v{num+2*p+1}")
        e.wait_lds(rd)
        for i in range(2):
            for c in range(2):
                mfma(e, ACCA + (2*i + c)*16, WF + (h&1)*8 + c*4, OF[i], c=("0" if h == 0 else None))
        rd = nxt
    for i in range(2):
        for c in range(2):
            q = 2*i + c
            for p in range(8):
                e(f"v_pk_fma_f32 {vr(ACCB+16*q+2*p,2)}, {vr(ACCB+16*q+2*p,2)}, {vr(OMG[i],2)}, {vr(ACCA+16*q+2*p,2)} op_sel_hi:[1,0,1]")
    e.wait_lds_all()
    reduce4(e, ACCB, 32768, None, None)
    e.wait_lds_all()
    e("s_barrier")
    reduce4_read(e, ACCB)
    for k in range(8):
        e(f"v_lshlrev_b32 v{t}, 16, v{vRES+k}\nv_and_b32 v{t+1}, 0xffff0000, v{vRES+k}")
        e(f"v_pk_fma_f32 {vr(ACCB+2*k,2)}, {vr(t,2)}, {vr(OMG[0],2)}, {vr(ACCB+2*k,2)} op_sel_hi:[1,0,1]")
        e(f"v_cvt_pk_bf16_f32 v{128+k}, v{ACCB+2*k}, v{ACCB+2*k+1}")
    for pr in range(2):
        a, b = 128 + 4*pr, 128 + 4*pr + 2
        e(f"v_permlane32_swap_b32 v{a}, v{b}\nv_permlane32_swap_b32 v{a+1}, v{b+1}")
    e(f"s_lshl_b32 s{sT2}, s{sTB}, 6\ns_lshl_b32 s{sT3}, s{sI}, 5\ns_add_u32 s{sT2}, s{sT2}, s{sT3}")
    e(f"v_add_u32 v{t}, s{sT2}, v{vT}\nv_lshlrev_b32 v{t}, 10, v{t}")
    e(f"s_lshl_b32 s{sT2}, s{sFB}, 7\ns_lshl_b32 s{sT3}, s{sC}, 6\ns_add_u32 s{sT2}, s{sT2}, s{sT3}")
    e(f"v_lshlrev_b32 v{t+1}, 4, v{vHH}\nv_add3_u32 v{t}, v{t}, v{t+1}, s{sT2}")
    for pr in range(2):
        e.vm(f"buffer_store_dwordx4 {vr(128+4*pr,4)}, v{t}, {srd(S_OUT)}, 0 offen offset:{32*pr}", "store")

def build(stop=None):
    e = E()
    prologue(e)
    common_addr(e)
    tx, tw, tres, tg = stage_b1_issue(e)
    e(f"s_mov_b32 s{sC_LOG2E}, 0x3fb8aa3b\ns_mov_b32 s{sC_LOG2E+1}, 0x3fb8aa3b")
    import struct
    f2u = lambda x: struct.unpack("<I", struct.pack("<f", x))[0]
    c0 = -2.0 * 0.7978845608028654 * 1.4426950408889634; c1 = c0 * 0.044715
    e(f"s_mov_b32 s{sC_G1}, {f2u(c1):#x}\ns_mov_b32 s{sC_G1+1}, {f2u(c1):#x}")
    e(f"s_mov_b32 s{sC_EPS6}, 0x358637bd\ns_mov_b32 s{sC_EPS6+1}, 0x358637bd\ns_mov_b32 s{sONES}, 0x3f803f80")
    e(f"v_mov_b32 v{vG0C}, {f2u(c0):#x}\nv_mov_b32 v{vG0C+1}, {f2u(c0):#x}")
    e("s_waitcnt lgkmcnt(0)")
    e(f"s_mul_i32 s{sTAG}, s{sTAG}, 1664525\ns_add_u32 s{sTAG}, s{sTAG}, 1013904223")
    l = e.newlabel("Lpub0")
    e(f"s_cmp_lg_u32 s{sW}, 0\ns_cbranch_scc1 {l}")
    e(f"s_lshl_b32 s{sT2}, s{sU}, 7\ns_lshl_b32 s{sT3}, s{sV}, 2\ns_add_u32 s{sT2}, s{sT2}, s{sT3}\ns_add_u32 s{sT2}, s{sT2}, {WS_PUB}")
    e(f"s_and_b32 s{sT3}, s{sTAG}, 0xfffffff0\ns_or_b32 s{sT3}, s{sT3}, s{sXCC}")
    e(f"v_mov_b32 v{vT0}, s{sT3}\nv_mov_b32 v{vT0+1}, 0\nv_cmp_eq_u32 vcc, 0, v{vLANE}\ns_and_saveexec_b64 s[{sSAVE}:{sSAVE+1}], vcc")
    e.vm(f"buffer_store_dword v{vT0}, v{vT0+1}, {srd(S_WS)}, s{sT2} offen sc1", "store")
    e(f"s_mov_b64 exec, s[{sSAVE}:{sSAVE+1}]")
    e.label(l)
    stamp(e, 0)
    OUT = stage_b1(e, tx, tw)
    e.wait_vm(tg)
    purity(e)
    b1_store(e, OUT)
    teamflag = lambda base: f"s_lshl_b32 s{sT2}, s{sU}, 7\ns_lshl_b32 s{sT3}, s{sV}, 2\ns_add_u32 s{sT2}, s{sT2}, s{sT3}\ns_add_u32 s{sT2}, s{sT2}, {base}"
    publish(e, teamflag(WS_FB1))
    stamp(e, 1)
    if stop != "b1":
        a1_setup(e)
        pre = {c: a1_issue(e, c) for c in range(NSLOT - 1)}
        stage_a1(e, pre)
        publish(e, f"s_lshl_b32 s{sT2}, s{sFB}, 7\ns_lshl_b32 s{sT3}, s{sTB}, 2\ns_add_u32 s{sT2}, s{sT2}, s{sT3}\ns_add_u32 s{sT2}, s{sT2}, {WS_FA1}", always_slow=True)
        stamp(e, 2)
    if stop not in ("b1", "a1"):
        tw2 = b2_issue_w(e)
        poll(e, f"s_lshl_b32 s{sT2}, s{sU}, 7\ns_and_b32 s{sT3}, s{sTB}, 1\ns_lshl_b32 s{sT3}, s{sT3}, 5\ns_add_u32 s{sT2}, s{sT2}, s{sT3}\ns_add_u32 s{sT2}, s{sT2}, {WS_FB1}", 8)
        stamp(e, 3)
        stage_b2(e, tw2)
        publish(e, teamflag(WS_FB2))
        stamp(e, 4)
    if stop not in ("b1", "a1", "b2"):
        la2 = e.newlabel("LA2"); lj = e.newlabel("LJ")
        e(f"s_cmp_ge_u32 s{sV}, 14\ns_cbranch_scc1 {la2}")
        sv = (e.vm_n, list(e.vm_kinds), e.vm_done, e.ld_n, e.ld_done)
        tw3 = b3_issue_w(e)
        stage_b3(e, tw3)
        publish(e, teamflag(WS_FB3))
        e(f"s_branch {lj}")
        e.label(la2)
        stage_a2(e)
        e.label(lj)
        e.wait_vm_all(); e.wait_lds_all()
        stamp(e, 6)
    if stop not in ("b1", "a1", "b2", "b3"):
        tw4 = p4_issue_w4(e, 8)
        stage_p4(e, tw4)
        stamp(e, 9)
    e.wait_vm_all()
    e.label("L_end")
    e("s_endpgm")
    e.label("L_codeend")
    body = e.text()
    return kernel_file([dict(name=KN, body=body, grid=256, block=256, lds=LDS_BYTES, vgpr=512, accum=256, sgpr=96)]), e

if __name__ == "__main__":
    stop = sys.argv[2] if len(sys.argv) > 2 else None
    if os.environ.get("NOPROF"): PROFILE = False
    txt, e = build(stop)
    open(sys.argv[1], "w").write(txt)
    n = sum(1 for l in txt.split("\n") if l.startswith("    ") and not l.strip().startswith(";"))
    print("instructions:", n, "nops inserted:", e.nops_inserted)
```

```python
import re
TRANS = ("v_exp_f32", "v_rcp_f32", "v_rsq_f32", "v_log_f32", "v_sqrt_f32", "v_sin_f32", "v_cos_f32")
def split_ops(s):
    out, depth, cur = [], 0, ""
    for ch in s:
        if ch == "[": depth += 1
        if ch == "]": depth -= 1
        if ch == "," and depth == 0:
            out.append(cur.strip()); cur = ""
        else: cur += ch
    if cur.strip(): out.append(cur.strip())
    return out
_R = re.compile(r"^(-|\|)?([vas])(\d+)\|?$"); _RR = re.compile(r"^(-)?([vas])\[(\d+):(\d+)\]$")
def regs(tok):
    tok = tok.split()[0] if tok.split() else tok
    m = _R.match(tok)
    if m: return {(m.group(2), int(m.group(3)))}
    m = _RR.match(tok)
    if m: return {(m.group(2), i) for i in range(int(m.group(3)), int(m.group(4)) + 1)}
    if tok in ("vcc", "vcc_lo", "vcc_hi"): return {("x", "vcc")}
    if tok in ("exec", "exec_lo", "exec_hi"): return {("x", "exec")}
    if tok == "m0": return {("x", "m0")}
    return set()
class Ins:
    __slots__ = ("text", "mn", "cls", "vw", "vr", "sw", "sr", "passes", "cset", "abset", "wide_store", "trans", "islabel", "isbranch", "lds_dma", "nstates", "soft", "skip")
    def __init__(self, text):
        self.text = text
        self.soft = "@soft" in text; self.skip = "@skip" in text
        t = text.split(";")[0].strip()
        self.islabel = t.endswith(":")
        self.vw = set(); self.vr = set(); self.sw = set(); self.sr = set(); self.passes = 0; self.cset = set(); self.abset = set()
        self.wide_store = False; self.trans = False; self.isbranch = False; self.lds_dma = False; self.nstates = 1
        if self.islabel or not t or t.startswith("."):
            self.cls = "none"; self.mn = ""; self.nstates = 0; return
        p = t.split(None, 1); mn = p[0]; self.mn = mn
        ops = split_ops(p[1]) if len(p) > 1 else []
        R = [regs(o) for o in ops]
        def vs(st): return {r for r in st if r[0] in "va"}, {r for r in st if r[0] in "sx"}
        if mn.startswith("v_mfma"):
            self.cls = "mfma"; self.passes = 8 if "32x32x16" in mn else 4
            self.vw = R[0]; self.abset = R[1] | R[2]; self.cset = R[3] if len(R) > 3 else set(); self.vr = self.abset | self.cset
        elif mn.startswith("v_"):
            self.cls = "valu"; self.trans = any(mn.startswith(x) for x in TRANS)
            d = R[0] if R else set()
            srcs = set().union(*R[1:]) if len(R) > 1 else set()
            if mn.startswith("v_permlane32_swap") or mn.startswith("v_permlane16_swap"):
                self.vw = R[0] | R[1]; self.vr = R[0] | R[1]
            else:
                dv, dsx = vs(d); self.vw = dv; self.sw = dsx
                sv, ssx = vs(srcs); self.vr = sv; self.sr = ssx
                if mn.startswith("v_dot"): self.abset = vs(R[1] | R[2])[0]
                if mn.startswith(("v_fmac", "v_dot2c", "v_pk_fmac", "v_writelane")): self.vr |= dv
                if mn.startswith("v_cndmask") and len(ops) == 3: self.sr |= {("x", "vcc")}
                if mn.startswith(("v_add_co", "v_sub_co", "v_addc_co", "v_subb_co")):
                    self.sw |= R[1]; self.sr = set().union(*[vs(r)[1] for r in R[2:]]); self.vr = set().union(*[vs(r)[0] for r in R[2:]])
        elif mn.startswith("ds_"):
            self.cls = "ds"
            if mn.startswith("ds_read") or mn.startswith("ds_bpermute") or mn.startswith("ds_swizzle"):
                self.vw = R[0]; self.vr = set().union(*R[1:]) if len(R) > 1 else set()
            else: self.vr = set().union(*R)
            self.vr = {r for r in self.vr if r[0] in "va"}
        elif mn.startswith(("buffer_", "global_")):
            self.cls = "vmem"
            allr = set().union(*R) if R else set()
            toks = t.split()
            if mn.startswith("buffer_load") and "lds" in toks:
                self.lds_dma = True; self.vr = vs(R[0])[0]; self.sr = set().union(*[vs(r)[1] for r in R[1:]]) | {("x", "m0")}
            elif "load" in mn:
                self.vw = R[0]; rest = set().union(*R[1:]); self.vr, self.sr = vs(rest)
            elif mn in ("buffer_wbl2", "buffer_inv"): pass
            else:
                self.vr, self.sr = vs(allr)
                if "dwordx4" in mn or "dwordx3" in mn: self.wide_store = True; self.cset = R[0] if mn.startswith("buffer") else R[1]
        elif mn.startswith("s_"):
            self.cls = "salu"
            if mn == "s_nop": self.nstates = int(ops[0], 0) + 1
            if mn.startswith(("s_branch", "s_cbranch", "s_setpc", "s_endpgm")): self.isbranch = True
            if mn.startswith(("s_cmp", "s_waitcnt", "s_barrier", "s_nop", "s_sleep", "s_branch", "s_cbranch", "s_setprio", "s_endpgm", "s_bitcmp")):
                self.sr = set().union(*R) if R else set()
            else:
                self.sw = R[0] if R else set(); self.sr = set().union(*R[1:]) if len(R) > 1 else set()
                if "saveexec" in mn: self.sw |= {("x", "exec")}
        else:
            raise ValueError("unknown instr: " + text)
def need(p, c):
    n = 0
    if p.cls == "valu":
        if c.cls == "mfma" and (p.vw & c.vr): n = max(n, 2)
        if p.sw:
            if c.cls == "valu" and (p.sw & c.sr): n = max(n, 4 if c.mn.startswith(("v_readlane", "v_writelane")) else 2)
            if c.cls == "vmem" and (p.sw & c.sr): n = max(n, 5)
            if c.cls == "salu" and (p.sw & c.sr): n = max(n, 2)
            if c.cls == "mfma" and ("x", "exec") in p.sw: n = max(n, 4)
        if c.cls == "valu" and (p.vw & c.vr):
            if c.mn.startswith(("v_readfirstlane", "v_readlane")): n = max(n, 1)
            if c.mn.startswith("v_permlane") or "dpp" in c.text or "row_" in c.text or "quad_perm" in c.text: n = max(n, 2)
        if p.mn.startswith("v_dot") and (p.vw & (c.vr | c.vw)):
            same_acc = c.mn == p.mn and not (p.vw & c.abset)
            if not same_acc: n = max(n, 3)
        if p.trans and (p.vw & c.vr) and not (c.cls == "valu" and c.trans): n = max(n, 1)
    if p.cls == "mfma":
        big = p.passes == 8
        if c.cls == "mfma":
            if p.vw & c.abset: n = max(n, 12 if big else 8)
            if p.vw & c.cset:
                if not (c.cset == p.vw and c.passes == p.passes): n = max(n, 10 if big else 6)
            if (p.vw & c.vw) and not (c.cset == p.vw and c.vw == p.vw): n = max(n, 10 if big else 6)
        elif c.cls in ("valu", "ds", "vmem"):
            if p.vw & (c.vr | c.vw): n = max(n, 12 if big else 8)
            if c.cls == "valu" and (p.cset & c.vw): n = max(n, 7 if big else 3)
    if p.cls == "salu" and ("x", "m0") in p.sw and c.lds_dma: n = max(n, 1)
    if p.cls == "vmem" and p.wide_store:
        if c.cls == "valu" and (p.cset & c.vw): n = max(n, 2)
        elif c.cls in ("ds", "vmem", "mfma") and (p.cset & c.vw): n = max(n, 1)
    return n
def worst(p):
    if p.cls == "mfma": return 12 if p.passes == 8 else 8
    if p.cls == "valu": return 5 if p.sw else (3 if p.mn.startswith("v_dot") else 2)
    if p.cls == "salu" and ("x", "m0") in p.sw: return 1
    if p.cls == "vmem" and p.wide_store: return 2
    return 0
def hazard_pass(lines):
    out = []
    nins = 0
    for text in lines:
        t = text.strip()
        if not t or t.startswith(";"):
            out.append(Ins2(text)); continue
        c = Ins(t)
        req = 0
        dist = 0
        flush = (c.islabel or c.isbranch) and not c.soft
        if c.cls != "none" or flush:
            for p in reversed(out):
                if p is None or not isinstance(p, Ins): continue
                if p.cls == "none":
                    continue
                r = (worst(p) if flush else need(p, c)) - dist
                if r > req: req = r
                if not (p.skip and not c.skip): dist += p.nstates
                if dist >= 13: break
        while req > 0:
            k = min(req, 16)
            out.append(Ins(f"s_nop {k-1}" + (" ; @skip" if c.skip else ""))); nins += 1; req -= k
        out.append(c)
    return [(p.text if (isinstance(p, Ins) and p.islabel) or not isinstance(p, Ins) else "    " + p.text) for p in out], nins
class Ins2:
    def __init__(self, text): self.text = text
class E:
    def __init__(self):
        self.L = []; self.nl = 0; self.skipping = False
        self.vm_n = 0; self.vm_kinds = []; self.vm_done = 0
        self.ld_n = 0; self.ld_done = 0
    def __call__(self, s):
        for l in s.split("\n"):
            l = l.strip()
            if l: self.L.append(l + (" ; @skip" if self.skipping else ""))
    def skip_begin(self, cond):
        l = self.newlabel("Lsk")
        self(cond); self.L.append(f"s_cbranch_scc1 {l} ; @soft"); self.skipping = True
        return l
    def skip_end(self, l):
        self.skipping = False; self.L.append(f"{l}: ; @soft")
    def c(self, s): self.L.append("; " + s)
    def label(self, n): self.L.append(n + ":")
    def newlabel(self, p="L"):
        self.nl += 1; return f"{p}{self.nl}"
    def vm(self, text, kind="load"):
        self(text); self.vm_kinds.append(kind); self.vm_n += 1; return self.vm_n - 1
    def wait_vm(self, tok, count_stores=False):
        if isinstance(tok, (list, tuple)): tok = max(tok)
        if tok < self.vm_done: return
        n = sum(1 for k in self.vm_kinds[tok + 1:] if k == "load" or (count_stores and k == "store!"))
        n = min(n, 63)
        self(f"s_waitcnt vmcnt({n})")
        self.vm_done = max(self.vm_done, tok + 1)
        if n == 0: self.vm_done = self.vm_n
    def wait_vm_all(self):
        self("s_waitcnt vmcnt(0)"); self.vm_done = self.vm_n
    def lds(self, text):
        self(text); self.ld_n += 1; return self.ld_n - 1
    def wait_lds(self, tok):
        if isinstance(tok, (list, tuple)): tok = max(tok)
        if tok < self.ld_done: return
        n = min(self.ld_n - tok - 1, 15)
        self(f"s_waitcnt lgkmcnt({n})")
        self.ld_done = max(self.ld_done, self.ld_n - n)
    def wait_lds_all(self):
        self("s_waitcnt lgkmcnt(0)"); self.ld_done = self.ld_n
    def text(self):
        lines, n = hazard_pass(self.L)
        self.nops_inserted = n
        return "\n".join(lines) + "\n"
```

```python
import sys, os, struct
sys.path.insert(0, os.path.dirname(os.path.abspath(__file__)))
from emit import E
from asmlib import KN, kernel_file
def X(n, d=None):
    v = os.environ.get(n)
    return v if v is not None else d
WS_EPOCH = 0x0
WS_PUB, WS_FB1, WS_FB2, WS_FB3 = 0x1000, 0x2000, 0x3000, 0x4000
WS_FA1 = 0x5000
WS_FA2 = 0x6000
WS_TS = 0x20000
WS_HSH, WS_X1, WS_PQ, WS_ST2, WS_KVT, WS_KVP, WS_H2 = 0x100000, 0x300000, 0x500000, 0x700000, 0x780000, 0x800000, 0x1000000
WS_SIZE = 0x10000000
XM = 4352
def SL(k): return 69632 + 16384 * k
PA = 151552
PA_GW, PA_G, PA_ST, PA_CS3 = PA, PA + 1024, PA + 1536, PA + 5632
LDS_BYTES = 163840
P4B = 36864
S_AX, S_WQKV, S_WO, S_DS, S_W1, S_W2, S_W3, S_W4, S_OUT, S_WS, S_GW = 4, 8, 12, 16, 20, 24, 28, 32, 36, 40, 44
sW, sTB, sFB, sU, sV, sTAG, sPURE, sXCC = 48, 49, 50, 51, 52, 53, 54, 55
sT0, sT1, sT2, sT3, sT4, sT5 = 56, 57, 58, 59, 60, 61
sSAVE = 62
sQA, sQW, sQSTEP, sJ = 64, 65, 66, 67
sB0, sB1, sB2, sB3 = 68, 69, 70, 71
sC_LOG2E, sC_G1, sC_EPS6 = 72, 74, 76
sONES = 78
sB4, sB5, sB6, sB7 = 80, 81, 82, 83
sI, sC, sSPIN, sDELTA, sHEAD = 90, 91, 93, 94, 95
S_W3F = S_W3
S_W3T = 44
SIZES = {S_WQKV: 512*3072, S_W1: 524288, S_W2: 524288, S_W3: 512*3584, S_WO: 524288, S_W4: 1792*1024}
vLANE, vT, vHH, vL16, vL128 = 1, 2, 3, 4, 5
vAN, vAP = 6, 8
vW1K, vW3, vWAB, vXO, vXE = 10, 14, 18, 22, 26
vJUNK = 27
vG0C = 28
vRES = 30
vA = 38
vT0 = 54
vPUB = 63
vTCH = 50
vTS = 0
PROFILE = not X("NOPROF")
STAMPS = []
def srd(n): return f"s[{n}:{n+3}]"
def vr(a, n=1): return f"v{a}" if n == 1 else f"v[{a}:{a+n-1}]"
def ar(a, n=1): return f"a{a}" if n == 1 else f"a[{a}:{a+n-1}]"
def f2u(x): return struct.unpack("<I", struct.pack("<f", x))[0]

class Ref:
    def __init__(self): self.tok = None
class VQ:
    def __init__(self, e): self.e = e; self.q = []
    def push(self, fn):
        r = Ref(); self.q.append((fn, r)); return r
    def pop(self, n=1):
        for _ in range(n):
            if not self.q: return
            fn, r = self.q.pop(0); r.tok = fn()
    def force(self, r):
        while r.tok is None: self.pop(1)
    def wait(self, r):
        if isinstance(r, (list, tuple)): r = r[-1]
        self.force(r); self.e.wait_vm(r.tok)
    def drain(self): self.pop(len(self.q))
    def take(self, n=None):
        n = len(self.q) if n is None else min(n, len(self.q))
        items, self.q = self.q[:n], self.q[n:]
        return Stag(self.e, items)
class Stag:
    def __init__(self, e, items): self.e = e; self.items = items; self.n0 = None
    def point(self, k):
        e = self.e
        if not self.items: return
        if k == 0: self.n0 = e.vm_n
        else:
            assert e.vm_n == self.n1, "VMEM issued inside a stagger region"
            del e.vm_kinds[self.n0:]; e.vm_n = self.n0
        l = e.skip_begin(f"s_cmp_lg_u32 s{sW}, {k}")
        for fn, r in self.items: r.tok = fn()
        e.skip_end(l)
        self.n1 = e.vm_n

def stamp(e, name):
    if not PROFILE: return
    idx = len(STAMPS); STAMPS.append(str(name)); assert idx < 62
    e(f"s_memtime s[96:97]\ns_waitcnt lgkmcnt(0)\ns_sub_u32 s96, s96, s98\nv_writelane_b32 v{vTS}, s96, {idx}")
    e.ld_done = e.ld_n
def stamp_flush(e):
    if not PROFILE: return
    e(f"s_memrealtime s[96:97]\ns_waitcnt lgkmcnt(0)\nv_writelane_b32 v{vTS}, s96, 63\nv_writelane_b32 v{vTS}, s100, 62")
    e(f"s_lshl_b32 s{sT0}, s2, 2\ns_add_u32 s{sT0}, s{sT0}, s{sW}\ns_lshl_b32 s{sT0}, s{sT0}, 8\ns_add_u32 s{sT0}, s{sT0}, {WS_TS}")
    e(f"v_lshlrev_b32 v{vT0}, 2, v{vLANE}")
    e.vm(f"buffer_store_dword v{vTS}, v{vT0}, {srd(S_WS)}, s{sT0} offen", "store")

def push_dma_group(q, voff, srdn, setup, n=4):
    e = q.e; refs = []
    for j in range(n):
        def fn(j=j):
            if j == 0: e(setup)
            off = f" offset:{1024*j}" if j else ""
            return e.vm(f"buffer_load_dwordx4 v{voff+j}, {srd(srdn)}, s{sQA} offen{off} lds")
        refs.append(q.push(fn))
    return refs
def push_touch(q, srdn, share, k0, n):
    e = q.e
    for k in range(n):
        def fn(k=k):
            e(f"s_mul_i32 s{sQA}, s{sJ}, {share}\ns_lshl_b32 s{sT5}, s{sW}, 13\ns_add_u32 s{sQA}, s{sQA}, s{sT5}")
            if k0 + k: e(f"s_add_u32 s{sQA}, s{sQA}, {(k0+k)*32768}")
            return e.vm(f"buffer_load_dword v{vJUNK}, v{vL128}, {srd(srdn)}, s{sQA} offen")
        q.push(fn)

def touch_blk(e, srdn, blk0):
    e(f"s_lshl_b32 s{sQA}, s{sJ}, 2\ns_add_u32 s{sQA}, s{sQA}, s{sW}" + (f"\ns_add_u32 s{sQA}, s{sQA}, {blk0}" if blk0 else "") + f"\ns_lshl_b32 s{sQA}, s{sQA}, 13")
    return e.vm(f"buffer_load_dword v{vJUNK}, v{vL128}, {srd(srdn)}, s{sQA} offen")
def touch16(e, srdn, k):
    if X("T16", "0") == "0": return None
    e(f"s_lshl_b32 s{sQA}, s{sJ}, 2\ns_add_u32 s{sQA}, s{sQA}, s{sW}\ns_lshl_b32 s{sQA}, s{sQA}, 11" + (f"\ns_add_u32 s{sQA}, s{sQA}, {k*262144}" if k else ""))
    e("s_mov_b64 exec, 0xffff")
    tk = e.vm(f"buffer_load_dword v{vJUNK}, v{vL128}, {srd(srdn)}, s{sQA} offen")
    e("s_mov_b64 exec, -1")
    return tk
def touch_chunk(e, c):
    e(f"s_lshl_b32 s{sQA}, s{sJ}, 2\ns_add_u32 s{sQA}, s{sQA}, s{sW}\ns_cmp_lt_u32 s{sQA}, 96")
    e(f"s_cselect_b32 s84, s{S_WQKV}, s{S_W1}\ns_cselect_b32 s85, s{S_WQKV+1}, s{S_W1+1}\ns_cselect_b32 s86, s{S_WQKV+2}, s{S_W1+2}\ns_mov_b32 s87, 0x20000")
    e(f"s_mov_b32 s{sT5}, {c*32768 - 96*1024}\ns_cselect_b32 s{sT5}, {c*98304}, s{sT5}\ns_lshl_b32 s{sQA}, s{sQA}, 10\ns_add_u32 s{sQA}, s{sQA}, s{sT5}")
    e("s_mov_b64 exec, 0xff")
    tk = e.vm(f"buffer_load_dword v{vJUNK}, v{vL128}, s[84:87], s{sQA} offen")
    e("s_mov_b64 exec, -1")
    return tk
def set_exec(n):
    if n <= 32: return f"s_mov_b64 exec, {hex((1 << n) - 1)}" if n < 32 else "s_mov_b32 exec_lo, -1\ns_mov_b32 exec_hi, 0"
    return f"s_mov_b32 exec_hi, {hex((1 << (n - 32)) - 1)}"
def touch_chunks(e, c0, nch):
    e(f"s_lshl_b32 s{sQA}, s{sJ}, 2\ns_add_u32 s{sQA}, s{sQA}, s{sW}\ns_cmp_lt_u32 s{sQA}, 96")
    e(f"s_cselect_b32 s84, s{S_WQKV}, s{S_W1}\ns_cselect_b32 s85, s{S_WQKV+1}, s{S_W1+1}\ns_cselect_b32 s86, s{S_WQKV+2}, s{S_W1+2}\ns_mov_b32 s87, 0x20000")
    e(f"s_mov_b32 s{sT5}, 32768\ns_cselect_b32 s{sT5}, 98304, s{sT5}")
    e(f"v_lshrrev_b32 v{vTCH}, 3, v{vLANE}\nv_mul_lo_u32 v{vTCH}, v{vTCH}, s{sT5}\nv_and_b32 v{vTCH+1}, 7, v{vLANE}\nv_lshlrev_b32 v{vTCH+1}, 7, v{vTCH+1}\nv_add_u32 v{vTCH}, v{vTCH}, v{vTCH+1}")
    e(f"s_mul_i32 s{sT5}, s{sT5}, {c0}\ns_cmp_lt_u32 s{sQA}, 96\ns_cselect_b32 s83, 0, 96\ns_sub_u32 s{sQA}, s{sQA}, s83\ns_lshl_b32 s{sQA}, s{sQA}, 10\ns_add_u32 s{sQA}, s{sQA}, s{sT5}")
    if nch < 8: e(set_exec(8*nch))
    tk = e.vm(f"buffer_load_dword v{vJUNK}, v{vTCH}, s[84:87], s{sQA} offen")
    if nch < 8: e("s_mov_b64 exec, -1")
    return tk
def touch_all(e, segs, lanes):
    blk = lanes * 128
    e(f"s_lshl_b32 s{sQA}, s2, 2\ns_add_u32 s{sQA}, s{sQA}, s{sW}")
    sr0 = segs[0][0]
    e(f"s_mov_b32 s84, s{sr0}\ns_mov_b32 s85, s{sr0+1}\ns_mov_b32 s86, {segs[0][1]}\ns_mov_b32 s87, 0x20000\ns_mov_b32 s{sT5}, 0")
    lo = 0
    for k in range(1, len(segs)):
        assert segs[k-1][1] % blk == 0
        lo += segs[k-1][1] // blk
        sr = segs[k][0]
        e(f"s_cmp_ge_u32 s{sQA}, {lo}\ns_cselect_b32 s84, s{sr}, s84\ns_cselect_b32 s85, s{sr+1}, s85\ns_cselect_b32 s86, {segs[k][1]}, s86\ns_cselect_b32 s{sT5}, {lo}, s{sT5}")
    assert lo + -(-segs[-1][1] // blk) <= 1024, lo
    e(f"s_sub_u32 s{sQA}, s{sQA}, s{sT5}\ns_mul_i32 s{sQA}, s{sQA}, {blk}")
    if lanes < 64: e(set_exec(lanes))
    tk = e.vm(f"buffer_load_dword v{vJUNK}, v{vL128}, s[84:87], s{sQA} offen")
    if lanes < 64: e("s_mov_b64 exec, -1")
    return tk
def touch_code(e, label):
    if X("CODETOUCH", "1") == "0": return None
    e(f"s_lshl_b32 s{sT5}, s{sW}, 13\ns_add_u32 s{sT5}, s{sT5}, {label}-L_pc\ns_min_u32 s{sT5}, s{sT5}, L_codeend-L_pc-8192")
    e(f"s_add_u32 s84, s88, s{sT5}\ns_addc_u32 s85, s89, 0")
    return e.vm(f"global_load_dword v{vJUNK}, v{vL128}, s[84:85]")
def touch_dst(e, setup_fn, nlanes):
    if X("DSTTOUCH", "1") == "0": return None
    reg = setup_fn()
    if nlanes < 64: e(f"s_mov_b64 exec, {hex((1 << nlanes) - 1)}")
    tk = e.vm(f"buffer_load_dword v{vJUNK}, v{vL128}, {srd(S_WS)}, s{reg} offen")
    if nlanes < 64: e("s_mov_b64 exec, -1")
    return tk
def touch_round0(e):
    e(f"s_lshl_b32 s{sQA}, s{sJ}, 2\ns_add_u32 s{sQA}, s{sQA}, s{sW}\ns_cmp_lt_u32 s{sQA}, 64")
    for k in range(4): e(f"s_cselect_b32 s{S_DS+k}, s{S_WO+k}, s{S_W4+k}")
    e(f"s_cselect_b32 s{sT5}, 0, 64\ns_sub_u32 s{sQA}, s{sQA}, s{sT5}\ns_lshl_b32 s{sQA}, s{sQA}, 13")
    return e.vm(f"buffer_load_dword v{vJUNK}, v{vL128}, {srd(S_DS)}, s{sQA} offen")
def set_voffW(e, dst, ld):
    t = vT0
    e(f"v_lshrrev_b32 v{t}, 3, v{vLANE}\nv_mul_u32_u24 v{t}, {ld}, v{t}")
    e(f"v_lshrrev_b32 v{t+1}, 2, v{vLANE}\nv_lshrrev_b32 v{t+2}, 4, v{vLANE}\nv_xor_b32 v{t+1}, v{t+1}, v{t+2}\nv_and_b32 v{t+1}, 1, v{t+1}")
    e(f"v_lshlrev_b32 v{t+1}, 6, v{t+1}\nv_and_b32 v{t+2}, 3, v{vLANE}\nv_lshlrev_b32 v{t+2}, 4, v{t+2}")
    e(f"v_add3_u32 v{dst}, v{t}, v{t+1}, v{t+2}")
    for j in range(1, 4): e(f"v_add_u32 v{dst+j}, {j*(8*ld-1024)}, v{dst}")

def flag_store(e, soff, sc):
    e(f"v_mov_b32 v{vT0}, s{sTAG}\nv_mov_b32 v{vT0+1}, 0")
    e(f"v_cmp_eq_u32 vcc, 0, v{vLANE}\ns_and_saveexec_b64 s[{sSAVE}:{sSAVE+1}], vcc")
    e(f"buffer_store_dword v{vT0}, v{vT0+1}, {srd(S_WS)}, s{soff} offen {sc}")
    e(f"s_mov_b64 exec, s[{sSAVE}:{sSAVE+1}]")
def publish(e, setup, always_slow=False, upto=None):
    if upto is None: e.wait_vm_all()
    else: e.wait_vm(upto)
    e("s_barrier")
    l = e.newlabel("Lpub")
    e(f"s_cmp_lg_u32 s{sW}, 0\ns_cbranch_scc1 {l}")
    e(setup)
    if always_slow: flag_store(e, sT2, "sc1")
    else:
        l2 = e.newlabel("Lpub"); l3 = e.newlabel("Lpub")
        e(f"s_cmp_eq_u32 s{sPURE}, 0\ns_cbranch_scc1 {l2}")
        flag_store(e, sT2, "")
        e(f"s_branch {l3}")
        e.label(l2)
        flag_store(e, sT2, "sc1")
        e.label(l3)
    e.label(l)
    e.vm_kinds.append("store"); e.vm_n += 1
def poll(e, setup, nflags):
    l = e.newlabel("Lpoll"); lx = e.newlabel("Lpollx"); ls = e.newlabel("Lpolls")
    e(f"s_cmp_lg_u32 s{sW}, 0\ns_cbranch_scc1 {ls}")
    e(setup)
    e(f"v_lshlrev_b32 v{vT0+1}, 2, v{vLANE}")
    e(f"v_cmp_gt_u32 vcc, {nflags}, v{vLANE}\ns_and_saveexec_b64 s[{sSAVE}:{sSAVE+1}], vcc")
    e(f"s_mov_b32 s{sSPIN}, 0x40000")
    e.label(l)
    e(f"s_sub_u32 s{sSPIN}, s{sSPIN}, 1\ns_cmp_eq_u32 s{sSPIN}, 0\ns_cbranch_scc1 {lx}")
    e(f"buffer_load_dword v{vT0}, v{vT0+1}, {srd(S_WS)}, s{sT2} offen sc1")
    e("s_waitcnt vmcnt(0)")
    e(f"v_cmp_ne_u32 vcc, s{sTAG}, v{vT0}")
    e(f"s_cbranch_vccnz {l}")
    e.label(lx)
    e(f"s_mov_b64 exec, s[{sSAVE}:{sSAVE+1}]")
    e.label(ls)
    e("s_barrier")
def wt(name): return name in X("WT", "pq,h2").split(",")
def stores2(e, fn, name=None):
    if name and wt(name):
        fn("sc1"); return e.vm_n - 1
    l2 = e.newlabel("Lst"); l3 = e.newlabel("Lst")
    e(f"s_cmp_eq_u32 s{sPURE}, 0\ns_cbranch_scc1 {l2}")
    n0 = e.vm_n; fn(""); n1 = e.vm_n
    e(f"s_branch {l3}")
    e.label(l2)
    del e.vm_kinds[n0:]; e.vm_n = n0
    fn("sc1"); assert e.vm_n == n1
    e.label(l3)
    return n1 - 1
def tr_frag(e, dst, addr, off, second, acc=False):
    r = ar if acc else vr
    e.lds(f"ds_read_b64_tr_b16 {r(dst,2)}, v{addr} offset:{off}")
    return e.lds(f"ds_read_b64_tr_b16 {r(dst+2,2)}, v{addr} offset:{off+second}")
def mfma(e, d, a, b, c=None, aa=False, ba=False):
    A = ar(a, 4) if aa else vr(a, 4); B = ar(b, 4) if ba else vr(b, 4)
    C = vr(d, 16) if c is None else c
    e(f"v_mfma_f32_32x32x16_bf16 {vr(d,16)}, {A}, {B}, {C}")
def interleave(mains, fillers):
    n = len(mains); m = len(fillers); k = 0
    for i, f in enumerate(mains):
        f()
        upto = (m * (i + 1) + n - 1) // n if i + 1 < n else m
        while k < upto: fillers[k](); k += 1
def gelu_pairs(e, accs, rstd, tmp, outs, q=None, npop=0):
    n = len(accs); P = lambda r: vr(r, 2)
    steps = [
        lambda k: f"v_pk_mul_f32 {P(accs[k])}, {P(accs[k])}, {P(rstd)} op_sel_hi:[1,0]",
        lambda k: f"v_pk_mul_f32 {P(tmp[k])}, {P(accs[k])}, {P(accs[k])}",
        lambda k: f"v_pk_fma_f32 {P(tmp[k])}, {P(tmp[k])}, s[{sC_G1}:{sC_G1+1}], {P(vG0C)}",
        lambda k: f"v_pk_mul_f32 {P(tmp[k])}, {P(tmp[k])}, {P(accs[k])}",
        lambda k: f"v_exp_f32 v{tmp[k]}, v{tmp[k]}\nv_exp_f32 v{tmp[k]+1}, v{tmp[k]+1}",
        lambda k: f"v_pk_add_f32 {P(tmp[k])}, {P(tmp[k])}, 1.0 op_sel_hi:[1,0]",
        lambda k: f"v_rcp_f32 v{tmp[k]}, v{tmp[k]}\nv_rcp_f32 v{tmp[k]+1}, v{tmp[k]+1}",
        lambda k: f"v_pk_mul_f32 {P(accs[k])}, {P(accs[k])}, {P(tmp[k])}",
        lambda k: f"v_cvt_pk_bf16_f32 v{outs[k]}, v{accs[k]}, v{accs[k]+1}"]
    left = npop
    for si, st in enumerate(steps):
        for k in range(n): e(st(k))
        if q is not None and left > 0:
            m = -(-left // (len(steps) - si)); q.pop(m); left -= m
def halfsum(e, r, t):
    e(f"v_mov_b32 v{t}, v{r}\nv_permlane32_swap_b32 v{r}, v{t}\nv_add_f32 v{r}, v{r}, v{t}")
def corr_frags(e, cs, negmean, A, B, t):
    if cs is not None:
        e(f"v_cvt_pk_bf16_f32 v{t}, v{cs}, v{cs}\nv_and_b32 v{t}, 0xffff0000, v{t}\nv_sub_f32 v{t}, v{cs}, v{t}")
        e(f"v_cvt_pk_bf16_f32 v{A}, v{cs}, v{t}\nv_mov_b32 v{A+1}, v{A}\nv_mov_b32 v{A+2}, 0\nv_mov_b32 v{A+3}, 0")
    if negmean is not None:
        e(f"v_cvt_pk_bf16_f32 v{B}, v{negmean}, v{negmean}\nv_and_b32 v{t}, 0xffff0000, v{B}\nv_sub_f32 v{t}, v{negmean}, v{t}")
        e(f"v_cvt_pk_bf16_f32 v{B+1}, v{t}, v{t}\nv_mov_b32 v{B+2}, 0\nv_mov_b32 v{B+3}, 0")
def ln_stats(e, S, Q, negmean, rstd, t):
    e(f"v_mul_f32 v{negmean}, 0xbb000000, v{S}\nv_mul_f32 v{t}, 0x3b000000, v{Q}")
    e(f"v_fma_f32 v{t}, -v{negmean}, v{negmean}, v{t}\nv_max_f32 v{t}, 0, v{t}\nv_add_f32 v{t}, 0x3727c5ac, v{t}\nv_rsq_f32 v{rstd}, v{t}")
def frag_soff(e, dst, base, nks, ks_lines, blk=None):
    blk = sI if blk is None else blk
    e(ks_lines)
    e(f"s_lshl_b32 s{sT2}, s{sTB}, 1\ns_add_u32 s{sT2}, s{sT2}, s{blk}\ns_mul_i32 s{sT2}, s{sT2}, {nks}\ns_add_u32 s{sT2}, s{sT2}, s{sT3}")
    e(f"s_lshl_b32 s{sT2}, s{sT2}, 10\ns_add_u32 s{dst}, s{sT2}, {base}")
def own_soff_q(e, base, nks):
    e(f"s_lshl_b32 s{sQA}, s{sTB}, 1\ns_add_u32 s{sQA}, s{sQA}, s{sI}\ns_mul_i32 s{sQA}, s{sQA}, {nks}\ns_lshl_b32 s{sT5}, s{sFB}, 2\ns_add_u32 s{sQA}, s{sQA}, s{sT5}")
    e(f"s_lshl_b32 s{sT5}, s{sC}, 1\ns_add_u32 s{sQA}, s{sQA}, s{sT5}\ns_lshl_b32 s{sQA}, s{sQA}, 10\ns_add_u32 s{sQA}, s{sQA}, {base}")
    return sQA
OWNKS = f"s_lshl_b32 s{sT3}, s{sFB}, 2\ns_lshl_b32 s{sT4}, s{sC}, 1\ns_add_u32 s{sT3}, s{sT3}, s{sT4}"
teamflag = lambda base: f"s_lshl_b32 s{sT2}, s{sU}, 7\ns_lshl_b32 s{sT3}, s{sV}, 2\ns_add_u32 s{sT2}, s{sT2}, s{sT3}\ns_add_u32 s{sT2}, s{sT2}, {base}"

def prologue(e, q):
    e(f"s_cmp_ge_u32 s2, 256\ns_cbranch_scc1 L_end")
    if PROFILE: e("s_memrealtime s[100:101]\ns_memtime s[98:99]")
    e(f"s_getpc_b64 s[{sT0}:{sT0+1}]")
    e.label("L_pc")
    e(f"s_mov_b32 s88, s{sT0}\ns_mov_b32 s89, s{sT1}")
    e("s_load_dwordx16 s[64:79], s[0:1], 0\ns_load_dwordx8 s[80:87], s[0:1], 64")
    for k in range(2):
        e(f"v_lshlrev_b32 v30, 7, v0" + (f"\nv_add_u32 v30, {0x8000*k}, v30" if k else "") + f"\nv_min_u32 v30, L_codeend-L_pc-4, v30\nv_mov_b32 v31, s{sT1}")
        e(f"v_add_co_u32 v30, vcc, s{sT0}, v30\nv_addc_co_u32 v31, vcc, 0, v31, vcc")
        e.vm(f"global_load_dword v{vJUNK}, v[30:31], off")
    e(f"v_and_b32 v{vLANE}, 63, v0\nv_lshrrev_b32 v{vT0}, 6, v0\nv_readfirstlane_b32 s{sW}, v{vT0}")
    e(f"v_and_b32 v{vT}, 31, v{vLANE}\nv_lshrrev_b32 v{vHH}, 5, v{vLANE}\nv_lshlrev_b32 v{vL16}, 4, v{vLANE}\nv_lshlrev_b32 v{vL128}, 7, v{vLANE}")
    e(f"s_and_b32 s{sT2}, s2, 7\ns_lshr_b32 s{sT3}, s2, 3")
    e(f"s_lshr_b32 s{sT4}, s{sT3}, 3\ns_lshl_b32 s{sTB}, s{sT2}, 2\ns_add_u32 s{sTB}, s{sTB}, s{sT4}")
    e(f"s_and_b32 s{sFB}, s{sT3}, 7\ns_lshr_b32 s{sU}, s{sTB}, 1\ns_and_b32 s{sV}, s{sT3}, 15")
    e(f"s_lshr_b32 s{sI}, s{sW}, 1\ns_and_b32 s{sC}, s{sW}, 1\ns_mov_b32 s92, s{sT3}")
    e(f"s_getreg_b32 s{sXCC}, hwreg(HW_REG_XCC_ID, 0, 4)")
    e(f"s_lshr_b32 s{sT2}, s{sFB}, 1\ns_lshr_b32 s{sT3}, s{sT2}, 1\ns_add_u32 s{sT3}, s{sT3}, 1")
    e(f"s_sub_u32 s{sT4}, 0, s{sT3}\ns_bitcmp1_b32 s{sT2}, 0\ns_cselect_b32 s{sDELTA}, s{sT4}, s{sT3}")
    t = vT0
    e(f"s_lshl_b32 s{sT4}, s{sTB}, 6\ns_sub_u32 s{sT4}, s{sT4}, 2")
    e(f"v_and_b32 v{t}, 3, v{vLANE}\nv_lshrrev_b32 v{t+1}, 4, v{vLANE}\nv_xor_b32 v{t}, v{t}, v{t+1}\nv_and_b32 v{t}, 3, v{t}\nv_lshlrev_b32 v{t}, 4, v{t}")
    e(f"v_lshrrev_b32 v{t+1}, 2, v{vLANE}\nv_add_u32 v{t+1}, s{sT4}, v{t+1}")
    for j in range(5):
        e(f"v_add_u32 v{t+2}, {16*j}, v{t+1}\nv_max_i32 v{t+2}, 0, v{t+2}\nv_min_i32 v{t+2}, 2047, v{t+2}")
        e(f"v_lshlrev_b32 v{t+2}, 10, v{t+2}\nv_add_u32 v{t+2}, v{t+2}, v{t}")
        if j == 0: e(f"v_mov_b32 v{vXO}, v{t+2}")
        elif j < 4: e(f"v_subrev_u32 v{vXO+j}, {1024*j}, v{t+2}")
        else: e(f"v_mov_b32 v{vXE}, v{t+2}")
    set_voffW(e, vW1K, 1024)
    set_voffW(e, vWAB, 3072)
    e(f"s_cmp_eq_u32 s{sW}, 3\ns_cselect_b64 vcc, -1, 0")
    for j in range(4): e(f"v_cndmask_b32 v{vWAB+j}, v{vWAB+j}, v{vW1K+j}, vcc")
    e("s_waitcnt lgkmcnt(0)")
    for dst, src, size in [(S_AX, 64, 2097152), (S_WQKV, 66, 512*3072), (S_W1, 72, 524288), (S_WS, 86, WS_SIZE), (S_GW, 80, 1024), (S_W2, 74, 524288),
                           (S_WO, 68, 524288), (S_W3, 76, 512*3584), (S_W4, 78, 1792*1024), (S_OUT, 82, 2097152)]:
        e(f"s_mov_b32 s{dst}, s{src}\ns_mov_b32 s{dst+1}, s{src+1}\ns_mov_b32 s{dst+2}, {size}\ns_mov_b32 s{dst+3}, 0x20000")
    if PROFILE: e(f"v_mov_b32 v{vTS}, 0")
    stamp(e, "karg")
    e(f"s_load_dword s{sTAG}, s[{S_WS}:{S_WS+1}], 0")
    e(f"s_mov_b32 s{sJ}, s92")
    e(f"s_cmp_eq_u32 s{sW}, 3")
    for k in range(4): e(f"s_cselect_b32 s{S_DS+k}, s{S_W1+k}, s{S_WQKV+k}")
    e(f"s_lshl_b32 s{sT2}, s{sW}, 10\ns_cmp_eq_u32 s{sW}, 3\ns_cselect_b32 s{sT2}, 0, s{sT2}\ns_mov_b32 s{sQSTEP}, {32*3072}\ns_cselect_b32 s{sQSTEP}, {32*1024}, s{sQSTEP}")
    e(f"s_lshl_b32 s{sT3}, s{sFB}, 7\ns_add_u32 s{sQW}, s{sT2}, s{sT3}")
    e(f"s_lshl_b32 s{sB0}, s{sW}, 12")
    e(f"s_mul_i32 s{sB1}, s{sW}, {XM}\ns_lshl_b32 s{sB2}, s{sW}, 6")

def push_x(q, qq):
    e = q.e
    refs = push_dma_group(q, vXO, S_AX, f"s_add_u32 m0, s{sB1}, {qq*4*XM}\ns_add_u32 s{sQA}, s{sB2}, {256*qq}")
    def fn():
        e(f"s_add_u32 m0, s{sB1}, {qq*4*XM + 4096}")
        e(f"s_mov_b64 exec, 0xffff")
        tk = e.vm(f"buffer_load_dwordx4 v{vXE}, {srd(S_AX)}, s{sQA} offen lds")
        e(f"s_mov_b64 exec, -1")
        return tk
    refs.append(q.push(fn))
    return refs
def push_wab(q, c):
    return push_dma_group(q, vWAB, S_DS, f"s_add_u32 m0, s{sB0}, {SL(c % 5)}\ns_mov_b32 s{sQA}, s{sQW}\ns_add_u32 s{sQW}, s{sQW}, s{sQSTEP}")
def push_w2(q, k):
    return push_dma_group(q, vW1K, S_W2, f"s_add_u32 m0, s{sB0}, {SL(1+k)}\ns_lshl_b32 s{sQA}, s{sW}, 15\ns_lshl_b32 s{sT5}, s{sFB}, 7\ns_add_u32 s{sQA}, s{sQA}, s{sT5}\ns_add_u32 s{sQA}, s{sQA}, {k*128*1024}")
def w3_lds(g): return g * 8192 if g < 8 else SL(0) + (g - 8) * 8192
def push_w3(q, gl, ps=(0, 1)):
    refs = []
    for p in ps:
        refs += push_dma_group(q, vW3, S_W3, f"s_lshl_b32 s{sQA}, s{sW}, 13\ns_add_u32 m0, s{sQA}, {w3_lds(4*gl) + p*4096}\n"
                               f"s_mul_i32 s{sQA}, s{sW}, {32*3584}\ns_lshl_b32 s{sT5}, s{sV}, 8\ns_add_u32 s{sQA}, s{sQA}, s{sT5}\ns_add_u32 s{sQA}, s{sQA}, {4*gl*32*3584 + 128*p}")
    return refs
def region_m0(reg, slot):
    if reg == "A": return f"s_lshl_b32 s{sQA}, s{sW}, 14\ns_add_u32 m0, s{sQA}, {slot*4096}"
    if reg == "B": return f"s_lshl_b32 s{sQA}, s{sW}, 14\ns_add_u32 m0, s{sQA}, {SL(0) + slot*4096}"
    return f"s_lshl_b32 s{sQA}, s{sW}, 12\ns_add_u32 m0, s{sQA}, {SL(4)}"
def push_wp(q, srdn, rows_per_wave, g, reg, slot):
    return push_dma_group(q, vW1K, srdn, region_m0(reg, slot) + "\n" +
                          f"s_mul_i32 s{sQA}, s{sW}, {rows_per_wave*1024}\ns_lshl_b32 s{sT5}, s{sFB}, 7\ns_add_u32 s{sQA}, s{sQA}, s{sT5}\ns_add_u32 s{sQA}, s{sQA}, {g*32*1024}")
W4LOC = {g: (("A", g) if g < 4 else ("C", 0)) for g in range(5)}
W4LOC.update({5 + g: (("A", g) if g < 4 else ("C", 0)) for g in range(5)})
W4LOC.update({10 + g: ("B", g) for g in range(4)})
def push_w4(q, g):
    reg, slot = W4LOC[g]
    return push_dma_group(q, vW1K, S_W4, region_m0(reg, slot) + "\n" +
                          f"s_lshl_b32 s{sQA}, s{sW}, 15\ns_lshl_b32 s{sT5}, s{sFB}, 7\ns_add_u32 s{sQA}, s{sQA}, s{sT5}\ns_add_u32 s{sQA}, s{sQA}, {g*128*1024}")
def push_wo(q, g): return push_wp(q, S_WO, 128, g, "B", g)
def set_region_addrs(e):
    sel_addrP(e, vA + 4)
    e(f"s_lshl_b32 s{sT2}, s{sW}, 14\nv_add_u32 v{vA}, s{sT2}, v{vA+4}\nv_add_u32 v{vA+1}, s{sT2}, v{vA+5}")
    e(f"v_add_u32 v{vA+2}, {SL(0)}, v{vA}\nv_add_u32 v{vA+3}, {SL(0)}, v{vA+1}")
    e(f"s_lshl_b32 s{sT2}, s{sW}, 12\ns_add_u32 s{sT2}, s{sT2}, {SL(4)}\nv_add_u32 v{vA+4}, s{sT2}, v{vA+4}\nv_add_u32 v{vA+5}, s{sT2}, v{vA+5}")
def region_addr(reg, slot, c):
    return vA + {"A": 0, "B": 2, "C": 4}[reg] + c, (slot*4096 if reg != "C" else 0)
W4A = 128
def w4_to_agpr_fns(e):
    fns = []
    for s in range(10):
        reg, slot = W4LOC[s >> 1]
        for c in range(2):
            a, off = region_addr(reg, slot, c); off += (s & 1)*2048; d = W4A + (2*s + c)*4
            fns.append(lambda a=a, off=off, d=d: e.lds(f"ds_read_b64_tr_b16 {ar(d,2)}, v{a} offset:{off}"))
            fns.append(lambda a=a, off=off, d=d: e.lds(f"ds_read_b64_tr_b16 {ar(d+2,2)}, v{a} offset:{off+1024}"))
    return fns

def common_addr(e):
    t = vT0
    e(f"v_and_b32 v{t}, 15, v{vLANE}\nv_lshrrev_b32 v{t}, 2, v{t}")
    e(f"v_and_b32 v{t+1}, 3, v{vLANE}\nv_lshlrev_b32 v{t+1}, 3, v{t+1}")
    e(f"v_lshrrev_b32 v{t+2}, 4, v{vLANE}\nv_and_b32 v{t+2}, 1, v{t+2}\nv_lshlrev_b32 v{t+2}, 5, v{t+2}")
    e(f"v_add_u32 v{t+1}, v{t+1}, v{t+2}\nv_lshrrev_b32 v{t+2}, 1, v{t}")
    e(f"v_lshlrev_b32 v{t+3}, 7, v{t}\nv_add_u32 v{t+1}, v{t+1}, v{t+3}")
    for c in range(2):
        e(f"v_xor_b32 v{t+3}, {c}, v{t+2}\nv_lshlrev_b32 v{t+3}, 6, v{t+3}\nv_add_u32 v{t+3}, v{t+3}, v{t+1}")
        e(f"v_lshlrev_b32 v{t+4}, 10, v{vHH}\nv_add_u32 v{vAN+c}, v{t+3}, v{t+4}")
        e(f"v_lshlrev_b32 v{t+4}, 9, v{vHH}\nv_add_u32 v{vAP+c}, v{t+3}, v{t+4}")
    set_voffW(e, vW3, 3584)

AQ, AK, AV, AH = 64, 80, 96, 112
def stage_ab1(e, q, xrefs, wrefs):
    t = vT0
    e(f"s_xor_b32 s{sT0}, s{sI}, s{sC}")
    for kind in range(2):
        e(f"s_lshl_b32 s{sT2}, s{sI}, 5\ns_add_u32 s{sT2}, s{sT2}, 2")
        if kind: e(f"s_sub_u32 s{sT2}, s{sT2}, s{sDELTA}")
        e(f"v_add_u32 v{t}, s{sT2}, v{vT}\nv_lshrrev_b32 v{t+1}, 2, v{t}\nv_and_b32 v{t+1}, 3, v{t+1}\nv_lshlrev_b32 v{t}, 6, v{t}")
        for sp in range(2):
            e(f"s_xor_b32 s{sT3}, s{sT0}, {sp}\ns_lshl_b32 s{sT3}, s{sT3}, 1")
            e(f"v_add_u32 v{t+2}, s{sT3}, v{vHH}\nv_xor_b32 v{t+2}, v{t+2}, v{t+1}\nv_lshlrev_b32 v{t+2}, 4, v{t+2}\nv_add_u32 v{vA+2*kind+sp}, v{t}, v{t+2}")
    e(f"s_cmp_eq_u32 s{sC}, 0\ns_cselect_b64 vcc, -1, 0\nv_cndmask_b32 v{t}, v{vAN+1}, v{vAN}, vcc")
    for sp in range(2):
        e(f"s_xor_b32 s{sT3}, s{sT0}, {sp}\ns_lshl_b32 s{sT3}, s{sT3}, 11")
        e(f"s_add_u32 s{sT4}, s{sT3}, {SL(0)}\nv_add_u32 v{vA+4+2*sp}, s{sT4}, v{t}\ns_add_u32 s{sT4}, s{sT3}, {SL(3)}\nv_add_u32 v{vA+5+2*sp}, s{sT4}, v{t}")
    e(f"s_lshl_b32 s{sT3}, s{sT0}, 5\ns_add_u32 s{sT3}, s{sT3}, {PA_GW}\nv_lshlrev_b32 v{vA+8}, 4, v{vHH}\nv_add_u32 v{vA+8}, s{sT3}, v{vA+8}")
    FS2 = [[128, 152], [176, 200]]
    GW2 = [224, 228]
    SUM, SQ, GA, CS = 232, 234, 236, 238
    for r in range(SUM, CS + 2): e(f"v_mov_b32 v{r}, 0")
    def read_fns(c):
        fns = []
        slot = c % 5; seg = 1 if slot >= 3 else 0; off = (slot - 3*seg) * 16384
        for sp in range(2):
            F = FS2[c & 1][sp]
            fns.append(lambda F=F, sp=sp: e.lds(f"ds_read_b128 {vr(F,4)}, v{vA+sp} offset:{c*XM}"))
            fns.append(lambda F=F, sp=sp: e.lds(f"ds_read_b128 {vr(F+4,4)}, v{vA+2+sp} offset:{c*XM}"))
            for m in range(4):
                a = vA + 4 + 2*sp + seg
                fns.append(lambda F=F, m=m, a=a: e.lds(f"ds_read_b64_tr_b16 {vr(F+8+4*m,2)}, v{a} offset:{off + m*4096}"))
                fns.append(lambda F=F, m=m, a=a: e.lds(f"ds_read_b64_tr_b16 {vr(F+10+4*m,2)}, v{a} offset:{off + m*4096 + 512}"))
            if sp == 0: fns.append(lambda: e.lds(f"ds_read_b128 {vr(GW2[c & 1],4)}, v{vA+8} offset:{c*64}"))
        return fns
    def mfma_fns(c):
        fns = []
        for sp in range(2):
            F = FS2[c & 1][sp]; z = "0" if (c == 0 and sp == 0) else None
            for (d, a, b) in [(AQ, F+8, F), (AK, F, F+12), (AV, F, F+16), (AH, F+20, F+4)]:
                fns.append(lambda d=d, a=a, b=b, z=z: mfma(e, d, a, b, c=z))
        return fns
    def dots(c):
        if X("NODOT"): return
        F = FS2[c & 1][0]; G = GW2[c & 1]
        for r in range(4):
            e(f"v_dot2c_f32_bf16 v{SUM+(r&1)}, s{sONES}, v{F+4+r}\nv_dot2c_f32_bf16 v{SQ+(r&1)}, v{F+4+r}, v{F+4+r}")
        for r in range(4):
            e(f"v_dot2c_f32_bf16 v{GA+(r&1)}, v{F+r}, v{G+r}\nv_dot2c_f32_bf16 v{CS+(r&1)}, s{sONES}, v{F+20+r}")
    w2refs = []
    for c in range(17):
        if c < 16:
            q.wait(wrefs[c])
            if c % 4 == 0: q.wait(xrefs[c // 4])
        e.wait_lds_all()
        if c < 16:
            if not X("NOBAR"): e("s_barrier")
            if c >= 1 and c + 4 < 16:
                wrefs[c + 4] = push_wab(q, c + 4)
                if X("NODMA"):
                    for fn, r in q.q: r.tok = -1
                    q.q = []
            if c == 1: xrefs[2] = push_x(q, 2)
            if c == 3: xrefs[3] = push_x(q, 3)
            if c >= 12: w2refs.append(push_w2(q, c - 12))
            extra_push(e, q, c)
        if c in (1, 5, 9, 13): stamp(e, f"ab{c}")
        fill = read_fns(c) if c < 16 else []
        npop = min(len(q.q), 8)
        pops = [lambda: q.pop(1)] * npop
        merged = []
        for k in range(max(len(fill), 1)):
            if k < len(fill): merged.append(fill[k])
            want = (npop * (k + 1)) // max(len(fill), 1)
            while sum(1 for f in merged if f in pops) < want and False: pass
        merged = []; pi = 0
        for k, f in enumerate(fill):
            merged.append(f)
            if k % (4 if npop <= 5 else 2) == 1 and pi < npop: merged.append(pops[pi]); pi += 1
        merged += pops[pi:]
        if c == 0:
            for f in merged: f()
        else:
            if X("DOTFIRST"): dots(c - 1)
            interleave(mfma_fns(c - 1), merged)
            if not X("DOTFIRST"): dots(c - 1)
    e.L.append("L_abend: ; @soft")
    stamp(e, "abmain")
    e(f"v_add_f32 v{t}, v{SUM}, v{SUM+1}\nv_add_f32 v{t+1}, v{SQ}, v{SQ+1}\nv_add_f32 v{t+2}, v{GA}, v{GA+1}\nv_add_f32 v{t+3}, v{CS}, v{CS+1}")
    e(f"s_lshl_b32 s{sT2}, s{sW}, 10\ns_add_u32 s{sT2}, s{sT2}, {PA_ST}\nv_add_u32 v{vA}, s{sT2}, v{vL16}")
    e.lds(f"ds_write_b128 v{vA}, {vr(t,4)}")
    e.wait_lds_all()
    e("s_barrier")
    push_w3(q, 0, (0,)); q.drain(); touch16(e, S_W3T, 3)
    e(f"s_xor_b32 s{sT2}, s{sW}, 1\ns_lshl_b32 s{sT2}, s{sT2}, 10\ns_add_u32 s{sT2}, s{sT2}, {PA_ST}\nv_add_u32 v{vA}, s{sT2}, v{vL16}")
    e(f"s_xor_b32 s{sT2}, s{sW}, 2\ns_lshl_b32 s{sT2}, s{sT2}, 10\ns_add_u32 s{sT2}, s{sT2}, {PA_ST}\nv_add_u32 v{vA+1}, s{sT2}, v{vL16}")
    P = 128
    k0 = e.lds(f"ds_read_b96 {vr(P,3)}, v{vA}")
    k1 = e.lds(f"ds_read_b32 v{P+3}, v{vA+1} offset:12")
    e.wait_lds(k1)
    for r in range(4): e(f"v_add_f32 v{t+r}, v{t+r}, v{P+r}")
    halfsum(e, t, t+4); halfsum(e, t+1, t+4); halfsum(e, t+2, t+4)
    NM, RS = 132, 134
    ln_stats(e, t, t+1, NM, RS, t+4)
    e(f"v_mul_f32 v{t+2}, 0xbfb8aa3b, v{t+2}\nv_exp_f32 v{t+2}, v{t+2}\nv_add_f32 v{t+2}, 1.0, v{t+2}\nv_rcp_f32 v{t+2}, v{t+2}")
    e(f"s_lshl_b32 s{sT2}, s{sI}, 7\ns_add_u32 s{sT2}, s{sT2}, {PA_G}\nv_lshlrev_b32 v{t+5}, 2, v{vT}\nv_add_u32 v{t+5}, s{sT2}, v{t+5}")
    e.lds(f"ds_write_b32 v{t+5}, v{t+2}")
    e(f"s_lshl_b32 s{sT2}, s{sTB}, 6\ns_lshl_b32 s{sT3}, s{sI}, 5\ns_add_u32 s{sT2}, s{sT2}, s{sT3}\ns_sub_u32 s{sT2}, s{sT2}, s{sDELTA}")
    e(f"v_add_u32 v{t+4}, s{sT2}, v{vT}\nv_cmp_gt_u32 vcc, 2048, v{t+4}\nv_cndmask_b32 v{RS}, 0, v{RS}, vcc")
    corr_frags(e, t+3, NM, 136, 140, t+4)
    mfma(e, AH, 136, 140)
    q.drain()
    OUT = 144
    gelu_pairs(e, [AH + 2*k for k in range(4)], RS, [152 + 2*k for k in range(4)], [OUT + k for k in range(4)])
    push_w3(q, 0, (1,)); q.drain(); touch16(e, S_W3T, 4)
    gelu_pairs(e, [AH + 2*k for k in range(4, 8)], RS, [152 + 2*k for k in range(4, 8)], [OUT + k for k in range(4, 8)])
    stamp(e, "b1epi")
    purity(e)
    frag_soff(e, sB3, WS_HSH, 32, OWNKS)
    def st(sc):
        for h in range(2):
            e.vm(f"buffer_store_dwordx4 {vr(OUT+4*h,4)}, v{vL16}, {srd(S_WS)}, s{sB3} offen offset:{1024*h} {sc}", "store")
    tok = stores2(e, st, "h")
    return w2refs, tok

def purity(e):
    l = e.newlabel("Lpur"); lx = e.newlabel("Lpurx"); lo = e.newlabel("Lpuro")
    t = vT0
    e.wait_vm(e.pub_ref.tok)
    e(f"s_and_b32 s{sT3}, s{sTAG}, 0xfffffff0\ns_mov_b32 s{sSPIN}, 0x40000")
    e(f"s_lshl_b32 s{sT2}, s{sU}, 7\ns_add_u32 s{sT2}, s{sT2}, {WS_PUB}")
    e.label(l)
    e(f"v_and_b32 v{t+2}, 0xfffffff0, v{vPUB}\nv_cmp_ne_u32 vcc, s{sT3}, v{t+2}\ns_cbranch_vccz {lo}")
    e(f"s_sub_u32 s{sSPIN}, s{sSPIN}, 1\ns_cmp_eq_u32 s{sSPIN}, 0\ns_cbranch_scc1 {lo}")
    e(f"v_and_b32 v{t+1}, 15, v{vLANE}\nv_lshlrev_b32 v{t+1}, 2, v{t+1}")
    e(f"buffer_load_dword v{vPUB}, v{t+1}, {srd(S_WS)}, s{sT2} offen sc1\ns_waitcnt vmcnt(0)\ns_branch {l}")
    e.label(lo)
    e(f"s_or_b32 s{sT3}, s{sT3}, s{sXCC}\nv_cmp_ne_u32 vcc, s{sT3}, v{vPUB}")
    e(f"s_cmp_eq_u64 vcc, 0\ns_cselect_b32 s{sPURE}, 1, 0")
    if X("FORCE_SLOW"): e(f"s_mov_b32 s{sPURE}, 0")

def extra_push(e, q, c):
    if X("CT2") and c == int(X("CT2")): q.push(lambda: touch_chunks(e, 9, 7))
    LA = int(X("CTLA", 7))
    if X("CTOUCH", "0") != "0" and 0 <= c and 5 <= c + LA < 16: q.push(lambda: touch_chunk(e, c + LA))
    T16 = {6: (S_W2, 0), 8: (S_W2, 1), 11: (S_W3T, 0), 12: (S_W3T, 1), 14: (S_W3T, 2)}
    if c in T16: q.push(lambda: touch16(e, *T16[c]))
    if c == 6:
        for j in range(4): q.push(lambda j=j: e.vm(f"buffer_load_dwordx2 {vr(vRES+2*j,2)}, v{vA+15}, {srd(S_AX)}, 0 offen offset:{16*j}"))
    if c == int(X("AT2", 12)) and X("ALLTOUCH", "1") != "0":
        q.push(lambda: touch_all(e, [(S_W2, 524288), (S_W3T, 512*3584), (S_WO, 524288), (S_W4, 1792*1024)], 64))
    if c == 9: q.push(lambda: touch_code(e, "L_abend"))
    if c == 11 and not wt("h"): q.push(lambda: touch_dst(e, lambda: own_soff_q(e, WS_HSH, 32), 16))
    if c == 12 and not wt("x1"):
        q.push(lambda: touch_dst(e, lambda: own_soff_q(e, WS_X1, 32), 16))
        def st2():
            e(f"s_lshl_b32 s{sQA}, s{sFB}, 1\ns_add_u32 s{sQA}, s{sQA}, s{sC}\ns_lshl_b32 s{sQA}, s{sQA}, 11\ns_lshl_b32 s{sT5}, s{sTB}, 6\ns_add_u32 s{sQA}, s{sQA}, s{sT5}")
            e(f"s_lshl_b32 s{sT5}, s{sI}, 5\ns_add_u32 s{sQA}, s{sQA}, s{sT5}\ns_lshl_b32 s{sQA}, s{sQA}, 3\ns_add_u32 s{sQA}, s{sQA}, {WS_ST2}")
            return sQA
        q.push(lambda: touch_dst(e, st2, 2))
    if c == 8:
        def fn():
            e(f"s_lshl_b32 s{sQA}, s{sU}, 7\ns_add_u32 s{sQA}, s{sQA}, {WS_PUB}\nv_and_b32 v{vPUB}, 15, v{vLANE}\nv_lshlrev_b32 v{vPUB}, 2, v{vPUB}")
            return e.vm(f"buffer_load_dword v{vPUB}, v{vPUB}, {srd(S_WS)}, s{sQA} offen sc1")
        e.pub_ref = q.push(fn)

def sel_addrP(e, dst):
    e(f"s_cmp_eq_u32 s{sC}, 0\ns_cselect_b64 vcc, -1, 0")
    e(f"v_cndmask_b32 v{dst}, v{vAP+1}, v{vAP}, vcc\nv_cndmask_b32 v{dst+1}, v{vAP}, v{vAP+1}, vcc")

PQR = 240
KVD = 80
def a1_epilogue(e, q, w2refs, tokh):
    t = vT0
    def phi_steps(acc, out, tmp):
        P = lambda r: vr(r, 2); st = []
        for k in range(8): st.append(lambda k=k: e(f"v_pk_mul_f32 {P(tmp+2*k)}, {P(acc+2*k)}, s[{sC_LOG2E}:{sC_LOG2E+1}]"))
        for k in range(16): st.append(lambda k=k: e(f"v_min_f32 v{tmp+k}, 0, v{tmp+k}"))
        for k in range(16): st.append(lambda k=k: e(f"v_exp_f32 v{tmp+k}, v{tmp+k}"))
        for k in range(16): st.append(lambda k=k: e(f"v_max_f32 v{acc+k}, 0, v{acc+k}"))
        for k in range(8): st.append(lambda k=k: e(f"v_pk_add_f32 {P(acc+2*k)}, {P(acc+2*k)}, {P(tmp+2*k)}"))
        for k in range(8): st.append(lambda k=k: e(f"v_pk_add_f32 {P(acc+2*k)}, {P(acc+2*k)}, s[{sC_EPS6}:{sC_EPS6+1}]"))
        for k in range(8): st.append(lambda k=k: e(f"v_cvt_pk_bf16_f32 v{out+k}, v{acc+2*k}, v{acc+2*k+1}"))
        return st
    TMP = 112
    PKF, VF, PQF, ONE = 128, 136, PQR, 152
    push_w3(q, 1, (0,)); q.drain(); touch16(e, S_W3T, 5)
    q.wait(w2refs[-1])
    e("s_barrier")
    sel_addrP(e, vA)
    e(f"s_lshl_b32 s{sT2}, s{sC}, 15\ns_add_u32 s{sT2}, s{sT2}, {SL(1)}\nv_add_u32 v{vA}, s{sT2}, v{vA}\nv_add_u32 v{vA+1}, s{sT2}, v{vA+1}")
    rd = []
    for s_ in range(16):
        for c in range(2):
            d = (2*s_ + c)*4
            rd.append(lambda d=d, c=c, s_=s_: e.lds(f"ds_read_b64_tr_b16 {ar(d,2)}, v{vA+c} offset:{s_*2048}"))
            rd.append(lambda d=d, c=c, s_=s_: e.lds(f"ds_read_b64_tr_b16 {ar(d+2,2)}, v{vA+c} offset:{s_*2048+1024}"))
    interleave(phi_steps(AK, PKF, TMP), rd)
    push_w3(q, 1, (1,)); q.drain(); touch16(e, S_W3T, 6)
    for k in range(8): e(f"v_cvt_pk_bf16_f32 v{VF+k}, v{AV+2*k}, v{AV+2*k+1}")
    for k in range(4): e(f"v_mov_b32 v{ONE+k}, s{sONES}")
    D2, D3 = KVD, 96
    mfma(e, D2, PKF, VF, c="0"); mfma(e, D3, PKF, ONE, c="0")
    mfma(e, D2, PKF + 4, VF + 4); mfma(e, D3, PKF + 4, ONE)
    e.wait_lds_all()
    stamp(e, "a1k")
    publish(e, teamflag(WS_FB1), upto=tokh)
    stamp(e, "b1pub")
    push_w3(q, 2); q.drain(); touch16(e, S_WO, 0)
    st = phi_steps(AQ, PQF, TMP)
    n = len(st)
    for f in st[:n//2]: f()
    touch16(e, S_WO, 1)
    for f in st[n//2:]: f()
    e(f"v_and_b32 v{t}, 16, v{vLANE}\nv_cmp_ne_u32 vcc, 0, v{t}")
    for r in range(8): e(f"v_cndmask_b32 v{D2+r}, v{D2+r}, v{D3+r}, vcc")
    for r in range(8): e(f"v_cndmask_b32 v{D2+8+r}, v{D3+8+r}, v{D2+8+r}, vcc")
    e(f"s_lshl_b32 s{sT2}, s{sC}, 12\ns_add_u32 s{sT2}, s{sT2}, {SL(4)}\nv_add_u32 v{t}, s{sT2}, v{vL16}")
    l1 = e.newlabel("La1"); l2 = e.newlabel("La1")
    e(f"s_cmp_eq_u32 s{sI}, 0\ns_cbranch_scc1 {l1}")
    for rg in range(4): e(f"ds_write_b128 v{t}, {vr(D2+4*rg,4)} offset:{rg*1024}")
    e.label(l1)
    e.wait_lds_all()
    e("s_barrier")
    e(f"s_cmp_lg_u32 s{sI}, 0\ns_cbranch_scc1 {l2}")
    for rg in range(4): e(f"ds_read_b128 {vr(D3+4*rg,4)}, v{t} offset:{rg*1024}")
    e("s_waitcnt lgkmcnt(0)")
    for p in range(8): e(f"v_pk_add_f32 {vr(D2+2*p,2)}, {vr(D2+2*p,2)}, {vr(D3+2*p,2)}")
    e.label(l2)

def kv_store(e):
    t = vT0
    frag_soff(e, sB4, WS_PQ, 32, OWNKS)
    def stq(sc):
        for h in range(2):
            e.vm(f"buffer_store_dwordx4 {vr(PQR+4*h,4)}, v{vL16}, {srd(S_WS)}, s{sB4} offen offset:{1024*h} {sc}", "store")
    stores2(e, stq, "pq")
    l2 = e.newlabel("Lkv")
    e(f"s_cmp_lg_u32 s{sI}, 0\ns_cbranch_scc1 {l2}")
    e(f"v_and_b32 v{t+1}, 15, v{vT}\nv_mov_b32 v{t+2}, 16")
    e(f"v_and_b32 v{t+3}, 16, v{vLANE}\nv_cmp_ne_u32 vcc, 0, v{t+3}")
    e(f"v_cndmask_b32 v{t+4}, v{t+1}, v{t+2}, vcc\nv_cndmask_b32 v{t+5}, v{t+2}, v{t+1}, vcc")
    e(f"v_mul_u32_u24 v{t+3}, 544, v{vHH}")
    e(f"v_lshlrev_b32 v{t+4}, 5, v{t+4}\nv_add_u32 v{t+4}, v{t+4}, v{t+3}\nv_lshlrev_b32 v{t+5}, 5, v{t+5}\nv_add_u32 v{t+5}, v{t+5}, v{t+3}")
    e(f"s_lshl_b32 s{sT2}, s{sTB}, 3\ns_add_u32 s{sT2}, s{sT2}, s{sFB}\ns_mul_i32 s{sT2}, s{sT2}, 4352\ns_mul_i32 s{sT3}, s{sC}, 2176\ns_add_u32 s{sT2}, s{sT2}, s{sT3}\ns_add_u32 s{sB4}, s{sT2}, {WS_KVP}")
    for h in range(2):
        for qq in range(2):
            e(f"buffer_store_dwordx4 {vr(KVD+8*h+4*qq,4)}, v{t+4+h}, {srd(S_WS)}, s{sB4} offen offset:{1088*h + 16*qq} sc1")
            e.vm_kinds.append("store"); e.vm_n += 1
    e.label(l2)

def stage_b2(e, q):
    ACC = 96; HF = 128
    t = vT0
    frag_soff(e, sB3, WS_HSH, 32, f"s_lshl_b32 s{sT3}, s{sC}, 4")
    th = []
    for s in range(16):
        if s and s % 4 == 0: e(f"s_add_u32 s{sB3}, s{sB3}, 4096")
        th.append(e.vm(f"buffer_load_dwordx4 {vr(HF + 4*s, 4)}, v{vL16}, {srd(S_WS)}, s{sB3} offen offset:{(s&3)*1024} sc1"))
    kv_store(e)
    if X("FINE"): stamp(e, "b2iss")
    for s in range(16):
        e.wait_vm(th[s])
        if X("FINE") and s in (0, 8): stamp(e, f"b2s{s}")
        for c in range(2):
            mfma(e, ACC + 16*c, (2*s + c)*4, HF + 4*s, aa=True, c=("0" if s == 0 else None))
    stamp(e, "b2main")
    e(f"s_lshl_b32 s{sT2}, s{sW}, 12\ns_add_u32 s{sT2}, s{sT2}, {SL(4)}\nv_add_u32 v{vA}, s{sT2}, v{vL16}")
    e(f"s_xor_b32 s{sT2}, s{sW}, 1\ns_lshl_b32 s{sT2}, s{sT2}, 12\ns_add_u32 s{sT2}, s{sT2}, {SL(4)}\nv_add_u32 v{vA+1}, s{sT2}, v{vL16}")
    for rg in range(4): e.lds(f"ds_write_b128 v{vA}, {vr(ACC+16+4*rg,4)} offset:{rg*1024}")
    e.wait_lds_all()
    e.wait_vm_all()
    e("s_barrier")
    l = e.newlabel("Lfa1")
    e(f"s_cmp_lg_u32 s{sW}, 0\ns_cbranch_scc1 {l}")
    e(f"s_lshl_b32 s{sT2}, s{sFB}, 7\ns_lshl_b32 s{sT3}, s{sTB}, 2\ns_add_u32 s{sT2}, s{sT2}, s{sT3}\ns_add_u32 s{sT2}, s{sT2}, {WS_FA1}")
    flag_store(e, sT2, "sc1")
    e.label(l)
    e.vm_kinds.append("store"); e.vm_n += 1
    push_w3(q, 3); q.drain()
    tk = [e.lds(f"ds_read_b128 {vr(ACC+16+4*rg,4)}, v{vA+1} offset:{rg*1024}") for rg in range(4)]
    for rg in range(4):
        e.wait_lds(tk[rg])
        for p in range(2): e(f"v_pk_add_f32 {vr(ACC+4*rg+2*p,2)}, {vr(ACC+4*rg+2*p,2)}, {vr(ACC+16+4*rg+2*p,2)}")
    stamp(e, "b2red")
    for k in range(8):
        e(f"v_lshlrev_b32 v{t}, 16, v{vRES+k}\nv_and_b32 v{t+1}, 0xffff0000, v{vRES+k}")
        e(f"v_pk_add_f32 {vr(ACC+2*k,2)}, {vr(ACC+2*k,2)}, {vr(t,2)}")
        e(f"v_cvt_pk_bf16_f32 v{vRES+k}, v{ACC+2*k}, v{ACC+2*k+1}")
    frag_soff(e, sB3, WS_X1, 32, OWNKS)
    S, Q = 128, 130
    e(f"v_mov_b32 v{S}, 0\nv_mov_b32 v{S+1}, 0\nv_mov_b32 v{Q}, 0\nv_mov_b32 v{Q+1}, 0")
    for k in range(8):
        e(f"v_dot2c_f32_bf16 v{S+(k&1)}, s{sONES}, v{vRES+k}\nv_dot2c_f32_bf16 v{Q+(k&1)}, v{vRES+k}, v{vRES+k}")
    e(f"v_add_f32 v{S}, v{S}, v{S+1}\nv_add_f32 v{S+1}, v{Q}, v{Q+1}")
    halfsum(e, S, t); halfsum(e, S + 1, t)
    e(f"s_lshl_b32 s{sT2}, s{sFB}, 1\ns_add_u32 s{sT2}, s{sT2}, s{sC}\ns_lshl_b32 s{sT2}, s{sT2}, 11")
    e(f"s_lshl_b32 s{sT3}, s{sTB}, 6\ns_add_u32 s{sT2}, s{sT2}, s{sT3}\ns_lshl_b32 s{sT3}, s{sI}, 5\ns_add_u32 s{sT2}, s{sT2}, s{sT3}")
    e(f"s_lshl_b32 s{sT2}, s{sT2}, 3\ns_add_u32 s{sB4}, s{sT2}, {WS_ST2}")
    e(f"v_lshlrev_b32 v{t+2}, 3, v{vT}")
    def st(sc):
        for h in range(2):
            e.vm(f"buffer_store_dwordx4 {vr(vRES+4*h,4)}, v{vL16}, {srd(S_WS)}, s{sB3} offen offset:{1024*h} {sc}", "store")
        e.vm(f"buffer_store_dwordx2 {vr(S,2)}, v{t+2}, {srd(S_WS)}, s{sB4} offen {sc}", "store")
    return stores2(e, st, "x1")

CSA = 132
def b3_colsum(e, part):
    t = vT0
    WT = 136; ND = 6
    if part == 0:
        e(f"s_cmp_eq_u32 s{sC}, 0\ns_cselect_b64 vcc, -1, 0")
        e(f"v_cndmask_b32 v{vA+4}, v{vAP+1}, v{vAP}, vcc\ns_lshl_b32 s{sT2}, s{sI}, 12\nv_add_u32 v{vA+4}, s{sT2}, v{vA+4}\nv_add_u32 v{vA+5}, {SL(0)}, v{vA+4}")
        for r in range(4): e(f"v_mov_b32 v{CSA+r}, 0")
    def csread(s):
        g = s >> 1; off = (g % 8)*8192 + (s & 1)*2048
        return tr_frag(e, WT + (s % ND)*4, vA + 4 + g // 8, off, 1024)
    s0, s1 = 16*part, 16*part + 16
    rds = {s: csread(s) for s in range(s0, s0 + ND - 1)}
    for s in range(s0, s1):
        if s + ND - 1 < s1: rds[s + ND - 1] = csread(s + ND - 1)
        e.wait_lds(rds[s])
        for r in range(4): e(f"v_dot2c_f32_bf16 v{CSA+r}, s{sONES}, v{WT + (s % ND)*4 + r}")
    if part == 1:
        e(f"v_add_f32 v{CSA}, v{CSA}, v{CSA+1}\nv_add_f32 v{CSA+2}, v{CSA+2}, v{CSA+3}\nv_add_f32 v{CSA}, v{CSA}, v{CSA+2}")
        e(f"s_lshl_b32 s{sT2}, s{sW}, 8\ns_add_u32 s{sT2}, s{sT2}, {PA_CS3}\nv_lshlrev_b32 v{t}, 2, v{vLANE}\nv_add_u32 v{t}, s{sT2}, v{t}")
        e.lds(f"ds_write_b32 v{t}, v{CSA}")
        e.wait_lds_all()

def p4a_setup(e):
    e(f"s_xor_b32 s{sT1}, s{sI}, 1")
    frag_soff(e, sB4, WS_PQ, 32, f"s_lshl_b32 s{sT3}, s{sW}, 3")
    frag_soff(e, sB5, WS_PQ, 32, f"s_lshl_b32 s{sT3}, s{sW}, 3", blk=sT1)
    frag_soff(e, sB6, WS_H2, 112, f"s_lshl_b32 s{sT3}, s{sW}, 1")
    frag_soff(e, sB7, WS_H2, 112, f"s_lshl_b32 s{sT3}, s{sW}, 1", blk=sT1)
    e(f"s_lshl_b32 s{sT2}, s{sW}, 13\ns_add_u32 s{sB2}, s{sT2}, {WS_KVT}")
def push_kvt_loads(e, q):
    tk = {}
    for h in range(8):
        def fk(h=h):
            if h % 4 == 0: e(f"s_add_u32 s{sQA}, s{sB2}, {h*1024}")
            return e.vm(f"buffer_load_dwordx4 {ar(4*h,4)}, v{vL16}, {srd(S_WS)}, s{sQA} offen offset:{(h & 3)*1024} sc1")
        tk[h] = q.push(fk)
    return tk
def push_p4a_loads(e, q):
    tp = {}
    for h in range(8):
        for i in range(2):
            def fp(h=h, i=i):
                e(f"s_add_u32 s{sQA}, s{sB4+i}, {h*1024}")
                return e.vm(f"buffer_load_dwordx4 {ar(32 + (2*h+i)*4, 4)}, v{vL16}, {srd(S_WS)}, s{sQA} offen sc1")
            tp[(h, i)] = q.push(fp)
    return tp
def flags_check(e, off, nflags, preloaded):
    l = e.newlabel("Lfc"); lo = e.newlabel("Lfco"); t = vT0
    e(f"s_mov_b32 s{sSPIN}, 0x40000\ns_mov_b32 s{sT2}, {off}")
    e(f"v_lshlrev_b32 v{t+1}, 2, v{vLANE}\nv_cmp_gt_u32 vcc, {nflags}, v{vLANE}\ns_and_saveexec_b64 s[{sSAVE}:{sSAVE+1}], vcc")
    if not preloaded:
        e(f"buffer_load_dword v{vPUB}, v{t+1}, {srd(S_WS)}, s{sT2} offen sc1\ns_waitcnt vmcnt(0)")
    e.label(l)
    e(f"v_cmp_ne_u32 vcc, s{sTAG}, v{vPUB}\ns_cbranch_vccz {lo}")
    e(f"s_sub_u32 s{sSPIN}, s{sSPIN}, 1\ns_cmp_eq_u32 s{sSPIN}, 0\ns_cbranch_scc1 {lo}")
    e(f"buffer_load_dword v{vPUB}, v{t+1}, {srd(S_WS)}, s{sT2} offen sc1\ns_waitcnt vmcnt(0)\ns_branch {l}")
    e.label(lo)
    e(f"s_mov_b64 exec, s[{sSAVE}:{sSAVE+1}]")

def stage_b3(e, q):
    ACC = 64; t = vT0
    for c in range(2): e(f"v_mov_b32 v{vA+8+2*c}, v{vAP+c}\nv_add_u32 v{vA+8+2*c+1}, {SL(0)}, v{vAP+c}")
    def waddr(s, ft):
        g = s >> 1
        return vA + 8 + 2*(ft & 1) + g // 8, (g % 8)*8192 + (ft >> 1)*4096 + (s & 1)*2048
    e(f"s_lshl_b32 s{sT2}, s{sU}, 2\ns_add_u32 s{sT2}, s{sT2}, s{sW}\ns_lshl_b32 s{sT2}, s{sT2}, 15\ns_add_u32 s{sB3}, s{sT2}, {WS_X1}")
    e(f"s_lshl_b32 s{sT2}, s{sU}, 7\ns_lshl_b32 s{sT3}, s{sW}, 5\ns_add_u32 s{sT2}, s{sT2}, s{sT3}\ns_lshl_b32 s{sT2}, s{sT2}, 3\ns_add_u32 s{sB4}, s{sT2}, {WS_ST2}")
    e(f"v_lshlrev_b32 v{vA+6}, 17, v{vHH}\nv_lshlrev_b32 v{t+1}, 3, v{vT}\nv_add_u32 v{vA+6}, v{vA+6}, v{t+1}")
    CS4 = 152; CA, CB = 160, 176
    e("s_barrier")
    e(f"v_lshlrev_b32 v{t+2}, 2, v{vLANE}\nv_add_u32 v{t+2}, {PA_CS3}, v{t+2}")
    tc = [e.lds(f"ds_read_b32 v{CS4+k}, v{t+2} offset:{256*k}") for k in range(4)]
    WFS = [192, 208, 224]
    def read_fns(s):
        fns = []
        for ft in range(4):
            a, off = waddr(s, ft); d = WFS[s % 3] + ft*4
            fns.append(lambda a=a, off=off, d=d: e.lds(f"ds_read_b64_tr_b16 {vr(d,2)}, v{a} offset:{off}"))
            fns.append(lambda a=a, off=off, d=d: e.lds(f"ds_read_b64_tr_b16 {vr(d+2,2)}, v{a} offset:{off+1024}"))
        return fns
    e.wait_lds(tc)
    for k in range(4): corr_frags(e, CS4 + k, None, CA + 4*k, None, t)
    rdtok = {}
    for s in range(2):
        for f in read_fns(s): rdtok[s] = f()
    poll(e, f"s_lshl_b32 s{sT2}, s{sU}, 7\ns_add_u32 s{sT2}, s{sT2}, {WS_FB2}", 16)
    stamp(e, "b3poll")
    STT = 136
    tst = []
    for k in range(8):
        def fn(k=k):
            e(f"s_add_u32 s{sQA}, s{sB4}, {k*16384}")
            return e.vm(f"buffer_load_dwordx2 {vr(STT+2*k,2)}, v{vA+6}, {srd(S_WS)}, s{sQA} offen sc1")
        tst.append(q.push(fn))
    tx = []
    for s in range(32):
        def fn(s=s):
            if s % 4 == 0: e(f"s_add_u32 s{sQA}, s{sB3}, {(s//4)*4096}")
            return e.vm(f"buffer_load_dwordx4 {ar(4*s,4)}, v{vL16}, {srd(S_WS)}, s{sQA} offen offset:{(s&3)*1024} sc1")
        tx.append(q.push(fn))
    q.pop(8 + 6)
    q.wait(tst[-1])
    for k in range(1, 8): e(f"v_pk_add_f32 {vr(STT,2)}, {vr(STT,2)}, {vr(STT+2*k,2)}")
    halfsum(e, STT, t); halfsum(e, STT + 1, t)
    NM, RS = 240, 242
    ln_stats(e, STT, STT + 1, NM, RS, t)
    corr_frags(e, None, NM, None, CB, t)
    for k in range(4):
        mfma(e, ACC + 16*k, CA + 4*k, CB, c="0"); q.pop(1)
    stamp(e, "b3st")
    w4 = {}
    for s in range(32):
        if X("FINE") and s in (4, 8, 12, 16, 24): stamp(e, f"b3s{s}")
        e.wait_lds(rdtok[s]); q.wait(tx[s])
        if s == 15:
            e("s_barrier")
            set_region_addrs(e)
            for g in range(5): w4[g] = push_w4(q, g)
        if s in (8, 12, 16, 20): q.push(lambda s=s: touch16(e, S_W4, 3 + (s - 8)//4))
        if s == 10: q.push(lambda: touch_code(e, "L_b3end"))

        if s == int(X("H2T", 27)) and not wt("h2"):
            def h2d():
                e(f"s_lshl_b32 s{sQA}, s{sU}, 2\ns_add_u32 s{sQA}, s{sQA}, s{sW}\ns_mul_i32 s{sQA}, s{sQA}, 112\ns_lshl_b32 s{sT5}, s{sV}, 3\ns_add_u32 s{sQA}, s{sQA}, s{sT5}")
                e(f"s_lshl_b32 s{sQA}, s{sQA}, 10\ns_add_u32 s{sQA}, s{sQA}, {WS_H2}")
                return sQA
            q.push(lambda: touch_dst(e, h2d, 64))
        fill = read_fns(s + 2) if s + 2 < 32 else []
        mains = [(lambda ft=ft: mfma(e, ACC + 16*ft, WFS[s % 3] + ft*4, 4*s, ba=True)) for ft in range(4)]
        toks = []
        fl = [(lambda f=f: toks.append(f())) for f in fill]
        fl.insert(2, lambda: q.pop(1)); fl.insert(6, lambda: q.pop(1))
        interleave(mains, fl)
        if toks: rdtok[s + 2] = toks[-1]
    e.L.append("L_b3end: ; @soft")
    stamp(e, "b3main")
    e("s_barrier")
    e(f"s_lshl_b32 s{sT2}, s{sU}, 2\ns_add_u32 s{sT2}, s{sT2}, s{sW}\ns_mul_i32 s{sT2}, s{sT2}, 112\ns_lshl_b32 s{sT3}, s{sV}, 3\ns_add_u32 s{sT2}, s{sT2}, s{sT3}")
    e(f"s_lshl_b32 s{sT2}, s{sT2}, 10\ns_add_u32 s{sB3}, s{sT2}, {WS_H2}\ns_add_u32 s{sB4}, s{sB3}, 4096")
    OUT = 128; TMP = 192
    def gel(ft, half):
        ks = range(4*half, 4*half + 4)
        gelu_pairs(e, [ACC + 16*ft + 2*k for k in ks], RS, [TMP + 2*k for k in ks], [OUT + 8*ft + k for k in ks])
    q.wait(w4[4])
    for f in w4_to_agpr_fns(e): f()
    p4a_setup_keep = None
    gel(0, 0)
    e.wait_lds_all()
    stamp(e, "gel0")
    e(f"s_mov_b32 s84, s{sB4}")
    p4a_setup(e)
    wo = [push_wo(q, g) for g in range(2)]
    tp = push_p4a_loads(e, q)
    wo += [push_wo(q, g) for g in range(2, 4)]
    for g in range(5, 10): w4[g] = push_w4(q, g)
    sg = q.take()
    sg.point(0); gel(0, 1)
    sg.point(1); gel(1, 0); gel(1, 1)
    sg.point(2); gel(2, 0); gel(2, 1)
    sg.point(3)
    e(f"s_mov_b32 s{sQA}, {WS_FA2}\nv_lshlrev_b32 v{vPUB}, 2, v{vLANE}")
    fa2tok = e.vm(f"buffer_load_dword v{vPUB}, v{vPUB}, {srd(S_WS)}, s{sQA} offen sc1")
    gel(3, 0); gel(3, 1)
    stamp(e, "gel3")
    e.wait_vm(fa2tok)
    stamp(e, "fa2w")
    flags_check(e, WS_FA2, 32, True)
    stamp(e, "fa2")
    tk = push_kvt_loads(e, q); q.drain()
    def st(sc):
        for ft in range(4):
            for h in range(2):
                so = sB3 if ft < 2 else 84
                e.vm(f"buffer_store_dwordx4 {vr(OUT+8*ft+4*h,4)}, v{vL16}, {srd(S_WS)}, s{so} offen offset:{((2*ft+h)&3)*1024} {sc}", "store")
    tokst = stores2(e, st, "h2")
    return wo, w4, tk, tp, tokst

def stage_a2(e, q):
    t = vT0
    e(f"s_lshl_b32 s{sHEAD}, s{sU}, 1\ns_add_u32 s{sHEAD}, s{sHEAD}, s{sV}\ns_sub_u32 s{sHEAD}, s{sHEAD}, 14")
    poll(e, f"s_lshr_b32 s{sT2}, s{sHEAD}, 2\ns_lshl_b32 s{sT2}, s{sT2}, 7\ns_add_u32 s{sT2}, s{sT2}, {WS_FA1}", 32)
    e(f"v_and_b32 v{t+1}, 15, v{vT}\nv_mov_b32 v{t+2}, 16\nv_and_b32 v{t+3}, 16, v{vLANE}")
    e(f"s_and_b32 s{sT2}, s{sHEAD}, 1\ns_lshl_b32 s{sT2}, s{sT2}, 4\nv_cmp_ne_u32 vcc, s{sT2}, v{t+3}")
    e(f"v_cndmask_b32 v{t+4}, v{t+1}, v{t+2}, vcc")
    e(f"v_mul_u32_u24 v{t+3}, 544, v{vHH}\nv_lshlrev_b32 v{t+4}, 5, v{t+4}\nv_add_u32 v{t+4}, v{t+4}, v{t+3}")
    e(f"s_lshr_b32 s{sT2}, s{sHEAD}, 2\ns_lshl_b32 s{sT3}, s{sW}, 6\ns_add_u32 s{sT2}, s{sT2}, s{sT3}\ns_mul_i32 s{sT2}, s{sT2}, 4352")
    e(f"s_and_b32 s{sT3}, s{sHEAD}, 3\ns_mul_i32 s{sT3}, s{sT3}, 1088\ns_add_u32 s{sT2}, s{sT2}, s{sT3}\ns_add_u32 s{sB3}, s{sT2}, {WS_KVP}")
    B = 64; tk = []
    for k in range(8):
        if k: e(f"s_add_u32 s{sB3}, s{sB3}, {8*4352}")
        for qq in range(2):
            tk.append(e.vm(f"buffer_load_dwordx4 {vr(B+8*k+4*qq,4)}, v{t+4}, {srd(S_WS)}, s{sB3} offen offset:{16*qq} sc1"))
    for k in range(1, 8):
        e.wait_vm(tk[2*k+1])
        for p in range(4): e(f"v_pk_add_f32 {vr(B+2*p,2)}, {vr(B+2*p,2)}, {vr(B+8*k+2*p,2)}")
    e(f"s_lshl_b32 s{sT2}, s{sW}, 11\ns_add_u32 s{sT2}, s{sT2}, {PA_ST}\nv_add_u32 v{t}, s{sT2}, v{vL16}") if False else None
    XB = SL(3)
    e(f"s_lshl_b32 s{sT2}, s{sW}, 11\ns_add_u32 s{sT2}, s{sT2}, {XB}\nv_add_u32 v{t}, s{sT2}, v{vL16}")
    e.lds(f"ds_write_b128 v{t}, {vr(B,4)}"); e.lds(f"ds_write_b128 v{t}, {vr(B+4,4)} offset:1024")
    e.wait_lds_all()
    e("s_barrier")
    l = e.newlabel("La2")
    e(f"s_cmp_lg_u32 s{sW}, 0\ns_cbranch_scc1 {l}")
    e(f"v_add_u32 v{t}, {XB}, v{vL16}")
    for k in range(1, 4):
        e(f"ds_read_b128 {vr(B+8*k,4)}, v{t} offset:{2048*k}\nds_read_b128 {vr(B+8*k+4,4)}, v{t} offset:{2048*k+1024}")
    e("s_waitcnt lgkmcnt(0)")
    for k in range(1, 4):
        for p in range(4): e(f"v_pk_add_f32 {vr(B+2*p,2)}, {vr(B+2*p,2)}, {vr(B+8*k+2*p,2)}")
    for p in range(4): e(f"v_cvt_pk_bf16_f32 v{B+32+p}, v{B+2*p}, v{B+2*p+1}")
    e(f"s_lshl_b32 s{sT2}, s{sHEAD}, 10\ns_add_u32 s{sB3}, s{sT2}, {WS_KVT}")
    e(f"buffer_store_dwordx4 {vr(B+32,4)}, v{vL16}, {srd(S_WS)}, s{sB3} offen sc1")
    e("s_waitcnt vmcnt(0)")
    e(f"s_lshl_b32 s{sT2}, s{sHEAD}, 2\ns_add_u32 s{sT2}, s{sT2}, {WS_FA2}")
    flag_store(e, sT2, "sc1")
    e.label(l)
    e("s_barrier")
    for k in range(3, 7): touch16(e, S_W4, k)
    touch_code(e, "L_b3end")
    set_region_addrs(e)
    w4 = {g: push_w4(q, g) for g in range(5)}
    wo = [push_wo(q, g) for g in range(4)]
    q.drain()
    e.wait_vm_all()
    for f in w4_to_agpr_fns(e): f()
    e.wait_lds_all()
    for g in range(5, 10): w4[g] = push_w4(q, g)
    q.drain()
    flags_check(e, WS_FA2, 32, False)
    p4a_setup(e)
    push_p4a_loads(e, q); push_kvt_loads(e, q)
    q.drain()
    e.wait_vm_all()

def stage_p4(e, q, wo, w4in, tk, tp, tokst):
    ACCB, ACCA = 64, 128
    WF = 192
    t = vT0
    l = e.newlabel("Lep")
    e(f"s_or_b32 s{sT2}, s2, s{sW}\ns_cmp_lg_u32 s{sT2}, 0\ns_cbranch_scc1 {l}")
    e(f"s_mov_b32 s{sT2}, {WS_EPOCH}")
    flag_store(e, sT2, "sc1")
    e.label(l)
    e.vm_kinds.append("store"); e.vm_n += 1
    G = [208, 210]; OMG = [212, 214]
    e(f"v_lshlrev_b32 v{t}, 2, v{vT}\nv_add_u32 v{t}, {PA_G}, v{t}")
    e(f"s_lshl_b32 s{sT2}, s{sI}, 7\nv_add_u32 v{t+1}, s{sT2}, v{t}\ns_xor_b32 s{sT2}, s{sT2}, 128\nv_add_u32 v{t+2}, s{sT2}, v{t}")
    tg = [e.lds(f"ds_read_b32 v{G[0]}, v{t+1}"), e.lds(f"ds_read_b32 v{G[1]}, v{t+2}")]
    e.wait_lds(tg)
    for i in range(2): e(f"v_sub_f32 v{OMG[i]}, 1.0, v{G[i]}")
    OD = [216, 232]
    OF = [[46, 50], [248, 252]]
    SC = [56, 58]
    def wo_reads(h):
        tok = None
        for c in range(2): tok = tr_frag(e, WF + (h&1)*8 + c*4, vA + 2 + c, h*2048, 1024)
        return tok
    def omm(h):
        q.wait(tp[(h, 1)]); q.wait(tk[h])
        for i in range(2):
            e(f"v_mfma_f32_32x32x16_bf16 {vr(OD[i],16)}, {ar(4*h,4)}, {ar(32 + (2*h+i)*4,4)}, 0")
            q.pop(1)
    def oval(h):
        par = h & 1
        for i in range(2):
            num = OD[i] + (8 if h & 1 else 0); den = OD[i] + (0 if h & 1 else 8)
            e(f"v_add_f32 v{SC[i]}, 0x358637bd, v{den}\nv_rcp_f32 v{SC[i]}, v{SC[i]}\nv_mul_f32 v{SC[i]}, v{SC[i]}, v{G[i]}")
            for p in range(8): e(f"v_mul_f32 v{num+p}, v{num+p}, v{SC[i]}")
            for p in range(4): e(f"v_cvt_pk_bf16_f32 v{OF[par][i]+p}, v{num+2*p}, v{num+2*p+1}")
    def amm(h):
        par = h & 1
        for i in range(2):
            for c in range(2):
                mfma(e, ACCA + (2*i + c)*16, WF + par*8 + c*4, OF[par][i], c=("0" if h == 0 else None))
            q.pop(1)
    q.wait(wo[0])
    rd = {0: wo_reads(0)}
    omm(0)
    for h in range(8):
        if h + 1 < 8:
            if (h + 1) % 2 == 0: q.wait(wo[(h + 1) >> 1])
            rd[h+1] = wo_reads(h + 1)
        oval(h)
        if h + 1 < 8: omm(h + 1)
        e.wait_lds(rd[h])
        amm(h)
        if h == int(X("PUBH", 3)):
            e.wait_vm(tokst)
            e("s_barrier")
            lq = e.newlabel("Lp3")
            e(f"s_cmp_ge_u32 s{sV}, 14\ns_cbranch_scc1 {lq}\ns_cmp_lg_u32 s{sW}, 0\ns_cbranch_scc1 {lq}")
            e(teamflag(WS_FB3))
            l2 = e.newlabel("Lp3"); l3 = e.newlabel("Lp3")
            e(f"s_cmp_eq_u32 s{sPURE}, 0\ns_cbranch_scc1 {l2}")
            flag_store(e, sT2, "")
            e(f"s_branch {l3}")
            e.label(l2)
            flag_store(e, sT2, "sc1")
            e.label(l3)
            e.label(lq)
            e.vm_kinds.append("store"); e.vm_n += 1
            stamp(e, "p4pub")
    stamp(e, "p4A")
    w4 = dict(w4in); w4.update({g: push_w4(q, g) for g in range(10, 14)})
    q.drain()
    poll(e, f"s_lshl_b32 s{sT2}, s{sU}, 7\ns_add_u32 s{sT2}, s{sT2}, {WS_FB3}", 14)
    stamp(e, "p4pollB")
    HD = 16
    th = {}
    def hpush(s):
        for i in range(2):
            def fn(s=s, i=i):
                e(f"s_add_u32 s{sQA}, s{sB6+i}, {(s >> 1)*8192 + (s & 1)*1024}")
                return e.vm(f"buffer_load_dwordx4 {ar(((s % HD)*2 + i)*4, 4)}, v{vL16}, {srd(S_WS)}, s{sQA} offen sc1")
            th[(s, i)] = q.push(fn)
    for s in range(HD): hpush(s)
    q.pop(10)
    WFS = [192, 200, 216]
    def read_fns(s):
        if s < 10 or s >= 28: return []
        g = s >> 1; reg, slot = W4LOC[g]; fns = []
        for c in range(2):
            a, off = region_addr(reg, slot, c); off += (s & 1)*2048; d = WFS[s % 3] + 4*c
            fns.append(lambda a=a, off=off, d=d: e.lds(f"ds_read_b64_tr_b16 {vr(d,2)}, v{a} offset:{off}"))
            fns.append(lambda a=a, off=off, d=d: e.lds(f"ds_read_b64_tr_b16 {vr(d+2,2)}, v{a} offset:{off+1024}"))
        return fns
    rdtok = {}
    for s in range(28):
        if X("FINE") and s in (1, 5, 10, 16, 22): stamp(e, f"p4s{s}")
        if s + 2 >= 10 and (s + 2) % 2 == 0 and (s + 2) < 28: q.wait(w4[(s + 2) >> 1])
        if s in rdtok: e.wait_lds(rdtok[s])
        q.wait(th[(s, 1)])
        mains = []
        for i in range(2):
            for c in range(2):
                z = "0" if s == 0 else None
                if s < 10:
                    mains.append(lambda i=i, c=c, z=z: mfma(e, ACCB + (2*i + c)*16, W4A + (2*s + c)*4, ((s % HD)*2 + i)*4, aa=True, ba=True, c=z))
                else:
                    mains.append(lambda i=i, c=c, z=z: mfma(e, ACCB + (2*i + c)*16, WFS[s % 3] + 4*c, ((s % HD)*2 + i)*4, ba=True, c=z))
        toks = []
        fl = [(lambda f=f: toks.append(f())) for f in read_fns(s + 2)]
        fl.insert(0, lambda: q.pop(1)); fl.insert(min(3, len(fl)), lambda: q.pop(1))
        interleave(mains, fl)
        if toks: rdtok[s + 2] = toks[-1]
        if s + HD < 28: hpush(s + HD)
    stamp(e, "p4B")
    for i in range(2):
        for c in range(2):
            qq = 2*i + c
            for p in range(8):
                e(f"v_pk_fma_f32 {vr(ACCB+16*qq+2*p,2)}, {vr(ACCB+16*qq+2*p,2)}, {vr(OMG[i],2)}, {vr(ACCA+16*qq+2*p,2)} op_sel_hi:[1,0,1]")
    aw = vA + 8
    e(f"s_lshl_b32 s{sT0}, s{sW}, 14\nv_add_u32 v{aw}, s{sT0}, v{vL16}")
    for k in range(1, 4):
        for rg in range(4): e.lds(f"ds_write_b128 v{aw}, {vr(ACCB + 16*k + 4*rg, 4)} offset:{(k-1)*4096 + rg*1024}")
    for k in range(1, 4):
        e(f"s_xor_b32 s{sT0}, s{sW}, {k}\ns_lshl_b32 s{sT0}, s{sT0}, 14\nv_add_u32 v{aw+k}, s{sT0}, v{vL16}")
    e.wait_lds_all()
    e("s_barrier")
    toks = []
    for k in range(1, 4):
        for rg in range(4): toks.append(e.lds(f"ds_read_b128 {vr(ACCB + 16*k + 4*rg, 4)}, v{aw+k} offset:{(k-1)*4096 + rg*1024}"))
    for k in range(1, 4):
        e.wait_lds(toks[4*k-1])
        for p in range(8): e(f"v_pk_add_f32 {vr(ACCB+2*p,2)}, {vr(ACCB+2*p,2)}, {vr(ACCB+16*k+2*p,2)}")
    stamp(e, "p4red")
    for k in range(8):
        e(f"v_lshlrev_b32 v{t}, 16, v{vRES+k}\nv_and_b32 v{t+1}, 0xffff0000, v{vRES+k}")
        e(f"v_pk_fma_f32 {vr(ACCB+2*k,2)}, {vr(t,2)}, {vr(OMG[0],2)}, {vr(ACCB+2*k,2)} op_sel_hi:[1,0,1]")
        e(f"v_cvt_pk_bf16_f32 v{128+k}, v{ACCB+2*k}, v{ACCB+2*k+1}")
    for pr in range(2):
        a, b = 128 + 4*pr, 128 + 4*pr + 2
        e(f"v_permlane32_swap_b32 v{a}, v{b}\nv_permlane32_swap_b32 v{a+1}, v{b+1}")
    e(f"s_lshl_b32 s{sT2}, s{sTB}, 6\ns_lshl_b32 s{sT3}, s{sI}, 5\ns_add_u32 s{sT2}, s{sT2}, s{sT3}")
    e(f"v_add_u32 v{t}, s{sT2}, v{vT}\nv_lshlrev_b32 v{t}, 10, v{t}")
    e(f"s_lshl_b32 s{sT2}, s{sFB}, 7\ns_lshl_b32 s{sT3}, s{sC}, 6\ns_add_u32 s{sT2}, s{sT2}, s{sT3}")
    e(f"v_lshlrev_b32 v{t+1}, 4, v{vHH}\nv_add3_u32 v{t}, v{t}, v{t+1}, s{sT2}")
    for pr in range(2):
        e.vm(f"buffer_store_dwordx4 {vr(128+4*pr,4)}, v{t}, {srd(S_OUT)}, 0 offen offset:{32*pr}", "store")

def build():
    e = E(); q = VQ(e)
    prologue(e, q)
    xrefs, wrefs = {}, {}
    if X("ALLTOUCH", "1") != "0":
        touch_all(e, [(S_AX, 2097152), (S_WQKV, 512*3072), (S_W1, 524288)], 32)
    def fg():
        e(f"s_mov_b32 m0, {PA_GW}")
        return e.vm(f"buffer_load_dwordx4 v{vL16}, {srd(S_GW)}, 0 offen lds")
    q.push(fg)
    xrefs[0] = push_x(q, 0); wrefs[0] = push_wab(q, 0)
    if X("CT2"): q.push(lambda: touch_chunks(e, 1, 8))
    q.drain()
    wrefs[1] = push_wab(q, 1); xrefs[1] = push_x(q, 1)
    for c in range(2, 5): wrefs[c] = push_wab(q, c)
    common_addr(e)
    q.pop(4)
    for k in range(4): e(f"s_mov_b32 s{S_W3T+k}, s{S_W3+k}")
    e(f"s_cmp_ge_u32 s{sV}, 14\ns_cselect_b32 s{S_W3+2}, 0, s{S_W3+2}")
    e(f"s_mov_b32 s{sC_LOG2E}, 0x3fb8aa3b\ns_mov_b32 s{sC_LOG2E+1}, 0x3fb8aa3b")
    c0 = -2.0 * 0.7978845608028654 * 1.4426950408889634; c1 = c0 * 0.044715
    e(f"s_mov_b32 s{sC_G1}, {f2u(c1):#x}\ns_mov_b32 s{sC_G1+1}, {f2u(c1):#x}")
    e(f"s_mov_b32 s{sC_EPS6}, 0x358637bd\ns_mov_b32 s{sC_EPS6+1}, 0x358637bd\ns_mov_b32 s{sONES}, 0x3f803f80")
    e(f"v_mov_b32 v{vG0C}, {f2u(c0):#x}\nv_mov_b32 v{vG0C+1}, {f2u(c0):#x}")
    stamp(e, "iss14")
    t = vT0
    e(f"s_lshl_b32 s{sT2}, s{sTB}, 6\ns_lshl_b32 s{sT3}, s{sI}, 5\ns_add_u32 s{sT2}, s{sT2}, s{sT3}")
    e(f"v_add_u32 v{vA+15}, s{sT2}, v{vT}\nv_lshlrev_b32 v{vA+15}, 10, v{vA+15}")
    e(f"s_lshl_b32 s{sT2}, s{sFB}, 7\ns_lshl_b32 s{sT3}, s{sC}, 6\ns_add_u32 s{sT2}, s{sT2}, s{sT3}")
    e(f"v_lshlrev_b32 v{t+1}, 3, v{vHH}\nv_add3_u32 v{vA+15}, v{vA+15}, v{t+1}, s{sT2}")
    e("s_waitcnt lgkmcnt(0)")
    e(f"s_mul_i32 s{sTAG}, s{sTAG}, 1664525\ns_add_u32 s{sTAG}, s{sTAG}, 1013904223")
    l = e.newlabel("Lpub0")
    e(f"s_cmp_lg_u32 s{sW}, 0\ns_cbranch_scc1 {l}")
    e(teamflag(WS_PUB))
    e(f"s_and_b32 s{sT3}, s{sTAG}, 0xfffffff0\ns_or_b32 s{sT3}, s{sT3}, s{sXCC}")
    e(f"v_mov_b32 v{vT0}, s{sT3}\nv_mov_b32 v{vT0+1}, 0\nv_cmp_eq_u32 vcc, 0, v{vLANE}\ns_and_saveexec_b64 s[{sSAVE}:{sSAVE+1}], vcc")
    e(f"buffer_store_dword v{vT0}, v{vT0+1}, {srd(S_WS)}, s{sT2} offen sc1")
    e(f"s_mov_b64 exec, s[{sSAVE}:{sSAVE+1}]")
    e.label(l)
    e.vm_kinds.append("store"); e.vm_n += 1
    stamp(e, "pro")
    w2refs, tokh = stage_ab1(e, q, xrefs, wrefs)
    stamp(e, "hst")
    a1_epilogue(e, q, w2refs, tokh)
    stamp(e, "a1epi")
    poll(e, f"s_lshl_b32 s{sT2}, s{sU}, 7\ns_and_b32 s{sT3}, s{sTB}, 1\ns_lshl_b32 s{sT3}, s{sT3}, 5\ns_add_u32 s{sT2}, s{sT2}, s{sT3}\ns_add_u32 s{sT2}, s{sT2}, {WS_FB1}", 8)
    stamp(e, "b2poll")
    tok = stage_b2(e, q)
    touch_code(e, "L_b3start")
    tok = e.vm_n - 1 if False else tok
    lk = e.newlabel("Lcs")
    e(f"s_cmp_ge_u32 s{sV}, 14\ns_cbranch_scc1 {lk}")
    b3_colsum(e, 0)
    e.label(lk)
    publish(e, teamflag(WS_FB2))
    stamp(e, "b2pub")
    touch16(e, S_W4, 2)
    la2 = e.newlabel("LA2"); lj = e.newlabel("LJ")
    e(f"s_cmp_ge_u32 s{sV}, 14\ns_cbranch_scc1 {la2}")
    e.L.append("L_b3start: ; @soft")
    b3_colsum(e, 1)
    stamp(e, "b3cs")
    wo, w4, tk, tp, tokst = stage_b3(e, q)
    stamp(e, "b3epi")
    snap = (e.vm_n, list(e.vm_kinds), e.vm_done, e.ld_n, e.ld_done)
    e(f"s_branch {lj}")
    e.label(la2)
    stage_a2(e, q)
    e.label(lj)
    e.vm_n, e.vm_kinds, e.vm_done, e.ld_n, e.ld_done = snap
    e.wait_lds_all()
    stage_p4(e, q, wo, w4, tk, tp, tokst)
    stamp(e, "end")
    stamp_flush(e)
    e.wait_vm_all()
    e.label("L_end")
    e("s_endpgm")
    e.label("L_codeend")
    body = e.text()
    return kernel_file([dict(name=KN, body=body, grid=256, block=256, lds=LDS_BYTES, vgpr=512, accum=256, sgpr=102)]), e

if __name__ == "__main__":
    txt, e = build()
    open(sys.argv[1], "w").write(txt)
    n = sum(1 for l in txt.split("\n") if l.startswith("    ") and not l.strip().startswith(";"))
    print("instructions:", n, "nops inserted:", e.nops_inserted)
    open(sys.argv[1] + ".stamps", "w").write(" ".join(STAMPS))
```

```python
import sys, os, struct
sys.path.insert(0, os.path.dirname(os.path.abspath(__file__)))
from emit import E
from asmlib import KN, kernel_file
def X(n, d=None):
    v = os.environ.get(n)
    return v if v is not None else d
WS_EPOCH = 0x0
WS_PUB, WS_FB1, WS_FB2, WS_FB3 = 0x1000, 0x2000, 0x3000, 0x4000
WS_FA1 = 0x5000
WS_FA2 = 0x6000
WS_TS = 0x20000
WS_HSH, WS_X1, WS_PQ, WS_ST2, WS_KVT, WS_KVP, WS_H2 = 0x100000, 0x300000, 0x500000, 0x700000, 0x780000, 0x800000, 0x1000000
WS_SIZE = 0x10000000
XM = 4352
def SL(k): return 69632 + 16384 * k
PA = 151552
PA_GW, PA_G, PA_ST, PA_CS3 = PA, PA + 1024, PA + 1536, PA + 5632
LDS_BYTES = 163840
P4B = 36864
S_AX, S_WQKV, S_WO, S_DS, S_W1, S_W2, S_W3, S_W4, S_OUT, S_WS, S_GW = 4, 8, 12, 16, 20, 24, 28, 32, 36, 40, 44
sW, sTB, sFB, sU, sV, sTAG, sPURE, sXCC = 48, 49, 50, 51, 52, 53, 54, 55
sT0, sT1, sT2, sT3, sT4, sT5 = 56, 57, 58, 59, 60, 61
sSAVE = 62
sQA, sQW, sQSTEP, sJ = 64, 65, 66, 67
sB0, sB1, sB2, sB3 = 68, 69, 70, 71
sC_LOG2E, sC_G1, sC_EPS6 = 72, 74, 76
sONES = 78
sB4, sB5, sB6, sB7 = 80, 81, 82, 83
sI, sC, sSPIN, sDELTA, sHEAD = 90, 91, 93, 94, 95
S_W3F = S_W3
S_W3T = 44
SIZES = {S_WQKV: 512*3072, S_W1: 524288, S_W2: 524288, S_W3: 512*3584, S_WO: 524288, S_W4: 1792*1024}
vLANE, vT, vHH, vL16, vL128 = 1, 2, 3, 4, 5
vAN, vAP = 6, 8
vW1K, vW3, vWAB, vXO, vXE = 10, 14, 18, 22, 26
vJUNK = 27
vG0C = 28
vRES = 30
vA = 38
vT0 = 54
vPUB = 63
vTCH = 50
vTS = 0
PROFILE = not X("NOPROF")
STAMPS = []
def srd(n): return f"s[{n}:{n+3}]"
def vr(a, n=1): return f"v{a}" if n == 1 else f"v[{a}:{a+n-1}]"
def ar(a, n=1): return f"a{a}" if n == 1 else f"a[{a}:{a+n-1}]"
def f2u(x): return struct.unpack("<I", struct.pack("<f", x))[0]

class Ref:
    def __init__(self): self.tok = None
class VQ:
    def __init__(self, e): self.e = e; self.q = []
    def push(self, fn):
        r = Ref(); self.q.append((fn, r)); return r
    def pop(self, n=1):
        for _ in range(n):
            if not self.q: return
            fn, r = self.q.pop(0); r.tok = fn()
    def force(self, r):
        while r.tok is None: self.pop(1)
    def wait(self, r):
        if isinstance(r, (list, tuple)): r = r[-1]
        self.force(r); self.e.wait_vm(r.tok)
    def drain(self): self.pop(len(self.q))
    def take(self, n=None):
        n = len(self.q) if n is None else min(n, len(self.q))
        items, self.q = self.q[:n], self.q[n:]
        return Stag(self.e, items)
class Stag:
    def __init__(self, e, items): self.e = e; self.items = items; self.n0 = None
    def point(self, k):
        e = self.e
        if not self.items: return
        if k == 0: self.n0 = e.vm_n
        else:
            assert e.vm_n == self.n1, "VMEM issued inside a stagger region"
            del e.vm_kinds[self.n0:]; e.vm_n = self.n0
        l = e.skip_begin(f"s_cmp_lg_u32 s{sW}, {k}")
        for fn, r in self.items: r.tok = fn()
        e.skip_end(l)
        self.n1 = e.vm_n

def stamp(e, name):
    if not PROFILE: return
    idx = len(STAMPS); STAMPS.append(str(name)); assert idx < 62
    e(f"s_memtime s[96:97]\ns_waitcnt lgkmcnt(0)\ns_sub_u32 s96, s96, s98\nv_writelane_b32 v{vTS}, s96, {idx}")
    e.ld_done = e.ld_n
def stamp_flush(e):
    if not PROFILE: return
    e(f"s_memrealtime s[96:97]\ns_waitcnt lgkmcnt(0)\nv_writelane_b32 v{vTS}, s96, 63\nv_writelane_b32 v{vTS}, s100, 62")
    e(f"s_lshl_b32 s{sT0}, s2, 2\ns_add_u32 s{sT0}, s{sT0}, s{sW}\ns_lshl_b32 s{sT0}, s{sT0}, 8\ns_add_u32 s{sT0}, s{sT0}, {WS_TS}")
    e(f"v_lshlrev_b32 v{vT0}, 2, v{vLANE}")
    e.vm(f"buffer_store_dword v{vTS}, v{vT0}, {srd(S_WS)}, s{sT0} offen", "store")

def push_dma_group(q, voff, srdn, setup, n=4):
    e = q.e; refs = []
    for j in range(n):
        def fn(j=j):
            if j == 0: e(setup)
            off = f" offset:{1024*j}" if j else ""
            return e.vm(f"buffer_load_dwordx4 v{voff+j}, {srd(srdn)}, s{sQA} offen{off} lds")
        refs.append(q.push(fn))
    return refs
def push_touch(q, srdn, share, k0, n):
    e = q.e
    for k in range(n):
        def fn(k=k):
            e(f"s_mul_i32 s{sQA}, s{sJ}, {share}\ns_lshl_b32 s{sT5}, s{sW}, 13\ns_add_u32 s{sQA}, s{sQA}, s{sT5}")
            if k0 + k: e(f"s_add_u32 s{sQA}, s{sQA}, {(k0+k)*32768}")
            return e.vm(f"buffer_load_dword v{vJUNK}, v{vL128}, {srd(srdn)}, s{sQA} offen")
        q.push(fn)

def touch_blk(e, srdn, blk0):
    e(f"s_lshl_b32 s{sQA}, s{sJ}, 2\ns_add_u32 s{sQA}, s{sQA}, s{sW}" + (f"\ns_add_u32 s{sQA}, s{sQA}, {blk0}" if blk0 else "") + f"\ns_lshl_b32 s{sQA}, s{sQA}, 13")
    return e.vm(f"buffer_load_dword v{vJUNK}, v{vL128}, {srd(srdn)}, s{sQA} offen")
def touch16(e, srdn, k):
    en = X("T16", "wo,w4").split(",")
    nm = {S_W2: "w2", S_W3T: "w3", S_WO: "wo", S_W4: "w4"}[srdn]
    if nm not in en: return None
    e(f"s_lshl_b32 s{sQA}, s{sJ}, 2\ns_add_u32 s{sQA}, s{sQA}, s{sW}\ns_lshl_b32 s{sQA}, s{sQA}, 11" + (f"\ns_add_u32 s{sQA}, s{sQA}, {k*262144}" if k else ""))
    e("s_mov_b64 exec, 0xffff")
    tk = e.vm(f"buffer_load_dword v{vJUNK}, v{vL128}, {srd(srdn)}, s{sQA} offen")
    e("s_mov_b64 exec, -1")
    return tk
def touch_chunk(e, c):
    e(f"s_lshl_b32 s{sQA}, s{sJ}, 2\ns_add_u32 s{sQA}, s{sQA}, s{sW}\ns_cmp_lt_u32 s{sQA}, 96")
    e(f"s_cselect_b32 s84, s{S_WQKV}, s{S_W1}\ns_cselect_b32 s85, s{S_WQKV+1}, s{S_W1+1}\ns_cselect_b32 s86, s{S_WQKV+2}, s{S_W1+2}\ns_mov_b32 s87, 0x20000")
    e(f"s_mov_b32 s{sT5}, {c*32768 - 96*1024}\ns_cselect_b32 s{sT5}, {c*98304}, s{sT5}\ns_lshl_b32 s{sQA}, s{sQA}, 10\ns_add_u32 s{sQA}, s{sQA}, s{sT5}")
    e("s_mov_b64 exec, 0xff")
    tk = e.vm(f"buffer_load_dword v{vJUNK}, v{vL128}, s[84:87], s{sQA} offen")
    e("s_mov_b64 exec, -1")
    return tk
def set_exec(n):
    if n <= 32: return f"s_mov_b64 exec, {hex((1 << n) - 1)}" if n < 32 else "s_mov_b32 exec_lo, -1\ns_mov_b32 exec_hi, 0"
    return f"s_mov_b32 exec_hi, {hex((1 << (n - 32)) - 1)}"
def touch_chunks(e, c0, nch):
    e(f"s_lshl_b32 s{sQA}, s{sJ}, 2\ns_add_u32 s{sQA}, s{sQA}, s{sW}\ns_cmp_lt_u32 s{sQA}, 96")
    e(f"s_cselect_b32 s84, s{S_WQKV}, s{S_W1}\ns_cselect_b32 s85, s{S_WQKV+1}, s{S_W1+1}\ns_cselect_b32 s86, s{S_WQKV+2}, s{S_W1+2}\ns_mov_b32 s87, 0x20000")
    e(f"s_mov_b32 s{sT5}, 32768\ns_cselect_b32 s{sT5}, 98304, s{sT5}")
    e(f"v_lshrrev_b32 v{vTCH}, 3, v{vLANE}\nv_mul_lo_u32 v{vTCH}, v{vTCH}, s{sT5}\nv_and_b32 v{vTCH+1}, 7, v{vLANE}\nv_lshlrev_b32 v{vTCH+1}, 7, v{vTCH+1}\nv_add_u32 v{vTCH}, v{vTCH}, v{vTCH+1}")
    e(f"s_mul_i32 s{sT5}, s{sT5}, {c0}\ns_cmp_lt_u32 s{sQA}, 96\ns_cselect_b32 s83, 0, 96\ns_sub_u32 s{sQA}, s{sQA}, s83\ns_lshl_b32 s{sQA}, s{sQA}, 10\ns_add_u32 s{sQA}, s{sQA}, s{sT5}")
    if nch < 8: e(set_exec(8*nch))
    tk = e.vm(f"buffer_load_dword v{vJUNK}, v{vTCH}, s[84:87], s{sQA} offen")
    if nch < 8: e("s_mov_b64 exec, -1")
    return tk
def touch_all(e, segs, lanes):
    blk = lanes * 128
    e(f"s_lshl_b32 s{sQA}, s2, 2\ns_add_u32 s{sQA}, s{sQA}, s{sW}")
    sr0 = segs[0][0]
    e(f"s_mov_b32 s84, s{sr0}\ns_mov_b32 s85, s{sr0+1}\ns_mov_b32 s86, {segs[0][1]}\ns_mov_b32 s87, 0x20000\ns_mov_b32 s{sT5}, 0")
    lo = 0
    for k in range(1, len(segs)):
        assert segs[k-1][1] % blk == 0
        lo += segs[k-1][1] // blk
        sr = segs[k][0]
        e(f"s_cmp_ge_u32 s{sQA}, {lo}\ns_cselect_b32 s84, s{sr}, s84\ns_cselect_b32 s85, s{sr+1}, s85\ns_cselect_b32 s86, {segs[k][1]}, s86\ns_cselect_b32 s{sT5}, {lo}, s{sT5}")
    assert lo + -(-segs[-1][1] // blk) <= 1024, lo
    e(f"s_sub_u32 s{sQA}, s{sQA}, s{sT5}\ns_mul_i32 s{sQA}, s{sQA}, {blk}")
    if lanes < 64: e(set_exec(lanes))
    tk = e.vm(f"buffer_load_dword v{vJUNK}, v{vL128}, s[84:87], s{sQA} offen")
    if lanes < 64: e("s_mov_b64 exec, -1")
    return tk
def touch_code(e, label):
    if X("CODETOUCH", "1") == "0": return None
    e(f"s_lshl_b32 s{sT5}, s{sW}, 13\ns_add_u32 s{sT5}, s{sT5}, {label}-L_pc\ns_min_u32 s{sT5}, s{sT5}, L_codeend-L_pc-8192")
    e(f"s_add_u32 s84, s88, s{sT5}\ns_addc_u32 s85, s89, 0")
    return e.vm(f"global_load_dword v{vJUNK}, v{vL128}, s[84:85]")
def touch_dst(e, setup_fn, nlanes):
    if X("DSTTOUCH", "1") == "0": return None
    reg = setup_fn()
    if nlanes < 64: e(f"s_mov_b64 exec, {hex((1 << nlanes) - 1)}")
    tk = e.vm(f"buffer_load_dword v{vJUNK}, v{vL128}, {srd(S_WS)}, s{reg} offen")
    if nlanes < 64: e("s_mov_b64 exec, -1")
    return tk
def touch_round0(e):
    e(f"s_lshl_b32 s{sQA}, s{sJ}, 2\ns_add_u32 s{sQA}, s{sQA}, s{sW}\ns_cmp_lt_u32 s{sQA}, 64")
    for k in range(4): e(f"s_cselect_b32 s{S_DS+k}, s{S_WO+k}, s{S_W4+k}")
    e(f"s_cselect_b32 s{sT5}, 0, 64\ns_sub_u32 s{sQA}, s{sQA}, s{sT5}\ns_lshl_b32 s{sQA}, s{sQA}, 13")
    return e.vm(f"buffer_load_dword v{vJUNK}, v{vL128}, {srd(S_DS)}, s{sQA} offen")
def set_voffW(e, dst, ld):
    t = vT0
    e(f"v_lshrrev_b32 v{t}, 3, v{vLANE}\nv_mul_u32_u24 v{t}, {ld}, v{t}")
    e(f"v_lshrrev_b32 v{t+1}, 2, v{vLANE}\nv_lshrrev_b32 v{t+2}, 4, v{vLANE}\nv_xor_b32 v{t+1}, v{t+1}, v{t+2}\nv_and_b32 v{t+1}, 1, v{t+1}")
    e(f"v_lshlrev_b32 v{t+1}, 6, v{t+1}\nv_and_b32 v{t+2}, 3, v{vLANE}\nv_lshlrev_b32 v{t+2}, 4, v{t+2}")
    e(f"v_add3_u32 v{dst}, v{t}, v{t+1}, v{t+2}")
    for j in range(1, 4): e(f"v_add_u32 v{dst+j}, {j*(8*ld-1024)}, v{dst}")

def flag_store(e, soff, sc):
    e(f"v_mov_b32 v{vT0}, s{sTAG}\nv_mov_b32 v{vT0+1}, 0")
    e(f"v_cmp_eq_u32 vcc, 0, v{vLANE}\ns_and_saveexec_b64 s[{sSAVE}:{sSAVE+1}], vcc")
    e(f"buffer_store_dword v{vT0}, v{vT0+1}, {srd(S_WS)}, s{soff} offen {sc}")
    e(f"s_mov_b64 exec, s[{sSAVE}:{sSAVE+1}]")
def publish(e, setup, always_slow=False, upto=None):
    if upto is None: e.wait_vm_all()
    else: e.wait_vm(upto)
    e("s_barrier")
    l = e.newlabel("Lpub")
    e(f"s_cmp_lg_u32 s{sW}, 0\ns_cbranch_scc1 {l}")
    e(setup)
    if always_slow: flag_store(e, sT2, "sc1")
    else:
        l2 = e.newlabel("Lpub"); l3 = e.newlabel("Lpub")
        e(f"s_cmp_eq_u32 s{sPURE}, 0\ns_cbranch_scc1 {l2}")
        flag_store(e, sT2, "")
        e(f"s_branch {l3}")
        e.label(l2)
        flag_store(e, sT2, "sc1")
        e.label(l3)
    e.label(l)
    e.vm_kinds.append("store"); e.vm_n += 1
def poll(e, setup, nflags):
    l = e.newlabel("Lpoll"); lx = e.newlabel("Lpollx"); ls = e.newlabel("Lpolls")
    e(f"s_cmp_lg_u32 s{sW}, 0\ns_cbranch_scc1 {ls}")
    e(setup)
    e(f"v_lshlrev_b32 v{vT0+1}, 2, v{vLANE}")
    e(f"v_cmp_gt_u32 vcc, {nflags}, v{vLANE}\ns_and_saveexec_b64 s[{sSAVE}:{sSAVE+1}], vcc")
    e(f"s_mov_b32 s{sSPIN}, 0x40000")
    e.label(l)
    e(f"s_sub_u32 s{sSPIN}, s{sSPIN}, 1\ns_cmp_eq_u32 s{sSPIN}, 0\ns_cbranch_scc1 {lx}")
    e(f"buffer_load_dword v{vT0}, v{vT0+1}, {srd(S_WS)}, s{sT2} offen sc1")
    e("s_waitcnt vmcnt(0)")
    e(f"v_cmp_ne_u32 vcc, s{sTAG}, v{vT0}")
    e(f"s_cbranch_vccnz {l}")
    e.label(lx)
    e(f"s_mov_b64 exec, s[{sSAVE}:{sSAVE+1}]")
    e.label(ls)
    e("s_barrier")
def wt(name): return name in X("WT", "h,pq,x1,h2").split(",")
def stores2(e, fn, name=None):
    if name and wt(name):
        fn("sc1"); return e.vm_n - 1
    l2 = e.newlabel("Lst"); l3 = e.newlabel("Lst")
    e(f"s_cmp_eq_u32 s{sPURE}, 0\ns_cbranch_scc1 {l2}")
    n0 = e.vm_n; fn(""); n1 = e.vm_n
    e(f"s_branch {l3}")
    e.label(l2)
    del e.vm_kinds[n0:]; e.vm_n = n0
    fn("sc1"); assert e.vm_n == n1
    e.label(l3)
    return n1 - 1
def tr_frag(e, dst, addr, off, second, acc=False):
    r = ar if acc else vr
    e.lds(f"ds_read_b64_tr_b16 {r(dst,2)}, v{addr} offset:{off}")
    return e.lds(f"ds_read_b64_tr_b16 {r(dst+2,2)}, v{addr} offset:{off+second}")
def mfma(e, d, a, b, c=None, aa=False, ba=False):
    A = ar(a, 4) if aa else vr(a, 4); B = ar(b, 4) if ba else vr(b, 4)
    C = vr(d, 16) if c is None else c
    e(f"v_mfma_f32_32x32x16_bf16 {vr(d,16)}, {A}, {B}, {C}")
def interleave(mains, fillers):
    n = len(mains); m = len(fillers); k = 0
    for i, f in enumerate(mains):
        f()
        upto = (m * (i + 1) + n - 1) // n if i + 1 < n else m
        while k < upto: fillers[k](); k += 1
def gelu_pairs(e, accs, rstd, tmp, outs, q=None, npop=0):
    n = len(accs); P = lambda r: vr(r, 2)
    steps = [
        lambda k: f"v_pk_mul_f32 {P(accs[k])}, {P(accs[k])}, {P(rstd)} op_sel_hi:[1,0]",
        lambda k: f"v_pk_mul_f32 {P(tmp[k])}, {P(accs[k])}, {P(accs[k])}",
        lambda k: f"v_pk_fma_f32 {P(tmp[k])}, {P(tmp[k])}, s[{sC_G1}:{sC_G1+1}], {P(vG0C)}",
        lambda k: f"v_pk_mul_f32 {P(tmp[k])}, {P(tmp[k])}, {P(accs[k])}",
        lambda k: f"v_exp_f32 v{tmp[k]}, v{tmp[k]}\nv_exp_f32 v{tmp[k]+1}, v{tmp[k]+1}",
        lambda k: f"v_pk_add_f32 {P(tmp[k])}, {P(tmp[k])}, 1.0 op_sel_hi:[1,0]",
        lambda k: f"v_rcp_f32 v{tmp[k]}, v{tmp[k]}\nv_rcp_f32 v{tmp[k]+1}, v{tmp[k]+1}",
        lambda k: f"v_pk_mul_f32 {P(accs[k])}, {P(accs[k])}, {P(tmp[k])}",
        lambda k: f"v_cvt_pk_bf16_f32 v{outs[k]}, v{accs[k]}, v{accs[k]+1}"]
    left = npop
    for si, st in enumerate(steps):
        for k in range(n): e(st(k))
        if q is not None and left > 0:
            m = -(-left // (len(steps) - si)); q.pop(m); left -= m
def halfsum(e, r, t):
    e(f"v_mov_b32 v{t}, v{r}\nv_permlane32_swap_b32 v{r}, v{t}\nv_add_f32 v{r}, v{r}, v{t}")
def corr_frags(e, cs, negmean, A, B, t):
    if cs is not None:
        e(f"v_cvt_pk_bf16_f32 v{t}, v{cs}, v{cs}\nv_and_b32 v{t}, 0xffff0000, v{t}\nv_sub_f32 v{t}, v{cs}, v{t}")
        e(f"v_cvt_pk_bf16_f32 v{A}, v{cs}, v{t}\nv_mov_b32 v{A+1}, v{A}\nv_mov_b32 v{A+2}, 0\nv_mov_b32 v{A+3}, 0")
    if negmean is not None:
        e(f"v_cvt_pk_bf16_f32 v{B}, v{negmean}, v{negmean}\nv_and_b32 v{t}, 0xffff0000, v{B}\nv_sub_f32 v{t}, v{negmean}, v{t}")
        e(f"v_cvt_pk_bf16_f32 v{B+1}, v{t}, v{t}\nv_mov_b32 v{B+2}, 0\nv_mov_b32 v{B+3}, 0")
def ln_stats(e, S, Q, negmean, rstd, t):
    e(f"v_mul_f32 v{negmean}, 0xbb000000, v{S}\nv_mul_f32 v{t}, 0x3b000000, v{Q}")
    e(f"v_fma_f32 v{t}, -v{negmean}, v{negmean}, v{t}\nv_max_f32 v{t}, 0, v{t}\nv_add_f32 v{t}, 0x3727c5ac, v{t}\nv_rsq_f32 v{rstd}, v{t}")
def frag_soff(e, dst, base, nks, ks_lines, blk=None):
    blk = sI if blk is None else blk
    e(ks_lines)
    e(f"s_lshl_b32 s{sT2}, s{sTB}, 1\ns_add_u32 s{sT2}, s{sT2}, s{blk}\ns_mul_i32 s{sT2}, s{sT2}, {nks}\ns_add_u32 s{sT2}, s{sT2}, s{sT3}")
    e(f"s_lshl_b32 s{sT2}, s{sT2}, 10\ns_add_u32 s{dst}, s{sT2}, {base}")
def own_soff_q(e, base, nks):
    e(f"s_lshl_b32 s{sQA}, s{sTB}, 1\ns_add_u32 s{sQA}, s{sQA}, s{sI}\ns_mul_i32 s{sQA}, s{sQA}, {nks}\ns_lshl_b32 s{sT5}, s{sFB}, 2\ns_add_u32 s{sQA}, s{sQA}, s{sT5}")
    e(f"s_lshl_b32 s{sT5}, s{sC}, 1\ns_add_u32 s{sQA}, s{sQA}, s{sT5}\ns_lshl_b32 s{sQA}, s{sQA}, 10\ns_add_u32 s{sQA}, s{sQA}, {base}")
    return sQA
OWNKS = f"s_lshl_b32 s{sT3}, s{sFB}, 2\ns_lshl_b32 s{sT4}, s{sC}, 1\ns_add_u32 s{sT3}, s{sT3}, s{sT4}"
teamflag = lambda base: f"s_lshl_b32 s{sT2}, s{sU}, 7\ns_lshl_b32 s{sT3}, s{sV}, 2\ns_add_u32 s{sT2}, s{sT2}, s{sT3}\ns_add_u32 s{sT2}, s{sT2}, {base}"

def prologue(e, q):
    e(f"s_cmp_ge_u32 s2, 256\ns_cbranch_scc1 L_end")
    if PROFILE: e("s_memrealtime s[100:101]\ns_memtime s[98:99]")
    e(f"s_getpc_b64 s[{sT0}:{sT0+1}]")
    e.label("L_pc")
    e(f"s_mov_b32 s88, s{sT0}\ns_mov_b32 s89, s{sT1}")
    e("s_load_dwordx16 s[64:79], s[0:1], 0\ns_load_dwordx8 s[80:87], s[0:1], 64")
    for k in range(2):
        e(f"v_lshlrev_b32 v30, 7, v0" + (f"\nv_add_u32 v30, {0x8000*k}, v30" if k else "") + f"\nv_min_u32 v30, L_codeend-L_pc-4, v30\nv_mov_b32 v31, s{sT1}")
        e(f"v_add_co_u32 v30, vcc, s{sT0}, v30\nv_addc_co_u32 v31, vcc, 0, v31, vcc")
        e.vm(f"global_load_dword v{vJUNK}, v[30:31], off")
    e(f"v_and_b32 v{vLANE}, 63, v0\nv_lshrrev_b32 v{vT0}, 6, v0\nv_readfirstlane_b32 s{sW}, v{vT0}")
    e(f"v_and_b32 v{vT}, 31, v{vLANE}\nv_lshrrev_b32 v{vHH}, 5, v{vLANE}\nv_lshlrev_b32 v{vL16}, 4, v{vLANE}\nv_lshlrev_b32 v{vL128}, 7, v{vLANE}")
    e(f"s_and_b32 s{sT2}, s2, 7\ns_lshr_b32 s{sT3}, s2, 3")
    e(f"s_lshr_b32 s{sT4}, s{sT3}, 3\ns_lshl_b32 s{sTB}, s{sT2}, 2\ns_add_u32 s{sTB}, s{sTB}, s{sT4}")
    e(f"s_and_b32 s{sFB}, s{sT3}, 7\ns_lshr_b32 s{sU}, s{sTB}, 1\ns_and_b32 s{sV}, s{sT3}, 15")
    e(f"s_lshr_b32 s{sI}, s{sW}, 1\ns_and_b32 s{sC}, s{sW}, 1\ns_mov_b32 s92, s{sT3}")
    e(f"s_getreg_b32 s{sXCC}, hwreg(HW_REG_XCC_ID, 0, 4)")
    e(f"s_lshr_b32 s{sT2}, s{sFB}, 1\ns_lshr_b32 s{sT3}, s{sT2}, 1\ns_add_u32 s{sT3}, s{sT3}, 1")
    e(f"s_sub_u32 s{sT4}, 0, s{sT3}\ns_bitcmp1_b32 s{sT2}, 0\ns_cselect_b32 s{sDELTA}, s{sT4}, s{sT3}")
    t = vT0
    e(f"s_lshl_b32 s{sT4}, s{sTB}, 6\ns_sub_u32 s{sT4}, s{sT4}, 2")
    e(f"v_and_b32 v{t}, 3, v{vLANE}\nv_lshrrev_b32 v{t+1}, 4, v{vLANE}\nv_xor_b32 v{t}, v{t}, v{t+1}\nv_and_b32 v{t}, 3, v{t}\nv_lshlrev_b32 v{t}, 4, v{t}")
    e(f"v_lshrrev_b32 v{t+1}, 2, v{vLANE}\nv_add_u32 v{t+1}, s{sT4}, v{t+1}")
    for j in range(5):
        e(f"v_add_u32 v{t+2}, {16*j}, v{t+1}\nv_max_i32 v{t+2}, 0, v{t+2}\nv_min_i32 v{t+2}, 2047, v{t+2}")
        e(f"v_lshlrev_b32 v{t+2}, 10, v{t+2}\nv_add_u32 v{t+2}, v{t+2}, v{t}")
        if j == 0: e(f"v_mov_b32 v{vXO}, v{t+2}")
        elif j < 4: e(f"v_subrev_u32 v{vXO+j}, {1024*j}, v{t+2}")
        else: e(f"v_mov_b32 v{vXE}, v{t+2}")
    set_voffW(e, vW1K, 1024)
    set_voffW(e, vWAB, 3072)
    e(f"s_cmp_eq_u32 s{sW}, 3\ns_cselect_b64 vcc, -1, 0")
    for j in range(4): e(f"v_cndmask_b32 v{vWAB+j}, v{vWAB+j}, v{vW1K+j}, vcc")
    e("s_waitcnt lgkmcnt(0)")
    for dst, src, size in [(S_AX, 64, 2097152), (S_WQKV, 66, 512*3072), (S_W1, 72, 524288), (S_WS, 86, WS_SIZE), (S_GW, 80, 1024), (S_W2, 74, 524288),
                           (S_WO, 68, 524288), (S_W3, 76, 512*3584), (S_W4, 78, 1792*1024), (S_OUT, 82, 2097152)]:
        e(f"s_mov_b32 s{dst}, s{src}\ns_mov_b32 s{dst+1}, s{src+1}\ns_mov_b32 s{dst+2}, {size}\ns_mov_b32 s{dst+3}, 0x20000")
    if PROFILE: e(f"v_mov_b32 v{vTS}, 0")
    stamp(e, "karg")
    e(f"s_load_dword s{sTAG}, s[{S_WS}:{S_WS+1}], 0")
    e(f"s_mov_b32 s{sJ}, s92")
    e(f"s_cmp_eq_u32 s{sW}, 3")
    for k in range(4): e(f"s_cselect_b32 s{S_DS+k}, s{S_W1+k}, s{S_WQKV+k}")
    e(f"s_lshl_b32 s{sT2}, s{sW}, 10\ns_cmp_eq_u32 s{sW}, 3\ns_cselect_b32 s{sT2}, 0, s{sT2}\ns_mov_b32 s{sQSTEP}, {32*3072}\ns_cselect_b32 s{sQSTEP}, {32*1024}, s{sQSTEP}")
    e(f"s_lshl_b32 s{sT3}, s{sFB}, 7\ns_add_u32 s{sQW}, s{sT2}, s{sT3}")
    e(f"s_lshl_b32 s{sB0}, s{sW}, 12")
    e(f"s_mul_i32 s{sB1}, s{sW}, {XM}\ns_lshl_b32 s{sB2}, s{sW}, 6")

def push_x(q, qq):
    e = q.e
    refs = push_dma_group(q, vXO, S_AX, f"s_add_u32 m0, s{sB1}, {qq*4*XM}\ns_add_u32 s{sQA}, s{sB2}, {256*qq}")
    def fn():
        e(f"s_add_u32 m0, s{sB1}, {qq*4*XM + 4096}")
        e(f"s_mov_b64 exec, 0xffff")
        tk = e.vm(f"buffer_load_dwordx4 v{vXE}, {srd(S_AX)}, s{sQA} offen lds")
        e(f"s_mov_b64 exec, -1")
        return tk
    refs.append(q.push(fn))
    return refs
def push_wab(q, c):
    return push_dma_group(q, vWAB, S_DS, f"s_add_u32 m0, s{sB0}, {SL(c % 5)}\ns_mov_b32 s{sQA}, s{sQW}\ns_add_u32 s{sQW}, s{sQW}, s{sQSTEP}")
def push_w2(q, k):
    return push_dma_group(q, vW1K, S_W2, f"s_add_u32 m0, s{sB0}, {SL(1+k)}\ns_lshl_b32 s{sQA}, s{sW}, 15\ns_lshl_b32 s{sT5}, s{sFB}, 7\ns_add_u32 s{sQA}, s{sQA}, s{sT5}\ns_add_u32 s{sQA}, s{sQA}, {k*128*1024}")
def w3_lds(g): return g * 8192 if g < 8 else SL(0) + (g - 8) * 8192
def push_w3(q, gl, ps=(0, 1)):
    refs = []
    for p in ps:
        refs += push_dma_group(q, vW3, S_W3, f"s_lshl_b32 s{sQA}, s{sW}, 13\ns_add_u32 m0, s{sQA}, {w3_lds(4*gl) + p*4096}\n"
                               f"s_mul_i32 s{sQA}, s{sW}, {32*3584}\ns_lshl_b32 s{sT5}, s{sV}, 8\ns_add_u32 s{sQA}, s{sQA}, s{sT5}\ns_add_u32 s{sQA}, s{sQA}, {4*gl*32*3584 + 128*p}")
    return refs
def region_m0(reg, slot):
    if reg == "A": return f"s_lshl_b32 s{sQA}, s{sW}, 14\ns_add_u32 m0, s{sQA}, {slot*4096}"
    if reg == "B": return f"s_lshl_b32 s{sQA}, s{sW}, 14\ns_add_u32 m0, s{sQA}, {SL(0) + slot*4096}"
    return f"s_lshl_b32 s{sQA}, s{sW}, 12\ns_add_u32 m0, s{sQA}, {SL(4)}"
def push_wp(q, srdn, rows_per_wave, g, reg, slot):
    return push_dma_group(q, vW1K, srdn, region_m0(reg, slot) + "\n" +
                          f"s_mul_i32 s{sQA}, s{sW}, {rows_per_wave*1024}\ns_lshl_b32 s{sT5}, s{sFB}, 7\ns_add_u32 s{sQA}, s{sQA}, s{sT5}\ns_add_u32 s{sQA}, s{sQA}, {g*32*1024}")
W4LOC = {g: (("A", g) if g < 4 else ("C", 0)) for g in range(5)}
W4LOC.update({5 + g: (("A", g) if g < 4 else ("C", 0)) for g in range(5)})
W4LOC.update({10 + g: ("B", g) for g in range(4)})
def push_w4(q, g):
    reg, slot = W4LOC[g]
    return push_dma_group(q, vW1K, S_W4, region_m0(reg, slot) + "\n" +
                          f"s_lshl_b32 s{sQA}, s{sW}, 15\ns_lshl_b32 s{sT5}, s{sFB}, 7\ns_add_u32 s{sQA}, s{sQA}, s{sT5}\ns_add_u32 s{sQA}, s{sQA}, {g*128*1024}")
def push_wo(q, g): return push_wp(q, S_WO, 128, g, "B", g)
def set_region_addrs(e):
    sel_addrP(e, vA + 4)
    e(f"s_lshl_b32 s{sT2}, s{sW}, 14\nv_add_u32 v{vA}, s{sT2}, v{vA+4}\nv_add_u32 v{vA+1}, s{sT2}, v{vA+5}")
    e(f"v_add_u32 v{vA+2}, {SL(0)}, v{vA}\nv_add_u32 v{vA+3}, {SL(0)}, v{vA+1}")
    e(f"s_lshl_b32 s{sT2}, s{sW}, 12\ns_add_u32 s{sT2}, s{sT2}, {SL(4)}\nv_add_u32 v{vA+4}, s{sT2}, v{vA+4}\nv_add_u32 v{vA+5}, s{sT2}, v{vA+5}")
def region_addr(reg, slot, c):
    return vA + {"A": 0, "B": 2, "C": 4}[reg] + c, (slot*4096 if reg != "C" else 0)
W4A = 128
def w4_to_agpr_fns(e):
    fns = []
    for s in range(10):
        reg, slot = W4LOC[s >> 1]
        for c in range(2):
            a, off = region_addr(reg, slot, c); off += (s & 1)*2048; d = W4A + (2*s + c)*4
            fns.append(lambda a=a, off=off, d=d: e.lds(f"ds_read_b64_tr_b16 {ar(d,2)}, v{a} offset:{off}"))
            fns.append(lambda a=a, off=off, d=d: e.lds(f"ds_read_b64_tr_b16 {ar(d+2,2)}, v{a} offset:{off+1024}"))
    return fns

def common_addr(e):
    t = vT0
    e(f"v_and_b32 v{t}, 15, v{vLANE}\nv_lshrrev_b32 v{t}, 2, v{t}")
    e(f"v_and_b32 v{t+1}, 3, v{vLANE}\nv_lshlrev_b32 v{t+1}, 3, v{t+1}")
    e(f"v_lshrrev_b32 v{t+2}, 4, v{vLANE}\nv_and_b32 v{t+2}, 1, v{t+2}\nv_lshlrev_b32 v{t+2}, 5, v{t+2}")
    e(f"v_add_u32 v{t+1}, v{t+1}, v{t+2}\nv_lshrrev_b32 v{t+2}, 1, v{t}")
    e(f"v_lshlrev_b32 v{t+3}, 7, v{t}\nv_add_u32 v{t+1}, v{t+1}, v{t+3}")
    for c in range(2):
        e(f"v_xor_b32 v{t+3}, {c}, v{t+2}\nv_lshlrev_b32 v{t+3}, 6, v{t+3}\nv_add_u32 v{t+3}, v{t+3}, v{t+1}")
        e(f"v_lshlrev_b32 v{t+4}, 10, v{vHH}\nv_add_u32 v{vAN+c}, v{t+3}, v{t+4}")
        e(f"v_lshlrev_b32 v{t+4}, 9, v{vHH}\nv_add_u32 v{vAP+c}, v{t+3}, v{t+4}")
    set_voffW(e, vW3, 3584)

AQ, AK, AV, AH = 64, 80, 96, 112
def stage_ab1(e, q, xrefs, wrefs):
    t = vT0
    e(f"s_xor_b32 s{sT0}, s{sI}, s{sC}")
    for kind in range(2):
        e(f"s_lshl_b32 s{sT2}, s{sI}, 5\ns_add_u32 s{sT2}, s{sT2}, 2")
        if kind: e(f"s_sub_u32 s{sT2}, s{sT2}, s{sDELTA}")
        e(f"v_add_u32 v{t}, s{sT2}, v{vT}\nv_lshrrev_b32 v{t+1}, 2, v{t}\nv_and_b32 v{t+1}, 3, v{t+1}\nv_lshlrev_b32 v{t}, 6, v{t}")
        for sp in range(2):
            e(f"s_xor_b32 s{sT3}, s{sT0}, {sp}\ns_lshl_b32 s{sT3}, s{sT3}, 1")
            e(f"v_add_u32 v{t+2}, s{sT3}, v{vHH}\nv_xor_b32 v{t+2}, v{t+2}, v{t+1}\nv_lshlrev_b32 v{t+2}, 4, v{t+2}\nv_add_u32 v{vA+2*kind+sp}, v{t}, v{t+2}")
    e(f"s_cmp_eq_u32 s{sC}, 0\ns_cselect_b64 vcc, -1, 0\nv_cndmask_b32 v{t}, v{vAN+1}, v{vAN}, vcc")
    for sp in range(2):
        e(f"s_xor_b32 s{sT3}, s{sT0}, {sp}\ns_lshl_b32 s{sT3}, s{sT3}, 11")
        e(f"s_add_u32 s{sT4}, s{sT3}, {SL(0)}\nv_add_u32 v{vA+4+2*sp}, s{sT4}, v{t}\ns_add_u32 s{sT4}, s{sT3}, {SL(3)}\nv_add_u32 v{vA+5+2*sp}, s{sT4}, v{t}")
    e(f"s_lshl_b32 s{sT3}, s{sT0}, 5\ns_add_u32 s{sT3}, s{sT3}, {PA_GW}\nv_lshlrev_b32 v{vA+8}, 4, v{vHH}\nv_add_u32 v{vA+8}, s{sT3}, v{vA+8}")
    FS2 = [[128, 152], [176, 200]]
    GW2 = [224, 228]
    SUM, SQ, GA, CS = 232, 234, 236, 238
    for r in range(SUM, CS + 2): e(f"v_mov_b32 v{r}, 0")
    def read_fns(c):
        fns = []
        slot = c % 5; seg = 1 if slot >= 3 else 0; off = (slot - 3*seg) * 16384
        for sp in range(2):
            F = FS2[c & 1][sp]
            fns.append(lambda F=F, sp=sp: e.lds(f"ds_read_b128 {vr(F,4)}, v{vA+sp} offset:{c*XM}"))
            fns.append(lambda F=F, sp=sp: e.lds(f"ds_read_b128 {vr(F+4,4)}, v{vA+2+sp} offset:{c*XM}"))
            for m in range(4):
                a = vA + 4 + 2*sp + seg
                fns.append(lambda F=F, m=m, a=a: e.lds(f"ds_read_b64_tr_b16 {vr(F+8+4*m,2)}, v{a} offset:{off + m*4096}"))
                fns.append(lambda F=F, m=m, a=a: e.lds(f"ds_read_b64_tr_b16 {vr(F+10+4*m,2)}, v{a} offset:{off + m*4096 + 512}"))
            if sp == 0: fns.append(lambda: e.lds(f"ds_read_b128 {vr(GW2[c & 1],4)}, v{vA+8} offset:{c*64}"))
        return fns
    def mfma_fns(c):
        fns = []
        for sp in range(2):
            F = FS2[c & 1][sp]; z = "0" if (c == 0 and sp == 0) else None
            for (d, a, b) in [(AQ, F+8, F), (AK, F, F+12), (AV, F, F+16), (AH, F+20, F+4)]:
                fns.append(lambda d=d, a=a, b=b, z=z: mfma(e, d, a, b, c=z))
        return fns
    def dots(c):
        if X("NODOT"): return
        F = FS2[c & 1][0]; G = GW2[c & 1]
        for r in range(4):
            e(f"v_dot2c_f32_bf16 v{SUM+(r&1)}, s{sONES}, v{F+4+r}\nv_dot2c_f32_bf16 v{SQ+(r&1)}, v{F+4+r}, v{F+4+r}")
        for r in range(4):
            e(f"v_dot2c_f32_bf16 v{GA+(r&1)}, v{F+r}, v{G+r}\nv_dot2c_f32_bf16 v{CS+(r&1)}, s{sONES}, v{F+20+r}")
    w2refs = []
    for c in range(17):
        if c < 16:
            q.wait(wrefs[c])
            if c % 4 == 0: q.wait(xrefs[c // 4])
        e.wait_lds_all()
        if c < 16:
            if not X("NOBAR"): e("s_barrier")
            if c >= 1 and c + 4 < 16:
                wrefs[c + 4] = push_wab(q, c + 4)
                if X("NODMA"):
                    for fn, r in q.q: r.tok = -1
                    q.q = []
            if c == 1: xrefs[2] = push_x(q, 2)
            if c == 3: xrefs[3] = push_x(q, 3)
            if c >= 12: w2refs.append(push_w2(q, c - 12))
            extra_push(e, q, c)
        if c in (1, 5, 9, 13): stamp(e, f"ab{c}")
        fill = read_fns(c) if c < 16 else []
        npop = min(len(q.q), 8)
        pops = [lambda: q.pop(1)] * npop
        merged = []
        for k in range(max(len(fill), 1)):
            if k < len(fill): merged.append(fill[k])
            want = (npop * (k + 1)) // max(len(fill), 1)
            while sum(1 for f in merged if f in pops) < want and False: pass
        merged = []; pi = 0
        for k, f in enumerate(fill):
            merged.append(f)
            if k % (4 if npop <= 5 else 2) == 1 and pi < npop: merged.append(pops[pi]); pi += 1
        merged += pops[pi:]
        if c == 0:
            for f in merged: f()
        else:
            if X("DOTFIRST"): dots(c - 1)
            interleave(mfma_fns(c - 1), merged)
            if not X("DOTFIRST"): dots(c - 1)
    e.L.append("L_abend: ; @soft")
    stamp(e, "abmain")
    e(f"s_lshl_b32 s{sT2}, s{sI}, 5\ns_add_u32 s{sT2}, s{sT2}, 2\nv_add_u32 v{t}, s{sT2}, v{vT}\nv_lshrrev_b32 v{t+1}, 2, v{t}\nv_and_b32 v{t+1}, 3, v{t+1}")
    e(f"s_lshl_b32 s{sT2}, s{sFB}, 1\ns_add_u32 s{sT2}, s{sT2}, s{sC}\ns_mul_i32 s{sT2}, s{sT2}, {XM}")
    e(f"v_lshlrev_b32 v{t}, 6, v{t}\nv_lshlrev_b32 v{t+2}, 3, v{vHH}\nv_add3_u32 v{t}, v{t}, v{t+2}, s{sT2}")
    for j in range(4):
        e(f"v_xor_b32 v{t+2}, {j}, v{t+1}\nv_lshlrev_b32 v{t+2}, 4, v{t+2}\nv_add_u32 v{t+2}, v{t+2}, v{t}")
        e.lds(f"ds_read_b64 {vr(vRES+2*j,2)}, v{t+2}")
    e(f"v_add_f32 v{t}, v{SUM}, v{SUM+1}\nv_add_f32 v{t+1}, v{SQ}, v{SQ+1}\nv_add_f32 v{t+2}, v{GA}, v{GA+1}\nv_add_f32 v{t+3}, v{CS}, v{CS+1}")
    e(f"s_lshl_b32 s{sT2}, s{sW}, 10\ns_add_u32 s{sT2}, s{sT2}, {PA_ST}\nv_add_u32 v{vA}, s{sT2}, v{vL16}")
    e.lds(f"ds_write_b128 v{vA}, {vr(t,4)}")
    e.wait_lds_all()
    e("s_barrier")
    push_w3(q, 0, (0,)); q.drain(); touch16(e, S_W3T, 3)
    e(f"s_xor_b32 s{sT2}, s{sW}, 1\ns_lshl_b32 s{sT2}, s{sT2}, 10\ns_add_u32 s{sT2}, s{sT2}, {PA_ST}\nv_add_u32 v{vA}, s{sT2}, v{vL16}")
    e(f"s_xor_b32 s{sT2}, s{sW}, 2\ns_lshl_b32 s{sT2}, s{sT2}, 10\ns_add_u32 s{sT2}, s{sT2}, {PA_ST}\nv_add_u32 v{vA+1}, s{sT2}, v{vL16}")
    P = 128
    k0 = e.lds(f"ds_read_b96 {vr(P,3)}, v{vA}")
    k1 = e.lds(f"ds_read_b32 v{P+3}, v{vA+1} offset:12")
    e.wait_lds(k1)
    for r in range(4): e(f"v_add_f32 v{t+r}, v{t+r}, v{P+r}")
    halfsum(e, t, t+4); halfsum(e, t+1, t+4); halfsum(e, t+2, t+4)
    NM, RS = 132, 134
    ln_stats(e, t, t+1, NM, RS, t+4)
    e(f"v_mul_f32 v{t+2}, 0xbfb8aa3b, v{t+2}\nv_exp_f32 v{t+2}, v{t+2}\nv_add_f32 v{t+2}, 1.0, v{t+2}\nv_rcp_f32 v{t+2}, v{t+2}")
    e(f"s_lshl_b32 s{sT2}, s{sI}, 7\ns_add_u32 s{sT2}, s{sT2}, {PA_G}\nv_lshlrev_b32 v{t+5}, 2, v{vT}\nv_add_u32 v{t+5}, s{sT2}, v{t+5}")
    e.lds(f"ds_write_b32 v{t+5}, v{t+2}")
    e(f"s_lshl_b32 s{sT2}, s{sTB}, 6\ns_lshl_b32 s{sT3}, s{sI}, 5\ns_add_u32 s{sT2}, s{sT2}, s{sT3}\ns_sub_u32 s{sT2}, s{sT2}, s{sDELTA}")
    e(f"v_add_u32 v{t+4}, s{sT2}, v{vT}\nv_cmp_gt_u32 vcc, 2048, v{t+4}\nv_cndmask_b32 v{RS}, 0, v{RS}, vcc")
    corr_frags(e, t+3, NM, 136, 140, t+4)
    mfma(e, AH, 136, 140)
    q.drain()
    OUT = 144
    gelu_pairs(e, [AH + 2*k for k in range(4)], RS, [152 + 2*k for k in range(4)], [OUT + k for k in range(4)])
    push_w3(q, 0, (1,)); q.drain(); touch16(e, S_W3T, 4)
    gelu_pairs(e, [AH + 2*k for k in range(4, 8)], RS, [152 + 2*k for k in range(4, 8)], [OUT + k for k in range(4, 8)])
    stamp(e, "b1epi")
    purity(e)
    frag_soff(e, sB3, WS_HSH, 32, OWNKS)
    def st(sc):
        for h in range(2):
            e.vm(f"buffer_store_dwordx4 {vr(OUT+4*h,4)}, v{vL16}, {srd(S_WS)}, s{sB3} offen offset:{1024*h} {sc}", "store")
    tok = stores2(e, st, "h")
    if not wt("x1"):
        touch_dst(e, lambda: own_soff_q(e, WS_X1, 32), 16)
        def st2():
            e(f"s_lshl_b32 s{sQA}, s{sFB}, 1\ns_add_u32 s{sQA}, s{sQA}, s{sC}\ns_lshl_b32 s{sQA}, s{sQA}, 11\ns_lshl_b32 s{sT5}, s{sTB}, 6\ns_add_u32 s{sQA}, s{sQA}, s{sT5}")
            e(f"s_lshl_b32 s{sT5}, s{sI}, 5\ns_add_u32 s{sQA}, s{sQA}, s{sT5}\ns_lshl_b32 s{sQA}, s{sQA}, 3\ns_add_u32 s{sQA}, s{sQA}, {WS_ST2}")
            return sQA
        touch_dst(e, st2, 2)
    return w2refs, tok

def purity(e):
    l = e.newlabel("Lpur"); lx = e.newlabel("Lpurx"); lo = e.newlabel("Lpuro")
    t = vT0
    e.wait_vm(e.pub_ref.tok)
    e(f"s_and_b32 s{sT3}, s{sTAG}, 0xfffffff0\ns_mov_b32 s{sSPIN}, 0x40000")
    e(f"s_lshl_b32 s{sT2}, s{sU}, 7\ns_add_u32 s{sT2}, s{sT2}, {WS_PUB}")
    e.label(l)
    e(f"v_and_b32 v{t+2}, 0xfffffff0, v{vPUB}\nv_cmp_ne_u32 vcc, s{sT3}, v{t+2}\ns_cbranch_vccz {lo}")
    e(f"s_sub_u32 s{sSPIN}, s{sSPIN}, 1\ns_cmp_eq_u32 s{sSPIN}, 0\ns_cbranch_scc1 {lo}")
    e(f"v_and_b32 v{t+1}, 15, v{vLANE}\nv_lshlrev_b32 v{t+1}, 2, v{t+1}")
    e(f"buffer_load_dword v{vPUB}, v{t+1}, {srd(S_WS)}, s{sT2} offen sc1\ns_waitcnt vmcnt(0)\ns_branch {l}")
    e.label(lo)
    e(f"s_or_b32 s{sT3}, s{sT3}, s{sXCC}\nv_cmp_ne_u32 vcc, s{sT3}, v{vPUB}")
    e(f"s_cmp_eq_u64 vcc, 0\ns_cselect_b32 s{sPURE}, 1, 0")
    if X("FORCE_SLOW"): e(f"s_mov_b32 s{sPURE}, 0")

def extra_push(e, q, c):
    if X("CT2", "1") != "0" and c == int(X("CT2", "1")): q.push(lambda: touch_chunks(e, 9, 7))
    if X("CT2", "1") != "0" and "C" not in X("ORD", "T g x w C") and c == 0: q.push(lambda: touch_chunks(e, 2, 7))
    LA = int(X("CTLA", 7))
    if X("CTOUCH", "0") != "0" and 0 <= c and 5 <= c + LA < 16: q.push(lambda: touch_chunk(e, c + LA))
    T16 = {6: (S_W2, 0), 8: (S_W2, 1), 11: (S_W3T, 0), 12: (S_W3T, 1), 14: (S_W3T, 2)}
    if c in T16: q.push(lambda: touch16(e, *T16[c]))
    if c == int(X("AT2", 12)) and X("ALLTOUCH", "1") != "0" and X("AT1", "ab3") == "ab":
        q.push(lambda: touch_all(e, [(S_W2, 524288), (S_W3T, 512*3584), (S_WO, 524288), (S_W4, 1792*1024)], 64))
    if c == 9: q.push(lambda: touch_code(e, "L_abend"))
    if c == 12 and not wt("h"): q.push(lambda: touch_dst(e, lambda: own_soff_q(e, WS_HSH, 32), 16))

    if c == 8:
        def fn():
            e(f"s_lshl_b32 s{sQA}, s{sU}, 7\ns_add_u32 s{sQA}, s{sQA}, {WS_PUB}\nv_and_b32 v{vPUB}, 15, v{vLANE}\nv_lshlrev_b32 v{vPUB}, 2, v{vPUB}")
            return e.vm(f"buffer_load_dword v{vPUB}, v{vPUB}, {srd(S_WS)}, s{sQA} offen sc1")
        e.pub_ref = q.push(fn)

def sel_addrP(e, dst):
    e(f"s_cmp_eq_u32 s{sC}, 0\ns_cselect_b64 vcc, -1, 0")
    e(f"v_cndmask_b32 v{dst}, v{vAP+1}, v{vAP}, vcc\nv_cndmask_b32 v{dst+1}, v{vAP}, v{vAP+1}, vcc")

PQR = 240
KVD = 80
def a1_epilogue(e, q, w2refs, tokh):
    t = vT0
    def phi_steps(acc, out, tmp):
        P = lambda r: vr(r, 2); st = []
        for k in range(8): st.append(lambda k=k: e(f"v_pk_mul_f32 {P(tmp+2*k)}, {P(acc+2*k)}, s[{sC_LOG2E}:{sC_LOG2E+1}]"))
        for k in range(16): st.append(lambda k=k: e(f"v_min_f32 v{tmp+k}, 0, v{tmp+k}"))
        for k in range(16): st.append(lambda k=k: e(f"v_exp_f32 v{tmp+k}, v{tmp+k}"))
        for k in range(16): st.append(lambda k=k: e(f"v_max_f32 v{acc+k}, 0, v{acc+k}"))
        for k in range(8): st.append(lambda k=k: e(f"v_pk_add_f32 {P(acc+2*k)}, {P(acc+2*k)}, {P(tmp+2*k)}"))
        for k in range(8): st.append(lambda k=k: e(f"v_pk_add_f32 {P(acc+2*k)}, {P(acc+2*k)}, s[{sC_EPS6}:{sC_EPS6+1}]"))
        for k in range(8): st.append(lambda k=k: e(f"v_cvt_pk_bf16_f32 v{out+k}, v{acc+2*k}, v{acc+2*k+1}"))
        return st
    TMP = 112
    PKF, VF, PQF, ONE = 128, 136, PQR, 152
    push_w3(q, 1, (0,)); q.drain(); touch16(e, S_W3T, 5)
    q.wait(w2refs[-1])
    e("s_barrier")
    sel_addrP(e, vA)
    e(f"s_lshl_b32 s{sT2}, s{sC}, 15\ns_add_u32 s{sT2}, s{sT2}, {SL(1)}\nv_add_u32 v{vA}, s{sT2}, v{vA}\nv_add_u32 v{vA+1}, s{sT2}, v{vA+1}")
    rd = []
    for s_ in range(16):
        for c in range(2):
            d = (2*s_ + c)*4
            rd.append(lambda d=d, c=c, s_=s_: e.lds(f"ds_read_b64_tr_b16 {ar(d,2)}, v{vA+c} offset:{s_*2048}"))
            rd.append(lambda d=d, c=c, s_=s_: e.lds(f"ds_read_b64_tr_b16 {ar(d+2,2)}, v{vA+c} offset:{s_*2048+1024}"))
    interleave(phi_steps(AK, PKF, TMP), rd)
    push_w3(q, 1, (1,)); q.drain(); touch16(e, S_W3T, 6)
    for k in range(8): e(f"v_cvt_pk_bf16_f32 v{VF+k}, v{AV+2*k}, v{AV+2*k+1}")
    for k in range(4): e(f"v_mov_b32 v{ONE+k}, s{sONES}")
    D2, D3 = KVD, 96
    mfma(e, D2, PKF, VF, c="0"); mfma(e, D3, PKF, ONE, c="0")
    mfma(e, D2, PKF + 4, VF + 4); mfma(e, D3, PKF + 4, ONE)
    e.wait_lds_all()
    stamp(e, "a1k")
    publish(e, teamflag(WS_FB1), upto=tokh)
    stamp(e, "b1pub")
    push_w3(q, 2); push_w3(q, 3)
    st = phi_steps(AQ, PQF, TMP)
    q.pop(4)
    interleave(st, [lambda: q.pop(1)] * 8)
    e(f"v_and_b32 v{t}, 16, v{vLANE}\nv_cmp_ne_u32 vcc, 0, v{t}")
    for r in range(8): e(f"v_cndmask_b32 v{D2+r}, v{D2+r}, v{D3+r}, vcc")
    for r in range(8): e(f"v_cndmask_b32 v{D2+8+r}, v{D3+8+r}, v{D2+8+r}, vcc")
    q.drain()
    e(f"s_lshl_b32 s{sT2}, s{sC}, 12\ns_add_u32 s{sT2}, s{sT2}, {SL(4)}\nv_add_u32 v{t}, s{sT2}, v{vL16}")
    l1 = e.newlabel("La1"); l2 = e.newlabel("La1")
    e(f"s_cmp_eq_u32 s{sI}, 0\ns_cbranch_scc1 {l1}")
    for rg in range(4): e(f"ds_write_b128 v{t}, {vr(D2+4*rg,4)} offset:{rg*1024}")
    e.label(l1)
    e.wait_lds_all()
    e("s_barrier")
    e(f"s_cmp_lg_u32 s{sI}, 0\ns_cbranch_scc1 {l2}")
    for rg in range(4): e(f"ds_read_b128 {vr(D3+4*rg,4)}, v{t} offset:{rg*1024}")
    e("s_waitcnt lgkmcnt(0)")
    for p in range(8): e(f"v_pk_add_f32 {vr(D2+2*p,2)}, {vr(D2+2*p,2)}, {vr(D3+2*p,2)}")
    e.label(l2)

def kv_store(e):
    t = vT0
    frag_soff(e, sB4, WS_PQ, 32, OWNKS)
    def stq(sc):
        for h in range(2):
            e.vm(f"buffer_store_dwordx4 {vr(PQR+4*h,4)}, v{vL16}, {srd(S_WS)}, s{sB4} offen offset:{1024*h} {sc}", "store")
    stores2(e, stq, "pq")
    l2 = e.newlabel("Lkv")
    e(f"s_cmp_lg_u32 s{sI}, 0\ns_cbranch_scc1 {l2}")
    e(f"v_and_b32 v{t+1}, 15, v{vT}\nv_mov_b32 v{t+2}, 16")
    e(f"v_and_b32 v{t+3}, 16, v{vLANE}\nv_cmp_ne_u32 vcc, 0, v{t+3}")
    e(f"v_cndmask_b32 v{t+4}, v{t+1}, v{t+2}, vcc\nv_cndmask_b32 v{t+5}, v{t+2}, v{t+1}, vcc")
    e(f"v_mul_u32_u24 v{t+3}, 544, v{vHH}")
    e(f"v_lshlrev_b32 v{t+4}, 5, v{t+4}\nv_add_u32 v{t+4}, v{t+4}, v{t+3}\nv_lshlrev_b32 v{t+5}, 5, v{t+5}\nv_add_u32 v{t+5}, v{t+5}, v{t+3}")
    e(f"s_lshl_b32 s{sT2}, s{sTB}, 3\ns_add_u32 s{sT2}, s{sT2}, s{sFB}\ns_mul_i32 s{sT2}, s{sT2}, 4352\ns_mul_i32 s{sT3}, s{sC}, 2176\ns_add_u32 s{sT2}, s{sT2}, s{sT3}\ns_add_u32 s{sB4}, s{sT2}, {WS_KVP}")
    for h in range(2):
        for qq in range(2):
            e(f"buffer_store_dwordx4 {vr(KVD+8*h+4*qq,4)}, v{t+4+h}, {srd(S_WS)}, s{sB4} offen offset:{1088*h + 16*qq} sc1")
            e.vm_kinds.append("store"); e.vm_n += 1
    e.label(l2)

def stage_b2(e, q):
    ACC = 96; HF = 128
    t = vT0
    frag_soff(e, sB3, WS_HSH, 32, f"s_lshl_b32 s{sT3}, s{sC}, 4")
    th = []
    for s in range(16):
        if s and s % 4 == 0: e(f"s_add_u32 s{sB3}, s{sB3}, 4096")
        th.append(e.vm(f"buffer_load_dwordx4 {vr(HF + 4*s, 4)}, v{vL16}, {srd(S_WS)}, s{sB3} offen offset:{(s&3)*1024} sc1"))
    kv_store(e)
    tokkv = e.vm_n - 1
    if X("ALLTOUCH", "1") != "0" and X("AT1", "ab3") == "ab3":
        touch_all(e, [(S_WO, 524288), (S_W4, 1792*1024)], 32)
    if X("FINE"): stamp(e, "b2iss")
    for s in range(16):
        e.wait_vm(th[s])
        if X("FINE") and s in (0, 8): stamp(e, f"b2s{s}")
        for c in range(2):
            mfma(e, ACC + 16*c, (2*s + c)*4, HF + 4*s, aa=True, c=("0" if s == 0 else None))
    stamp(e, "b2main")
    e(f"s_lshl_b32 s{sT2}, s{sW}, 12\ns_add_u32 s{sT2}, s{sT2}, {SL(4)}\nv_add_u32 v{vA}, s{sT2}, v{vL16}")
    e(f"s_xor_b32 s{sT2}, s{sW}, 1\ns_lshl_b32 s{sT2}, s{sT2}, 12\ns_add_u32 s{sT2}, s{sT2}, {SL(4)}\nv_add_u32 v{vA+1}, s{sT2}, v{vL16}")
    for rg in range(4): e.lds(f"ds_write_b128 v{vA}, {vr(ACC+16+4*rg,4)} offset:{rg*1024}")
    e.wait_lds_all()
    e.wait_vm(tokkv)
    e("s_barrier")
    l = e.newlabel("Lfa1")
    e(f"s_cmp_lg_u32 s{sW}, 0\ns_cbranch_scc1 {l}")
    e(f"s_lshl_b32 s{sT2}, s{sFB}, 7\ns_lshl_b32 s{sT3}, s{sTB}, 2\ns_add_u32 s{sT2}, s{sT2}, s{sT3}\ns_add_u32 s{sT2}, s{sT2}, {WS_FA1}")
    flag_store(e, sT2, "sc1")
    e.label(l)
    e.vm_kinds.append("store"); e.vm_n += 1
    tk = [e.lds(f"ds_read_b128 {vr(ACC+16+4*rg,4)}, v{vA+1} offset:{rg*1024}") for rg in range(4)]
    for rg in range(4):
        e.wait_lds(tk[rg])
        for p in range(2): e(f"v_pk_add_f32 {vr(ACC+4*rg+2*p,2)}, {vr(ACC+4*rg+2*p,2)}, {vr(ACC+16+4*rg+2*p,2)}")
    stamp(e, "b2red")
    q.drain(); touch16(e, S_WO, 0)
    for k in range(8):
        e(f"v_lshlrev_b32 v{t}, 16, v{vRES+k}\nv_and_b32 v{t+1}, 0xffff0000, v{vRES+k}")
        e(f"v_pk_add_f32 {vr(ACC+2*k,2)}, {vr(ACC+2*k,2)}, {vr(t,2)}")
        e(f"v_cvt_pk_bf16_f32 v{vRES+k}, v{ACC+2*k}, v{ACC+2*k+1}")
    frag_soff(e, sB3, WS_X1, 32, OWNKS)
    S, Q = 128, 130
    e(f"v_mov_b32 v{S}, 0\nv_mov_b32 v{S+1}, 0\nv_mov_b32 v{Q}, 0\nv_mov_b32 v{Q+1}, 0")
    for k in range(8):
        e(f"v_dot2c_f32_bf16 v{S+(k&1)}, s{sONES}, v{vRES+k}\nv_dot2c_f32_bf16 v{Q+(k&1)}, v{vRES+k}, v{vRES+k}")
    e(f"v_add_f32 v{S}, v{S}, v{S+1}\nv_add_f32 v{S+1}, v{Q}, v{Q+1}")
    halfsum(e, S, t); halfsum(e, S + 1, t)
    e(f"s_lshl_b32 s{sT2}, s{sFB}, 1\ns_add_u32 s{sT2}, s{sT2}, s{sC}\ns_lshl_b32 s{sT2}, s{sT2}, 11")
    e(f"s_lshl_b32 s{sT3}, s{sTB}, 6\ns_add_u32 s{sT2}, s{sT2}, s{sT3}\ns_lshl_b32 s{sT3}, s{sI}, 5\ns_add_u32 s{sT2}, s{sT2}, s{sT3}")
    e(f"s_lshl_b32 s{sT2}, s{sT2}, 3\ns_add_u32 s{sB4}, s{sT2}, {WS_ST2}")
    e(f"v_lshlrev_b32 v{t+2}, 3, v{vT}")
    def st(sc):
        for h in range(2):
            e.vm(f"buffer_store_dwordx4 {vr(vRES+4*h,4)}, v{vL16}, {srd(S_WS)}, s{sB3} offen offset:{1024*h} {sc}", "store")
        e.vm(f"buffer_store_dwordx2 {vr(S,2)}, v{t+2}, {srd(S_WS)}, s{sB4} offen {sc}", "store")
    return stores2(e, st, "x1")

CSA = 132
def b3_colsum(e, part):
    t = vT0
    WT = 136; ND = 6
    if part == 0:
        e(f"s_cmp_eq_u32 s{sC}, 0\ns_cselect_b64 vcc, -1, 0")
        e(f"v_cndmask_b32 v{vA+4}, v{vAP+1}, v{vAP}, vcc\ns_lshl_b32 s{sT2}, s{sI}, 12\nv_add_u32 v{vA+4}, s{sT2}, v{vA+4}\nv_add_u32 v{vA+5}, {SL(0)}, v{vA+4}")
        for r in range(4): e(f"v_mov_b32 v{CSA+r}, 0")
    def csread(s):
        g = s >> 1; off = (g % 8)*8192 + (s & 1)*2048
        return tr_frag(e, WT + (s % ND)*4, vA + 4 + g // 8, off, 1024)
    s0, s1 = 16*part, 16*part + 16
    rds = {s: csread(s) for s in range(s0, s0 + ND - 1)}
    for s in range(s0, s1):
        if s + ND - 1 < s1: rds[s + ND - 1] = csread(s + ND - 1)
        e.wait_lds(rds[s])
        for r in range(4): e(f"v_dot2c_f32_bf16 v{CSA+r}, s{sONES}, v{WT + (s % ND)*4 + r}")
    if part == 1:
        e(f"v_add_f32 v{CSA}, v{CSA}, v{CSA+1}\nv_add_f32 v{CSA+2}, v{CSA+2}, v{CSA+3}\nv_add_f32 v{CSA}, v{CSA}, v{CSA+2}")
        e(f"s_lshl_b32 s{sT2}, s{sW}, 8\ns_add_u32 s{sT2}, s{sT2}, {PA_CS3}\nv_lshlrev_b32 v{t}, 2, v{vLANE}\nv_add_u32 v{t}, s{sT2}, v{t}")
        e.lds(f"ds_write_b32 v{t}, v{CSA}")
        e.wait_lds_all()

def p4a_setup(e):
    e(f"s_xor_b32 s{sT1}, s{sI}, 1")
    frag_soff(e, sB4, WS_PQ, 32, f"s_lshl_b32 s{sT3}, s{sW}, 3")
    frag_soff(e, sB5, WS_PQ, 32, f"s_lshl_b32 s{sT3}, s{sW}, 3", blk=sT1)
    frag_soff(e, sB6, WS_H2, 112, f"s_lshl_b32 s{sT3}, s{sW}, 1")
    frag_soff(e, sB7, WS_H2, 112, f"s_lshl_b32 s{sT3}, s{sW}, 1", blk=sT1)
    e(f"s_lshl_b32 s{sT2}, s{sW}, 13\ns_add_u32 s{sB2}, s{sT2}, {WS_KVT}")
def push_kvt_loads(e, q):
    tk = {}
    for h in range(8):
        def fk(h=h):
            if h % 4 == 0: e(f"s_add_u32 s{sQA}, s{sB2}, {h*1024}")
            return e.vm(f"buffer_load_dwordx4 {ar(4*h,4)}, v{vL16}, {srd(S_WS)}, s{sQA} offen offset:{(h & 3)*1024} sc1")
        tk[h] = q.push(fk)
    return tk
def push_p4a_loads(e, q):
    tp = {}
    for h in range(8):
        for i in range(2):
            def fp(h=h, i=i):
                e(f"s_add_u32 s{sQA}, s{sB4+i}, {h*1024}")
                return e.vm(f"buffer_load_dwordx4 {ar(32 + (2*h+i)*4, 4)}, v{vL16}, {srd(S_WS)}, s{sQA} offen sc1")
            tp[(h, i)] = q.push(fp)
    return tp
def flags_check(e, off, nflags, preloaded):
    l = e.newlabel("Lfc"); lo = e.newlabel("Lfco"); t = vT0
    e(f"s_mov_b32 s{sSPIN}, 0x40000\ns_mov_b32 s{sT2}, {off}")
    e(f"v_lshlrev_b32 v{t+1}, 2, v{vLANE}\nv_cmp_gt_u32 vcc, {nflags}, v{vLANE}\ns_and_saveexec_b64 s[{sSAVE}:{sSAVE+1}], vcc")
    if not preloaded:
        e(f"buffer_load_dword v{vPUB}, v{t+1}, {srd(S_WS)}, s{sT2} offen sc1\ns_waitcnt vmcnt(0)")
    e.label(l)
    e(f"v_cmp_ne_u32 vcc, s{sTAG}, v{vPUB}\ns_cbranch_vccz {lo}")
    e(f"s_sub_u32 s{sSPIN}, s{sSPIN}, 1\ns_cmp_eq_u32 s{sSPIN}, 0\ns_cbranch_scc1 {lo}")
    e(f"buffer_load_dword v{vPUB}, v{t+1}, {srd(S_WS)}, s{sT2} offen sc1\ns_waitcnt vmcnt(0)\ns_branch {l}")
    e.label(lo)
    e(f"s_mov_b64 exec, s[{sSAVE}:{sSAVE+1}]")

def stage_b3(e, q):
    ACC = 64; t = vT0
    for c in range(2): e(f"v_mov_b32 v{vA+8+2*c}, v{vAP+c}\nv_add_u32 v{vA+8+2*c+1}, {SL(0)}, v{vAP+c}")
    def waddr(s, ft):
        g = s >> 1
        return vA + 8 + 2*(ft & 1) + g // 8, (g % 8)*8192 + (ft >> 1)*4096 + (s & 1)*2048
    e(f"s_lshl_b32 s{sT2}, s{sU}, 2\ns_add_u32 s{sT2}, s{sT2}, s{sW}\ns_lshl_b32 s{sT2}, s{sT2}, 15\ns_add_u32 s{sB3}, s{sT2}, {WS_X1}")
    e(f"s_lshl_b32 s{sT2}, s{sU}, 7\ns_lshl_b32 s{sT3}, s{sW}, 5\ns_add_u32 s{sT2}, s{sT2}, s{sT3}\ns_lshl_b32 s{sT2}, s{sT2}, 3\ns_add_u32 s{sB4}, s{sT2}, {WS_ST2}")
    e(f"v_lshlrev_b32 v{vA+6}, 17, v{vHH}\nv_lshlrev_b32 v{t+1}, 3, v{vT}\nv_add_u32 v{vA+6}, v{vA+6}, v{t+1}")
    CS4 = 152; CA, CB = 160, 176
    e("s_barrier")
    e(f"v_lshlrev_b32 v{t+2}, 2, v{vLANE}\nv_add_u32 v{t+2}, {PA_CS3}, v{t+2}")
    tc = [e.lds(f"ds_read_b32 v{CS4+k}, v{t+2} offset:{256*k}") for k in range(4)]
    WFS = [192, 208, 224]
    def read_fns(s):
        fns = []
        for ft in range(4):
            a, off = waddr(s, ft); d = WFS[s % 3] + ft*4
            fns.append(lambda a=a, off=off, d=d: e.lds(f"ds_read_b64_tr_b16 {vr(d,2)}, v{a} offset:{off}"))
            fns.append(lambda a=a, off=off, d=d: e.lds(f"ds_read_b64_tr_b16 {vr(d+2,2)}, v{a} offset:{off+1024}"))
        return fns
    e.wait_lds(tc)
    for k in range(4): corr_frags(e, CS4 + k, None, CA + 4*k, None, t)
    rdtok = {}
    for s in range(2):
        for f in read_fns(s): rdtok[s] = f()
    poll(e, f"s_lshl_b32 s{sT2}, s{sU}, 7\ns_add_u32 s{sT2}, s{sT2}, {WS_FB2}", 16)
    stamp(e, "b3poll")
    STT = 136
    tst = []
    for k in range(8):
        def fn(k=k):
            e(f"s_add_u32 s{sQA}, s{sB4}, {k*16384}")
            return e.vm(f"buffer_load_dwordx2 {vr(STT+2*k,2)}, v{vA+6}, {srd(S_WS)}, s{sQA} offen sc1")
        tst.append(q.push(fn))
    tx = []
    for s in range(32):
        def fn(s=s):
            if s % 4 == 0: e(f"s_add_u32 s{sQA}, s{sB3}, {(s//4)*4096}")
            return e.vm(f"buffer_load_dwordx4 {ar(4*s,4)}, v{vL16}, {srd(S_WS)}, s{sQA} offen offset:{(s&3)*1024} sc1")
        tx.append(q.push(fn))
    q.pop(8 + 6)
    q.wait(tst[-1])
    for k in range(1, 8): e(f"v_pk_add_f32 {vr(STT,2)}, {vr(STT,2)}, {vr(STT+2*k,2)}")
    halfsum(e, STT, t); halfsum(e, STT + 1, t)
    NM, RS = 240, 242
    ln_stats(e, STT, STT + 1, NM, RS, t)
    corr_frags(e, None, NM, None, CB, t)
    for k in range(4):
        mfma(e, ACC + 16*k, CA + 4*k, CB, c="0"); q.pop(1)
    stamp(e, "b3st")
    w4 = {}
    for s in range(32):
        if X("FINE") and s in (4, 8, 12, 16, 24): stamp(e, f"b3s{s}")
        e.wait_lds(rdtok[s]); q.wait(tx[s])
        if s == 15:
            e("s_barrier")
            set_region_addrs(e)
            for g in range(5): w4[g] = push_w4(q, g)
        if s in (4, 8, 12, 16, 20, 24): q.push(lambda s=s: touch16(e, S_W4, 1 + (s - 4)//4))
        if s == 10: q.push(lambda: touch_code(e, "L_b3end"))

        if s == int(X("H2T", 27)) and not wt("h2"):
            def h2d():
                e(f"s_lshl_b32 s{sQA}, s{sU}, 2\ns_add_u32 s{sQA}, s{sQA}, s{sW}\ns_mul_i32 s{sQA}, s{sQA}, 112\ns_lshl_b32 s{sT5}, s{sV}, 3\ns_add_u32 s{sQA}, s{sQA}, s{sT5}")
                e(f"s_lshl_b32 s{sQA}, s{sQA}, 10\ns_add_u32 s{sQA}, s{sQA}, {WS_H2}")
                return sQA
            q.push(lambda: touch_dst(e, h2d, 64))
        fill = read_fns(s + 2) if s + 2 < 32 else []
        mains = [(lambda ft=ft: mfma(e, ACC + 16*ft, WFS[s % 3] + ft*4, 4*s, ba=True)) for ft in range(4)]
        toks = []
        fl = [(lambda f=f: toks.append(f())) for f in fill]
        fl.insert(2, lambda: q.pop(1)); fl.insert(6, lambda: q.pop(1))
        interleave(mains, fl)
        if toks: rdtok[s + 2] = toks[-1]
    e.L.append("L_b3end: ; @soft")
    stamp(e, "b3main")
    e("s_barrier")
    e(f"s_lshl_b32 s{sT2}, s{sU}, 2\ns_add_u32 s{sT2}, s{sT2}, s{sW}\ns_mul_i32 s{sT2}, s{sT2}, 112\ns_lshl_b32 s{sT3}, s{sV}, 3\ns_add_u32 s{sT2}, s{sT2}, s{sT3}")
    e(f"s_lshl_b32 s{sT2}, s{sT2}, 10\ns_add_u32 s{sB3}, s{sT2}, {WS_H2}\ns_add_u32 s{sB4}, s{sB3}, 4096")
    OUT = 128; TMP = 192
    def gelq(ft, half, npop):
        ks = range(4*half, 4*half + 4)
        gelu_pairs(e, [ACC + 16*ft + 2*k for k in ks], RS, [TMP + 2*k for k in ks], [OUT + 8*ft + k for k in ks], q, npop)
    q.wait(w4[4])
    rdf = w4_to_agpr_fns(e)
    e(f"s_mov_b32 s84, s{sB4}")
    tokst = None
    sB3h, = (sB3,)
    p4a_setup(e)
    wo = [push_wo(q, 0)]
    tp = push_p4a_loads(e, q)
    pq_items = q.q[4:]; q.q = q.q[:4]
    NPQ = int(X("EPIPQ", 8))
    q.q += pq_items[:2]
    wo += [push_wo(q, 1)]
    q.q += pq_items[2:NPQ]
    wo += [push_wo(q, 2), push_wo(q, 3)]
    rest = pq_items[NPQ:]
    nit = len(q.q)
    for ft in range(4):
        for f in rdf[10*ft:10*ft + 10]: f()
        for half in range(2):
            k = 2*ft + half
            want = nit * (k + 1) // 7 if k < 7 else nit
            gelq(ft, half, max(0, want - (nit - len(q.q))))
        def st(sc, ft=ft):
            for h in range(2):
                so = sB3 if ft < 2 else 84
                e.vm(f"buffer_store_dwordx4 {vr(OUT+8*ft+4*h,4)}, v{vL16}, {srd(S_WS)}, s{so} offen offset:{((2*ft+h)&3)*1024} {sc}", "store")
        tokst = stores2(e, st, "h2")
    q.drain()
    stamp(e, "gel3")
    e.wait_lds_all()
    e(f"s_mov_b32 s{sQA}, {WS_FA2}\nv_lshlrev_b32 v{vPUB}, 2, v{vLANE}")
    fa2tok = e.vm(f"buffer_load_dword v{vPUB}, v{vPUB}, {srd(S_WS)}, s{sQA} offen sc1")
    q.q = rest
    e.wait_vm(tokst)
    e("s_barrier")
    lq = e.newlabel("Lp3")
    e(f"s_cmp_lg_u32 s{sW}, 0\ns_cbranch_scc1 {lq}")
    e(teamflag(WS_FB3))
    l2 = e.newlabel("Lp3"); l3 = e.newlabel("Lp3")
    e(f"s_cmp_eq_u32 s{sPURE}, 0\ns_cbranch_scc1 {l2}")
    flag_store(e, sT2, "")
    e(f"s_branch {l3}")
    e.label(l2)
    flag_store(e, sT2, "sc1")
    e.label(l3)
    e.label(lq)
    e.vm_kinds.append("store"); e.vm_n += 1
    stamp(e, "p4pub")
    e.wait_vm(fa2tok)
    flags_check(e, WS_FA2, 32, True)
    stamp(e, "fa2")
    return wo, w4, tp

def stage_a2(e, q):
    t = vT0
    e(f"s_lshl_b32 s{sHEAD}, s{sU}, 1\ns_add_u32 s{sHEAD}, s{sHEAD}, s{sV}\ns_sub_u32 s{sHEAD}, s{sHEAD}, 14")
    poll(e, f"s_lshr_b32 s{sT2}, s{sHEAD}, 2\ns_lshl_b32 s{sT2}, s{sT2}, 7\ns_add_u32 s{sT2}, s{sT2}, {WS_FA1}", 32)
    e(f"v_and_b32 v{t+1}, 15, v{vT}\nv_mov_b32 v{t+2}, 16\nv_and_b32 v{t+3}, 16, v{vLANE}")
    e(f"s_and_b32 s{sT2}, s{sHEAD}, 1\ns_lshl_b32 s{sT2}, s{sT2}, 4\nv_cmp_ne_u32 vcc, s{sT2}, v{t+3}")
    e(f"v_cndmask_b32 v{t+4}, v{t+1}, v{t+2}, vcc")
    e(f"v_mul_u32_u24 v{t+3}, 544, v{vHH}\nv_lshlrev_b32 v{t+4}, 5, v{t+4}\nv_add_u32 v{t+4}, v{t+4}, v{t+3}")
    e(f"s_lshr_b32 s{sT2}, s{sHEAD}, 2\ns_lshl_b32 s{sT3}, s{sW}, 6\ns_add_u32 s{sT2}, s{sT2}, s{sT3}\ns_mul_i32 s{sT2}, s{sT2}, 4352")
    e(f"s_and_b32 s{sT3}, s{sHEAD}, 3\ns_mul_i32 s{sT3}, s{sT3}, 1088\ns_add_u32 s{sT2}, s{sT2}, s{sT3}\ns_add_u32 s{sB3}, s{sT2}, {WS_KVP}")
    B = 64; tk = []
    for k in range(8):
        if k: e(f"s_add_u32 s{sB3}, s{sB3}, {8*4352}")
        for qq in range(2):
            tk.append(e.vm(f"buffer_load_dwordx4 {vr(B+8*k+4*qq,4)}, v{t+4}, {srd(S_WS)}, s{sB3} offen offset:{16*qq} sc1"))
    for k in range(1, 8):
        e.wait_vm(tk[2*k+1])
        for p in range(4): e(f"v_pk_add_f32 {vr(B+2*p,2)}, {vr(B+2*p,2)}, {vr(B+8*k+2*p,2)}")
    e(f"s_lshl_b32 s{sT2}, s{sW}, 11\ns_add_u32 s{sT2}, s{sT2}, {PA_ST}\nv_add_u32 v{t}, s{sT2}, v{vL16}") if False else None
    XB = SL(3)
    e(f"s_lshl_b32 s{sT2}, s{sW}, 11\ns_add_u32 s{sT2}, s{sT2}, {XB}\nv_add_u32 v{t}, s{sT2}, v{vL16}")
    e.lds(f"ds_write_b128 v{t}, {vr(B,4)}"); e.lds(f"ds_write_b128 v{t}, {vr(B+4,4)} offset:1024")
    e.wait_lds_all()
    e("s_barrier")
    l = e.newlabel("La2")
    e(f"s_cmp_lg_u32 s{sW}, 0\ns_cbranch_scc1 {l}")
    e(f"v_add_u32 v{t}, {XB}, v{vL16}")
    for k in range(1, 4):
        e(f"ds_read_b128 {vr(B+8*k,4)}, v{t} offset:{2048*k}\nds_read_b128 {vr(B+8*k+4,4)}, v{t} offset:{2048*k+1024}")
    e("s_waitcnt lgkmcnt(0)")
    for k in range(1, 4):
        for p in range(4): e(f"v_pk_add_f32 {vr(B+2*p,2)}, {vr(B+2*p,2)}, {vr(B+8*k+2*p,2)}")
    for p in range(4): e(f"v_cvt_pk_bf16_f32 v{B+32+p}, v{B+2*p}, v{B+2*p+1}")
    e(f"s_lshl_b32 s{sT2}, s{sHEAD}, 10\ns_add_u32 s{sB3}, s{sT2}, {WS_KVT}")
    e(f"buffer_store_dwordx4 {vr(B+32,4)}, v{vL16}, {srd(S_WS)}, s{sB3} offen sc1")
    e("s_waitcnt vmcnt(0)")
    e(f"s_lshl_b32 s{sT2}, s{sHEAD}, 2\ns_add_u32 s{sT2}, s{sT2}, {WS_FA2}")
    flag_store(e, sT2, "sc1")
    e.label(l)
    e("s_barrier")
    for k in range(1, 7): touch16(e, S_W4, k)
    touch_code(e, "L_b3end")
    set_region_addrs(e)
    w4 = {g: push_w4(q, g) for g in range(5)}
    for g in range(4): push_wo(q, g)
    q.drain()
    e.wait_vm_all()
    for f in w4_to_agpr_fns(e): f()
    e.wait_lds_all()
    p4a_setup(e)
    flags_check(e, WS_FA2, 32, False)
    push_p4a_loads(e, q)
    q.pop(int(X("EPIPQ", 8)))
    q.q = []
    e.wait_vm_all()

def stage_p4(e, q, wo, w4in, tp):
    ACCB, ACCA = 64, 128
    WF = 192
    t = vT0
    l = e.newlabel("Lep")
    e(f"s_or_b32 s{sT2}, s2, s{sW}\ns_cmp_lg_u32 s{sT2}, 0\ns_cbranch_scc1 {l}")
    e(f"s_mov_b32 s{sT2}, {WS_EPOCH}")
    flag_store(e, sT2, "sc1")
    e.label(l)
    e.vm_kinds.append("store"); e.vm_n += 1
    pend = q.q; q.q = []
    tk = push_kvt_loads(e, q)
    kv_items = q.q; q.q = []
    def grab(fn):
        r = fn(); it = q.q; q.q = []; return r, it
    w4in = dict(w4in); w4it = {}
    for g in range(5, 10): w4in[g], w4it[g] = grab(lambda g=g: push_w4(q, g))
    order = kv_items[0:4] + pend[0:2] + kv_items[4:8] + pend[2:]
    for g in range(5, 10): order += w4it[g]
    q.q = order
    q.pop(6)
    G = [208, 210]; OMG = [212, 214]
    e(f"v_lshlrev_b32 v{t}, 2, v{vT}\nv_add_u32 v{t}, {PA_G}, v{t}")
    e(f"s_lshl_b32 s{sT2}, s{sI}, 7\nv_add_u32 v{t+1}, s{sT2}, v{t}\ns_xor_b32 s{sT2}, s{sT2}, 128\nv_add_u32 v{t+2}, s{sT2}, v{t}")
    tg = [e.lds(f"ds_read_b32 v{G[0]}, v{t+1}"), e.lds(f"ds_read_b32 v{G[1]}, v{t+2}")]
    e.wait_lds(tg)
    for i in range(2): e(f"v_sub_f32 v{OMG[i]}, 1.0, v{G[i]}")
    OD = [216, 232]
    OF = [[46, 50], [248, 252]]
    SC = [56, 58]
    def wo_reads(h):
        tok = None
        for c in range(2): tok = tr_frag(e, WF + (h&1)*8 + c*4, vA + 2 + c, h*2048, 1024)
        return tok
    def omm(h):
        q.wait(tp[(h, 1)]); q.wait(tk[h])
        for i in range(2):
            e(f"v_mfma_f32_32x32x16_bf16 {vr(OD[i],16)}, {ar(4*h,4)}, {ar(32 + (2*h+i)*4,4)}, 0")
            q.pop(2)
    def oval(h):
        par = h & 1
        for i in range(2):
            num = OD[i] + (8 if h & 1 else 0); den = OD[i] + (0 if h & 1 else 8)
            e(f"v_add_f32 v{SC[i]}, 0x358637bd, v{den}\nv_rcp_f32 v{SC[i]}, v{SC[i]}\nv_mul_f32 v{SC[i]}, v{SC[i]}, v{G[i]}")
            for p in range(8): e(f"v_mul_f32 v{num+p}, v{num+p}, v{SC[i]}")
            for p in range(4): e(f"v_cvt_pk_bf16_f32 v{OF[par][i]+p}, v{num+2*p}, v{num+2*p+1}")
    def amm(h):
        par = h & 1
        for i in range(2):
            for c in range(2):
                mfma(e, ACCA + (2*i + c)*16, WF + par*8 + c*4, OF[par][i], c=("0" if h == 0 else None))
            q.pop(2)
    q.wait(wo[0])
    rd = {0: wo_reads(0)}
    omm(0)
    for h in range(8):
        if h + 1 < 8:
            if (h + 1) % 2 == 0: q.wait(wo[(h + 1) >> 1])
            rd[h+1] = wo_reads(h + 1)
        oval(h)
        if h + 1 < 8: omm(h + 1)
        e.wait_lds(rd[h])
        amm(h)
    stamp(e, "p4A")
    q.drain()
    w4 = dict(w4in); w4.update({g: push_w4(q, g) for g in range(10, 14)})
    q.drain()
    poll(e, f"s_lshl_b32 s{sT2}, s{sU}, 7\ns_add_u32 s{sT2}, s{sT2}, {WS_FB3}", 14)
    stamp(e, "p4pollB")
    HD = 16
    th = {}
    def hpush(s):
        for i in range(2):
            def fn(s=s, i=i):
                e(f"s_add_u32 s{sQA}, s{sB6+i}, {(s >> 1)*8192 + (s & 1)*1024}")
                return e.vm(f"buffer_load_dwordx4 {ar(((s % HD)*2 + i)*4, 4)}, v{vL16}, {srd(S_WS)}, s{sQA} offen sc1")
            th[(s, i)] = q.push(fn)
    for s in range(HD): hpush(s)
    q.pop(10)
    WFS = [192, 200, 216]
    def read_fns(s):
        if s < 10 or s >= 28: return []
        g = s >> 1; reg, slot = W4LOC[g]; fns = []
        for c in range(2):
            a, off = region_addr(reg, slot, c); off += (s & 1)*2048; d = WFS[s % 3] + 4*c
            fns.append(lambda a=a, off=off, d=d: e.lds(f"ds_read_b64_tr_b16 {vr(d,2)}, v{a} offset:{off}"))
            fns.append(lambda a=a, off=off, d=d: e.lds(f"ds_read_b64_tr_b16 {vr(d+2,2)}, v{a} offset:{off+1024}"))
        return fns
    rdtok = {}
    for s in range(28):
        if X("FINE") and s in (1, 5, 10, 16, 22): stamp(e, f"p4s{s}")
        if s + 2 >= 10 and (s + 2) % 2 == 0 and (s + 2) < 28: q.wait(w4[(s + 2) >> 1])
        if s in rdtok: e.wait_lds(rdtok[s])
        q.wait(th[(s, 1)])
        mains = []
        for i in range(2):
            for c in range(2):
                z = "0" if s == 0 else None
                if s < 10:
                    mains.append(lambda i=i, c=c, z=z: mfma(e, ACCB + (2*i + c)*16, W4A + (2*s + c)*4, ((s % HD)*2 + i)*4, aa=True, ba=True, c=z))
                else:
                    mains.append(lambda i=i, c=c, z=z: mfma(e, ACCB + (2*i + c)*16, WFS[s % 3] + 4*c, ((s % HD)*2 + i)*4, ba=True, c=z))
        toks = []
        fl = [(lambda f=f: toks.append(f())) for f in read_fns(s + 2)]
        fl.insert(0, lambda: q.pop(1)); fl.insert(min(3, len(fl)), lambda: q.pop(1))
        interleave(mains, fl)
        if toks: rdtok[s + 2] = toks[-1]
        if s + HD < 28: hpush(s + HD)
    stamp(e, "p4B")
    for i in range(2):
        for c in range(2):
            qq = 2*i + c
            for p in range(8):
                e(f"v_pk_fma_f32 {vr(ACCB+16*qq+2*p,2)}, {vr(ACCB+16*qq+2*p,2)}, {vr(OMG[i],2)}, {vr(ACCA+16*qq+2*p,2)} op_sel_hi:[1,0,1]")
    aw = vA + 8
    e(f"s_lshl_b32 s{sT0}, s{sW}, 14\nv_add_u32 v{aw}, s{sT0}, v{vL16}")
    for k in range(1, 4):
        for rg in range(4): e.lds(f"ds_write_b128 v{aw}, {vr(ACCB + 16*k + 4*rg, 4)} offset:{(k-1)*4096 + rg*1024}")
    for k in range(1, 4):
        e(f"s_xor_b32 s{sT0}, s{sW}, {k}\ns_lshl_b32 s{sT0}, s{sT0}, 14\nv_add_u32 v{aw+k}, s{sT0}, v{vL16}")
    e.wait_lds_all()
    e("s_barrier")
    toks = []
    for k in range(1, 4):
        for rg in range(4): toks.append(e.lds(f"ds_read_b128 {vr(ACCB + 16*k + 4*rg, 4)}, v{aw+k} offset:{(k-1)*4096 + rg*1024}"))
    for k in range(1, 4):
        e.wait_lds(toks[4*k-1])
        for p in range(8): e(f"v_pk_add_f32 {vr(ACCB+2*p,2)}, {vr(ACCB+2*p,2)}, {vr(ACCB+16*k+2*p,2)}")
    stamp(e, "p4red")
    for k in range(8):
        e(f"v_lshlrev_b32 v{t}, 16, v{vRES+k}\nv_and_b32 v{t+1}, 0xffff0000, v{vRES+k}")
        e(f"v_pk_fma_f32 {vr(ACCB+2*k,2)}, {vr(t,2)}, {vr(OMG[0],2)}, {vr(ACCB+2*k,2)} op_sel_hi:[1,0,1]")
        e(f"v_cvt_pk_bf16_f32 v{128+k}, v{ACCB+2*k}, v{ACCB+2*k+1}")
    for pr in range(2):
        a, b = 128 + 4*pr, 128 + 4*pr + 2
        e(f"v_permlane32_swap_b32 v{a}, v{b}\nv_permlane32_swap_b32 v{a+1}, v{b+1}")
    e(f"s_lshl_b32 s{sT2}, s{sTB}, 6\ns_lshl_b32 s{sT3}, s{sI}, 5\ns_add_u32 s{sT2}, s{sT2}, s{sT3}")
    e(f"v_add_u32 v{t}, s{sT2}, v{vT}\nv_lshlrev_b32 v{t}, 10, v{t}")
    e(f"s_lshl_b32 s{sT2}, s{sFB}, 7\ns_lshl_b32 s{sT3}, s{sC}, 6\ns_add_u32 s{sT2}, s{sT2}, s{sT3}")
    e(f"v_lshlrev_b32 v{t+1}, 4, v{vHH}\nv_add3_u32 v{t}, v{t}, v{t+1}, s{sT2}")
    for pr in range(2):
        e.vm(f"buffer_store_dwordx4 {vr(128+4*pr,4)}, v{t}, {srd(S_OUT)}, 0 offen offset:{32*pr}", "store")

def build():
    e = E(); q = VQ(e)
    prologue(e, q)
    xrefs, wrefs = {}, {}
    AT = X("AT1", "ab3")
    ALLW = [(S_WQKV, 512*3072), (S_W1, 524288), (S_W2, 524288), (S_W3, 512*3584), (S_WO, 524288), (S_W4, 1792*1024)]
    def fg():
        e(f"s_mov_b32 m0, {PA_GW}")
        return e.vm(f"buffer_load_dwordx4 v{vL16}, {srd(S_GW)}, 0 offen lds")
    def t_ab(): touch_all(e, [(S_AX, 2097152), (S_WQKV, 512*3072), (S_W1, 524288)], 32)
    def t_all():
        if AT == "ab3": touch_all(e, [(S_WQKV, 512*3072), (S_AX, 2097152), (S_W1, 524288), (S_W2, 524288), (S_W3, 512*3584)], 64)
        else: touch_all(e, ALLW, 64)
    ORD = X("ORD", "T g x w C").replace("_", " ").split()
    for o in ORD:
        if o == "T" and X("ALLTOUCH", "1") != "0": q.push(t_ab if AT == "ab" else t_all)
        if o == "g": q.push(fg)
        if o == "x": xrefs[0] = push_x(q, 0)
        if o == "w": wrefs[0] = push_wab(q, 0)
        if o == "C" and X("CT2", "1") != "0": q.push(lambda: touch_chunks(e, 1, 8))
    q.drain()
    wrefs[1] = push_wab(q, 1); xrefs[1] = push_x(q, 1)
    for c in range(2, 5): wrefs[c] = push_wab(q, c)
    common_addr(e)
    q.pop(4)
    for k in range(4): e(f"s_mov_b32 s{S_W3T+k}, s{S_W3+k}")
    e(f"s_cmp_ge_u32 s{sV}, 14\ns_cselect_b32 s{S_W3+2}, 0, s{S_W3+2}")
    e(f"s_mov_b32 s{sC_LOG2E}, 0x3fb8aa3b\ns_mov_b32 s{sC_LOG2E+1}, 0x3fb8aa3b")
    c0 = -2.0 * 0.7978845608028654 * 1.4426950408889634; c1 = c0 * 0.044715
    e(f"s_mov_b32 s{sC_G1}, {f2u(c1):#x}\ns_mov_b32 s{sC_G1+1}, {f2u(c1):#x}")
    e(f"s_mov_b32 s{sC_EPS6}, 0x358637bd\ns_mov_b32 s{sC_EPS6+1}, 0x358637bd\ns_mov_b32 s{sONES}, 0x3f803f80")
    e(f"v_mov_b32 v{vG0C}, {f2u(c0):#x}\nv_mov_b32 v{vG0C+1}, {f2u(c0):#x}")
    stamp(e, "iss14")
    e("s_waitcnt lgkmcnt(0)")
    e(f"s_mul_i32 s{sTAG}, s{sTAG}, 1664525\ns_add_u32 s{sTAG}, s{sTAG}, 1013904223")
    l = e.newlabel("Lpub0")
    e(f"s_cmp_lg_u32 s{sW}, 0\ns_cbranch_scc1 {l}")
    e(teamflag(WS_PUB))
    e(f"s_and_b32 s{sT3}, s{sTAG}, 0xfffffff0\ns_or_b32 s{sT3}, s{sT3}, s{sXCC}")
    e(f"v_mov_b32 v{vT0}, s{sT3}\nv_mov_b32 v{vT0+1}, 0\nv_cmp_eq_u32 vcc, 0, v{vLANE}\ns_and_saveexec_b64 s[{sSAVE}:{sSAVE+1}], vcc")
    e(f"buffer_store_dword v{vT0}, v{vT0+1}, {srd(S_WS)}, s{sT2} offen sc1")
    e(f"s_mov_b64 exec, s[{sSAVE}:{sSAVE+1}]")
    e.label(l)
    e.vm_kinds.append("store"); e.vm_n += 1
    stamp(e, "pro")
    w2refs, tokh = stage_ab1(e, q, xrefs, wrefs)
    stamp(e, "hst")
    a1_epilogue(e, q, w2refs, tokh)
    stamp(e, "a1epi")
    poll(e, f"s_lshl_b32 s{sT2}, s{sU}, 7\ns_and_b32 s{sT3}, s{sTB}, 1\ns_lshl_b32 s{sT3}, s{sT3}, 5\ns_add_u32 s{sT2}, s{sT2}, s{sT3}\ns_add_u32 s{sT2}, s{sT2}, {WS_FB1}", 8)
    stamp(e, "b2poll")
    tok = stage_b2(e, q)
    touch_code(e, "L_b3start")
    tok = e.vm_n - 1 if False else tok
    lk = e.newlabel("Lcs")
    e(f"s_cmp_ge_u32 s{sV}, 14\ns_cbranch_scc1 {lk}")
    b3_colsum(e, 0)
    e.label(lk)
    publish(e, teamflag(WS_FB2))
    stamp(e, "b2pub")
    touch16(e, S_WO, 1); touch16(e, S_W4, 0)
    la2 = e.newlabel("LA2"); lj = e.newlabel("LJ")
    e(f"s_cmp_ge_u32 s{sV}, 14\ns_cbranch_scc1 {la2}")
    e.L.append("L_b3start: ; @soft")
    b3_colsum(e, 1)
    stamp(e, "b3cs")
    wo, w4, tp = stage_b3(e, q)
    snap = (e.vm_n, list(e.vm_kinds), e.vm_done, e.ld_n, e.ld_done); qsnap = list(q.q); q.q = []
    e(f"s_branch {lj}")
    e.label(la2)
    stage_a2(e, q)
    e.label(lj)
    e.vm_n, e.vm_kinds, e.vm_done, e.ld_n, e.ld_done = snap
    q.q = qsnap
    e.wait_lds_all()
    stage_p4(e, q, wo, w4, tp)
    stamp(e, "end")
    stamp_flush(e)
    e.wait_vm_all()
    e.label("L_end")
    e("s_endpgm")
    e.label("L_codeend")
    body = e.text()
    return kernel_file([dict(name=KN, body=body, grid=256, block=256, lds=LDS_BYTES, vgpr=512, accum=256, sgpr=102)]), e

if __name__ == "__main__":
    txt, e = build()
    open(sys.argv[1], "w").write(txt)
    n = sum(1 for l in txt.split("\n") if l.startswith("    ") and not l.strip().startswith(";"))
    print("instructions:", n, "nops inserted:", e.nops_inserted)
    open(sys.argv[1] + ".stamps", "w").write(" ".join(STAMPS))
```

```python
import sys, os, struct
sys.path.insert(0, os.path.dirname(os.path.abspath(__file__)))
from emit import E
from asmlib import KN, kernel_file
def X(n, d=None):
    v = os.environ.get(n)
    return v if v is not None else d
WS_EPOCH = 0x0
WS_PUB, WS_FB1, WS_FB2, WS_FB3 = 0x1000, 0x2000, 0x3000, 0x4000
WS_FA1 = 0x5000
WS_FA2 = 0x6000
WS_TS = 0x20000
WS_HSH, WS_X1, WS_PQ, WS_ST2, WS_KVT, WS_KVP, WS_H2 = 0x100000, 0x300000, 0x500000, 0x700000, 0x780000, 0x800000, 0x1000000
WS_SIZE = 0x10000000
XM = 4352
def SL(k): return 69632 + 16384 * k
PA = 151552
PA_GW, PA_G, PA_ST, PA_CS3 = PA, PA + 1024, PA + 1536, PA + 5632
LDS_BYTES = 163840
P4B = 36864
S_AX, S_WQKV, S_WO, S_DS, S_W1, S_W2, S_W3, S_W4, S_OUT, S_WS, S_GW = 4, 8, 12, 16, 20, 24, 28, 32, 36, 40, 44
sW, sTB, sFB, sU, sV, sTAG, sPURE, sXCC = 48, 49, 50, 51, 52, 53, 54, 55
sT0, sT1, sT2, sT3, sT4, sT5 = 56, 57, 58, 59, 60, 61
sSAVE = 62
sQA, sQW, sQSTEP, sJ = 64, 65, 66, 67
sB0, sB1, sB2, sB3 = 68, 69, 70, 71
sC_LOG2E, sC_G1, sC_EPS6 = 72, 74, 76
sONES = 78
sB4, sB5, sB6, sB7 = 80, 81, 82, 83
sI, sC, sSPIN, sDELTA, sHEAD = 90, 91, 93, 94, 95
S_W3F = S_W3
S_W3T = 44
SIZES = {S_WQKV: 512*3072, S_W1: 524288, S_W2: 524288, S_W3: 512*3584, S_WO: 524288, S_W4: 1792*1024}
vLANE, vT, vHH, vL16, vL128 = 1, 2, 3, 4, 5
vAN, vAP = 6, 8
vW1K, vW3, vWAB, vXO, vXE = 10, 14, 18, 22, 26
vJUNK = 27
vG0C = 28
vRES = 30
vA = 38
vT0 = 54
vPUB = 63
vTCH = 50
vTS = 0
PROFILE = not X("NOPROF")
STAMPS = []
def srd(n): return f"s[{n}:{n+3}]"
def vr(a, n=1): return f"v{a}" if n == 1 else f"v[{a}:{a+n-1}]"
def ar(a, n=1): return f"a{a}" if n == 1 else f"a[{a}:{a+n-1}]"
def f2u(x): return struct.unpack("<I", struct.pack("<f", x))[0]

class Ref:
    def __init__(self): self.tok = None
class VQ:
    def __init__(self, e): self.e = e; self.q = []
    def push(self, fn):
        r = Ref(); self.q.append((fn, r)); return r
    def pop(self, n=1):
        for _ in range(n):
            if not self.q: return
            fn, r = self.q.pop(0); r.tok = fn()
    def force(self, r):
        while r.tok is None: self.pop(1)
    def wait(self, r):
        if isinstance(r, (list, tuple)): r = r[-1]
        self.force(r); self.e.wait_vm(r.tok)
    def drain(self): self.pop(len(self.q))
    def take(self, n=None):
        n = len(self.q) if n is None else min(n, len(self.q))
        items, self.q = self.q[:n], self.q[n:]
        return Stag(self.e, items)
class Stag:
    def __init__(self, e, items): self.e = e; self.items = items; self.n0 = None
    def point(self, k):
        e = self.e
        if not self.items: return
        if k == 0: self.n0 = e.vm_n
        else:
            assert e.vm_n == self.n1, "VMEM issued inside a stagger region"
            del e.vm_kinds[self.n0:]; e.vm_n = self.n0
        l = e.skip_begin(f"s_cmp_lg_u32 s{sW}, {k}")
        for fn, r in self.items: r.tok = fn()
        e.skip_end(l)
        self.n1 = e.vm_n

def stamp(e, name):
    if not PROFILE: return
    idx = len(STAMPS); STAMPS.append(str(name)); assert idx < 62
    e(f"s_memtime s[96:97]\ns_waitcnt lgkmcnt(0)\ns_sub_u32 s96, s96, s98\nv_writelane_b32 v{vTS}, s96, {idx}")
    e.ld_done = e.ld_n
def stamp_flush(e):
    if not PROFILE: return
    e(f"s_memrealtime s[96:97]\ns_waitcnt lgkmcnt(0)\nv_writelane_b32 v{vTS}, s96, 63\nv_writelane_b32 v{vTS}, s100, 62")
    e(f"s_lshl_b32 s{sT0}, s2, 2\ns_add_u32 s{sT0}, s{sT0}, s{sW}\ns_lshl_b32 s{sT0}, s{sT0}, 8\ns_add_u32 s{sT0}, s{sT0}, {WS_TS}")
    e(f"v_lshlrev_b32 v{vT0}, 2, v{vLANE}")
    e.vm(f"buffer_store_dword v{vTS}, v{vT0}, {srd(S_WS)}, s{sT0} offen", "store")

def push_dma_group(q, voff, srdn, setup, n=4):
    e = q.e; refs = []
    for j in range(n):
        def fn(j=j):
            if j == 0: e(setup)
            off = f" offset:{1024*j}" if j else ""
            return e.vm(f"buffer_load_dwordx4 v{voff+j}, {srd(srdn)}, s{sQA} offen{off} lds")
        refs.append(q.push(fn))
    return refs
def push_touch(q, srdn, share, k0, n):
    e = q.e
    for k in range(n):
        def fn(k=k):
            e(f"s_mul_i32 s{sQA}, s{sJ}, {share}\ns_lshl_b32 s{sT5}, s{sW}, 13\ns_add_u32 s{sQA}, s{sQA}, s{sT5}")
            if k0 + k: e(f"s_add_u32 s{sQA}, s{sQA}, {(k0+k)*32768}")
            return e.vm(f"buffer_load_dword v{vJUNK}, v{vL128}, {srd(srdn)}, s{sQA} offen")
        q.push(fn)

def touch_blk(e, srdn, blk0):
    e(f"s_lshl_b32 s{sQA}, s{sJ}, 2\ns_add_u32 s{sQA}, s{sQA}, s{sW}" + (f"\ns_add_u32 s{sQA}, s{sQA}, {blk0}" if blk0 else "") + f"\ns_lshl_b32 s{sQA}, s{sQA}, 13")
    return e.vm(f"buffer_load_dword v{vJUNK}, v{vL128}, {srd(srdn)}, s{sQA} offen")
def touch16(e, srdn, k):
    en = X("T16", "wo,w4").split(",")
    nm = {S_W2: "w2", S_W3T: "w3", S_WO: "wo", S_W4: "w4"}[srdn]
    if nm not in en: return None
    e(f"s_lshl_b32 s{sQA}, s{sJ}, 2\ns_add_u32 s{sQA}, s{sQA}, s{sW}\ns_lshl_b32 s{sQA}, s{sQA}, 11" + (f"\ns_add_u32 s{sQA}, s{sQA}, {k*262144}" if k else ""))
    e("s_mov_b64 exec, 0xffff")
    tk = e.vm(f"buffer_load_dword v{vJUNK}, v{vL128}, {srd(srdn)}, s{sQA} offen")
    e("s_mov_b64 exec, -1")
    return tk
def touch_chunk(e, c):
    e(f"s_lshl_b32 s{sQA}, s{sJ}, 2\ns_add_u32 s{sQA}, s{sQA}, s{sW}\ns_cmp_lt_u32 s{sQA}, 96")
    e(f"s_cselect_b32 s84, s{S_WQKV}, s{S_W1}\ns_cselect_b32 s85, s{S_WQKV+1}, s{S_W1+1}\ns_cselect_b32 s86, s{S_WQKV+2}, s{S_W1+2}\ns_mov_b32 s87, 0x20000")
    e(f"s_mov_b32 s{sT5}, {c*32768 - 96*1024}\ns_cselect_b32 s{sT5}, {c*98304}, s{sT5}\ns_lshl_b32 s{sQA}, s{sQA}, 10\ns_add_u32 s{sQA}, s{sQA}, s{sT5}")
    e("s_mov_b64 exec, 0xff")
    tk = e.vm(f"buffer_load_dword v{vJUNK}, v{vL128}, s[84:87], s{sQA} offen")
    e("s_mov_b64 exec, -1")
    return tk
def set_exec(n):
    if n <= 32: return f"s_mov_b64 exec, {hex((1 << n) - 1)}" if n < 32 else "s_mov_b32 exec_lo, -1\ns_mov_b32 exec_hi, 0"
    return f"s_mov_b32 exec_hi, {hex((1 << (n - 32)) - 1)}"
def touch_chunks(e, c0, nch):
    e(f"s_lshl_b32 s{sQA}, s{sJ}, 2\ns_add_u32 s{sQA}, s{sQA}, s{sW}\ns_cmp_lt_u32 s{sQA}, 96")
    e(f"s_cselect_b32 s84, s{S_WQKV}, s{S_W1}\ns_cselect_b32 s85, s{S_WQKV+1}, s{S_W1+1}\ns_cselect_b32 s86, s{S_WQKV+2}, s{S_W1+2}\ns_mov_b32 s87, 0x20000")
    e(f"s_mov_b32 s{sT5}, 32768\ns_cselect_b32 s{sT5}, 98304, s{sT5}")
    e(f"v_lshrrev_b32 v{vTCH}, 3, v{vLANE}\nv_mul_lo_u32 v{vTCH}, v{vTCH}, s{sT5}\nv_and_b32 v{vTCH+1}, 7, v{vLANE}\nv_lshlrev_b32 v{vTCH+1}, 7, v{vTCH+1}\nv_add_u32 v{vTCH}, v{vTCH}, v{vTCH+1}")
    e(f"s_mul_i32 s{sT5}, s{sT5}, {c0}\ns_cmp_lt_u32 s{sQA}, 96\ns_cselect_b32 s83, 0, 96\ns_sub_u32 s{sQA}, s{sQA}, s83\ns_lshl_b32 s{sQA}, s{sQA}, 10\ns_add_u32 s{sQA}, s{sQA}, s{sT5}")
    if nch < 8: e(set_exec(8*nch))
    tk = e.vm(f"buffer_load_dword v{vJUNK}, v{vTCH}, s[84:87], s{sQA} offen")
    if nch < 8: e("s_mov_b64 exec, -1")
    return tk
def touch_slow_ab(e, ch=3):
    e(f"s_lshl_b32 s{sQA}, s{sJ}, 2\ns_add_u32 s{sQA}, s{sQA}, s{sW}\ns_cmp_lt_u32 s{sQA}, 96")
    e(f"s_cselect_b32 s84, s{S_WQKV}, s{S_W1}\ns_cselect_b32 s85, s{S_WQKV+1}, s{S_W1+1}\ns_cselect_b32 s86, s{S_WQKV+2}, s{S_W1+2}\ns_mov_b32 s87, 0x20000")
    e(f"s_cselect_b32 s{sT5}, 0, 96\ns_sub_u32 s{sQA}, s{sQA}, s{sT5}\ns_lshl_b32 s{sQA}, s{sQA}, 14\ns_add_u32 s{sQA}, s{sQA}, {ch*128}")
    e(f"v_lshlrev_b32 v{vTCH}, 10, v{vLANE}")
    e("s_mov_b64 exec, 0xffff")
    tk = e.vm(f"buffer_load_dword v{vJUNK}, v{vTCH}, s[84:87], s{sQA} offen")
    e("s_mov_b64 exec, -1")
    return tk
def touch_slow(e, srdn, nrows, ch=3):
    per = nrows // 128
    e(f"s_lshl_b32 s{sQA}, s{sJ}, 2\ns_add_u32 s{sQA}, s{sQA}, s{sW}\ns_mul_i32 s{sQA}, s{sQA}, {per*1024}\ns_add_u32 s{sQA}, s{sQA}, {ch*128}")
    e(f"v_lshlrev_b32 v{vTCH}, 10, v{vLANE}")
    e(set_exec(per))
    tk = e.vm(f"buffer_load_dword v{vJUNK}, v{vTCH}, {srd(srdn)}, s{sQA} offen")
    e("s_mov_b64 exec, -1")
    return tk
def touch_all(e, segs, lanes):
    blk = lanes * 128
    e(f"s_lshl_b32 s{sQA}, s2, 2\ns_add_u32 s{sQA}, s{sQA}, s{sW}")
    sr0 = segs[0][0]
    e(f"s_mov_b32 s84, s{sr0}\ns_mov_b32 s85, s{sr0+1}\ns_mov_b32 s86, {segs[0][1]}\ns_mov_b32 s87, 0x20000\ns_mov_b32 s{sT5}, 0")
    lo = 0
    for k in range(1, len(segs)):
        assert segs[k-1][1] % blk == 0
        lo += segs[k-1][1] // blk
        sr = segs[k][0]
        e(f"s_cmp_ge_u32 s{sQA}, {lo}\ns_cselect_b32 s84, s{sr}, s84\ns_cselect_b32 s85, s{sr+1}, s85\ns_cselect_b32 s86, {segs[k][1]}, s86\ns_cselect_b32 s{sT5}, {lo}, s{sT5}")
    assert lo + -(-segs[-1][1] // blk) <= 1024, lo
    e(f"s_sub_u32 s{sQA}, s{sQA}, s{sT5}\ns_mul_i32 s{sQA}, s{sQA}, {blk}")
    if lanes < 64: e(set_exec(lanes))
    tk = e.vm(f"buffer_load_dword v{vJUNK}, v{vL128}, s[84:87], s{sQA} offen")
    if lanes < 64: e("s_mov_b64 exec, -1")
    return tk
def touch_code(e, label):
    if X("CODETOUCH", "1") == "0": return None
    e(f"s_lshl_b32 s{sT5}, s{sW}, 13\ns_add_u32 s{sT5}, s{sT5}, {label}-L_pc\ns_min_u32 s{sT5}, s{sT5}, L_codeend-L_pc-8192")
    e(f"s_add_u32 s84, s88, s{sT5}\ns_addc_u32 s85, s89, 0")
    return e.vm(f"global_load_dword v{vJUNK}, v{vL128}, s[84:85]")
def touch_dst(e, setup_fn, nlanes):
    if X("DSTTOUCH", "1") == "0": return None
    reg = setup_fn()
    if nlanes < 64: e(f"s_mov_b64 exec, {hex((1 << nlanes) - 1)}")
    tk = e.vm(f"buffer_load_dword v{vJUNK}, v{vL128}, {srd(S_WS)}, s{reg} offen")
    if nlanes < 64: e("s_mov_b64 exec, -1")
    return tk
def touch_round0(e):
    e(f"s_lshl_b32 s{sQA}, s{sJ}, 2\ns_add_u32 s{sQA}, s{sQA}, s{sW}\ns_cmp_lt_u32 s{sQA}, 64")
    for k in range(4): e(f"s_cselect_b32 s{S_DS+k}, s{S_WO+k}, s{S_W4+k}")
    e(f"s_cselect_b32 s{sT5}, 0, 64\ns_sub_u32 s{sQA}, s{sQA}, s{sT5}\ns_lshl_b32 s{sQA}, s{sQA}, 13")
    return e.vm(f"buffer_load_dword v{vJUNK}, v{vL128}, {srd(S_DS)}, s{sQA} offen")
def set_voffW(e, dst, ld):
    t = vT0
    e(f"v_lshrrev_b32 v{t}, 3, v{vLANE}\nv_mul_u32_u24 v{t}, {ld}, v{t}")
    e(f"v_lshrrev_b32 v{t+1}, 2, v{vLANE}\nv_lshrrev_b32 v{t+2}, 4, v{vLANE}\nv_xor_b32 v{t+1}, v{t+1}, v{t+2}\nv_and_b32 v{t+1}, 1, v{t+1}")
    e(f"v_lshlrev_b32 v{t+1}, 6, v{t+1}\nv_and_b32 v{t+2}, 3, v{vLANE}\nv_lshlrev_b32 v{t+2}, 4, v{t+2}")
    e(f"v_add3_u32 v{dst}, v{t}, v{t+1}, v{t+2}")
    for j in range(1, 4): e(f"v_add_u32 v{dst+j}, {j*(8*ld-1024)}, v{dst}")

def flag_store(e, soff, sc):
    e(f"v_mov_b32 v{vT0}, s{sTAG}\nv_mov_b32 v{vT0+1}, 0")
    e(f"v_cmp_eq_u32 vcc, 0, v{vLANE}\ns_and_saveexec_b64 s[{sSAVE}:{sSAVE+1}], vcc")
    e(f"buffer_store_dword v{vT0}, v{vT0+1}, {srd(S_WS)}, s{soff} offen {sc}")
    e(f"s_mov_b64 exec, s[{sSAVE}:{sSAVE+1}]")
def publish(e, setup, always_slow=False, upto=None):
    if upto is None: e.wait_vm_all()
    else: e.wait_vm(upto)
    e("s_barrier")
    l = e.newlabel("Lpub")
    e(f"s_cmp_lg_u32 s{sW}, 0\ns_cbranch_scc1 {l}")
    e(setup)
    if always_slow: flag_store(e, sT2, "sc1")
    else:
        l2 = e.newlabel("Lpub"); l3 = e.newlabel("Lpub")
        e(f"s_cmp_eq_u32 s{sPURE}, 0\ns_cbranch_scc1 {l2}")
        flag_store(e, sT2, "")
        e(f"s_branch {l3}")
        e.label(l2)
        flag_store(e, sT2, "sc1")
        e.label(l3)
    e.label(l)
    e.vm_kinds.append("store"); e.vm_n += 1
def poll(e, setup, nflags):
    l = e.newlabel("Lpoll"); lx = e.newlabel("Lpollx"); ls = e.newlabel("Lpolls")
    e(f"s_cmp_lg_u32 s{sW}, 0\ns_cbranch_scc1 {ls}")
    e(setup)
    e(f"v_lshlrev_b32 v{vT0+1}, 2, v{vLANE}")
    e(f"v_cmp_gt_u32 vcc, {nflags}, v{vLANE}\ns_and_saveexec_b64 s[{sSAVE}:{sSAVE+1}], vcc")
    e(f"s_mov_b32 s{sSPIN}, 0x40000")
    e.label(l)
    e(f"s_sub_u32 s{sSPIN}, s{sSPIN}, 1\ns_cmp_eq_u32 s{sSPIN}, 0\ns_cbranch_scc1 {lx}")
    e(f"buffer_load_dword v{vT0}, v{vT0+1}, {srd(S_WS)}, s{sT2} offen sc1")
    e("s_waitcnt vmcnt(0)")
    e(f"v_cmp_ne_u32 vcc, s{sTAG}, v{vT0}")
    e(f"s_cbranch_vccnz {l}")
    e.label(lx)
    e(f"s_mov_b64 exec, s[{sSAVE}:{sSAVE+1}]")
    e.label(ls)
    e("s_barrier")
def wt(name): return name in X("WT", "pq,h2").split(",")
def stores2(e, fn, name=None):
    if name and wt(name):
        fn("sc1"); return e.vm_n - 1
    l2 = e.newlabel("Lst"); l3 = e.newlabel("Lst")
    e(f"s_cmp_eq_u32 s{sPURE}, 0\ns_cbranch_scc1 {l2}")
    n0 = e.vm_n; fn(""); n1 = e.vm_n
    e(f"s_branch {l3}")
    e.label(l2)
    del e.vm_kinds[n0:]; e.vm_n = n0
    fn("sc1"); assert e.vm_n == n1
    e.label(l3)
    return n1 - 1
def tr_frag(e, dst, addr, off, second, acc=False):
    r = ar if acc else vr
    e.lds(f"ds_read_b64_tr_b16 {r(dst,2)}, v{addr} offset:{off}")
    return e.lds(f"ds_read_b64_tr_b16 {r(dst+2,2)}, v{addr} offset:{off+second}")
def mfma(e, d, a, b, c=None, aa=False, ba=False):
    A = ar(a, 4) if aa else vr(a, 4); B = ar(b, 4) if ba else vr(b, 4)
    C = vr(d, 16) if c is None else c
    e(f"v_mfma_f32_32x32x16_bf16 {vr(d,16)}, {A}, {B}, {C}")
def interleave(mains, fillers):
    n = len(mains); m = len(fillers); k = 0
    for i, f in enumerate(mains):
        f()
        upto = (m * (i + 1) + n - 1) // n if i + 1 < n else m
        while k < upto: fillers[k](); k += 1
def gelu_pairs(e, accs, rstd, tmp, outs, q=None, npop=0):
    n = len(accs); P = lambda r: vr(r, 2)
    steps = [
        lambda k: f"v_pk_mul_f32 {P(accs[k])}, {P(accs[k])}, {P(rstd)} op_sel_hi:[1,0]",
        lambda k: f"v_pk_mul_f32 {P(tmp[k])}, {P(accs[k])}, {P(accs[k])}",
        lambda k: f"v_pk_fma_f32 {P(tmp[k])}, {P(tmp[k])}, s[{sC_G1}:{sC_G1+1}], {P(vG0C)}",
        lambda k: f"v_pk_mul_f32 {P(tmp[k])}, {P(tmp[k])}, {P(accs[k])}",
        lambda k: f"v_exp_f32 v{tmp[k]}, v{tmp[k]}\nv_exp_f32 v{tmp[k]+1}, v{tmp[k]+1}",
        lambda k: f"v_pk_add_f32 {P(tmp[k])}, {P(tmp[k])}, 1.0 op_sel_hi:[1,0]",
        lambda k: f"v_rcp_f32 v{tmp[k]}, v{tmp[k]}\nv_rcp_f32 v{tmp[k]+1}, v{tmp[k]+1}",
        lambda k: f"v_pk_mul_f32 {P(accs[k])}, {P(accs[k])}, {P(tmp[k])}",
        lambda k: f"v_cvt_pk_bf16_f32 v{outs[k]}, v{accs[k]}, v{accs[k]+1}"]
    left = npop
    for si, st in enumerate(steps):
        for k in range(n): e(st(k))
        if q is not None and left > 0:
            m = -(-left // (len(steps) - si)); q.pop(m); left -= m
def halfsum(e, r, t):
    e(f"v_mov_b32 v{t}, v{r}\nv_permlane32_swap_b32 v{r}, v{t}\nv_add_f32 v{r}, v{r}, v{t}")
def corr_frags(e, cs, negmean, A, B, t):
    if cs is not None:
        e(f"v_cvt_pk_bf16_f32 v{t}, v{cs}, v{cs}\nv_and_b32 v{t}, 0xffff0000, v{t}\nv_sub_f32 v{t}, v{cs}, v{t}")
        e(f"v_cvt_pk_bf16_f32 v{A}, v{cs}, v{t}\nv_mov_b32 v{A+1}, v{A}\nv_mov_b32 v{A+2}, 0\nv_mov_b32 v{A+3}, 0")
    if negmean is not None:
        e(f"v_cvt_pk_bf16_f32 v{B}, v{negmean}, v{negmean}\nv_and_b32 v{t}, 0xffff0000, v{B}\nv_sub_f32 v{t}, v{negmean}, v{t}")
        e(f"v_cvt_pk_bf16_f32 v{B+1}, v{t}, v{t}\nv_mov_b32 v{B+2}, 0\nv_mov_b32 v{B+3}, 0")
def ln_stats(e, S, Q, negmean, rstd, t):
    e(f"v_mul_f32 v{negmean}, 0xbb000000, v{S}\nv_mul_f32 v{t}, 0x3b000000, v{Q}")
    e(f"v_fma_f32 v{t}, -v{negmean}, v{negmean}, v{t}\nv_max_f32 v{t}, 0, v{t}\nv_add_f32 v{t}, 0x3727c5ac, v{t}\nv_rsq_f32 v{rstd}, v{t}")
def frag_soff(e, dst, base, nks, ks_lines, blk=None):
    blk = sI if blk is None else blk
    e(ks_lines)
    e(f"s_lshl_b32 s{sT2}, s{sTB}, 1\ns_add_u32 s{sT2}, s{sT2}, s{blk}\ns_mul_i32 s{sT2}, s{sT2}, {nks}\ns_add_u32 s{sT2}, s{sT2}, s{sT3}")
    e(f"s_lshl_b32 s{sT2}, s{sT2}, 10\ns_add_u32 s{dst}, s{sT2}, {base}")
def own_soff_q(e, base, nks):
    e(f"s_lshl_b32 s{sQA}, s{sTB}, 1\ns_add_u32 s{sQA}, s{sQA}, s{sI}\ns_mul_i32 s{sQA}, s{sQA}, {nks}\ns_lshl_b32 s{sT5}, s{sFB}, 2\ns_add_u32 s{sQA}, s{sQA}, s{sT5}")
    e(f"s_lshl_b32 s{sT5}, s{sC}, 1\ns_add_u32 s{sQA}, s{sQA}, s{sT5}\ns_lshl_b32 s{sQA}, s{sQA}, 10\ns_add_u32 s{sQA}, s{sQA}, {base}")
    return sQA
OWNKS = f"s_lshl_b32 s{sT3}, s{sFB}, 2\ns_lshl_b32 s{sT4}, s{sC}, 1\ns_add_u32 s{sT3}, s{sT3}, s{sT4}"
teamflag = lambda base: f"s_lshl_b32 s{sT2}, s{sU}, 7\ns_lshl_b32 s{sT3}, s{sV}, 2\ns_add_u32 s{sT2}, s{sT2}, s{sT3}\ns_add_u32 s{sT2}, s{sT2}, {base}"

def prologue(e, q):
    e(f"s_cmp_ge_u32 s2, 256\ns_cbranch_scc1 L_end")
    if PROFILE: e("s_memrealtime s[100:101]\ns_memtime s[98:99]")
    e(f"s_getpc_b64 s[{sT0}:{sT0+1}]")
    e.label("L_pc")
    e(f"s_mov_b32 s88, s{sT0}\ns_mov_b32 s89, s{sT1}")
    e("s_load_dwordx16 s[64:79], s[0:1], 0\ns_load_dwordx8 s[80:87], s[0:1], 64")
    for k in range(2):
        e(f"v_lshlrev_b32 v30, 7, v0" + (f"\nv_add_u32 v30, {0x8000*k}, v30" if k else "") + f"\nv_min_u32 v30, L_codeend-L_pc-4, v30\nv_mov_b32 v31, s{sT1}")
        e(f"v_add_co_u32 v30, vcc, s{sT0}, v30\nv_addc_co_u32 v31, vcc, 0, v31, vcc")
        e.vm(f"global_load_dword v{vJUNK}, v[30:31], off")
    e(f"v_and_b32 v{vLANE}, 63, v0\nv_lshrrev_b32 v{vT0}, 6, v0\nv_readfirstlane_b32 s{sW}, v{vT0}")
    e(f"v_and_b32 v{vT}, 31, v{vLANE}\nv_lshrrev_b32 v{vHH}, 5, v{vLANE}\nv_lshlrev_b32 v{vL16}, 4, v{vLANE}\nv_lshlrev_b32 v{vL128}, 7, v{vLANE}")
    e(f"s_and_b32 s{sT2}, s2, 7\ns_lshr_b32 s{sT3}, s2, 3")
    e(f"s_lshr_b32 s{sT4}, s{sT3}, 3\ns_lshl_b32 s{sTB}, s{sT2}, 2\ns_add_u32 s{sTB}, s{sTB}, s{sT4}")
    e(f"s_and_b32 s{sFB}, s{sT3}, 7\ns_lshr_b32 s{sU}, s{sTB}, 1\ns_and_b32 s{sV}, s{sT3}, 15")
    e(f"s_lshr_b32 s{sI}, s{sW}, 1\ns_and_b32 s{sC}, s{sW}, 1\ns_mov_b32 s92, s{sT3}")
    e(f"s_getreg_b32 s{sXCC}, hwreg(HW_REG_XCC_ID, 0, 4)")
    e(f"s_lshr_b32 s{sT2}, s{sFB}, 1\ns_lshr_b32 s{sT3}, s{sT2}, 1\ns_add_u32 s{sT3}, s{sT3}, 1")
    e(f"s_sub_u32 s{sT4}, 0, s{sT3}\ns_bitcmp1_b32 s{sT2}, 0\ns_cselect_b32 s{sDELTA}, s{sT4}, s{sT3}")
    t = vT0
    e(f"s_lshl_b32 s{sT4}, s{sTB}, 6\ns_sub_u32 s{sT4}, s{sT4}, 2")
    e(f"v_and_b32 v{t}, 3, v{vLANE}\nv_lshrrev_b32 v{t+1}, 4, v{vLANE}\nv_xor_b32 v{t}, v{t}, v{t+1}\nv_and_b32 v{t}, 3, v{t}\nv_lshlrev_b32 v{t}, 4, v{t}")
    e(f"v_lshrrev_b32 v{t+1}, 2, v{vLANE}\nv_add_u32 v{t+1}, s{sT4}, v{t+1}")
    for j in range(5):
        e(f"v_add_u32 v{t+2}, {16*j}, v{t+1}\nv_max_i32 v{t+2}, 0, v{t+2}\nv_min_i32 v{t+2}, 2047, v{t+2}")
        e(f"v_lshlrev_b32 v{t+2}, 10, v{t+2}\nv_add_u32 v{t+2}, v{t+2}, v{t}")
        if j == 0: e(f"v_mov_b32 v{vXO}, v{t+2}")
        elif j < 4: e(f"v_subrev_u32 v{vXO+j}, {1024*j}, v{t+2}")
        else: e(f"v_mov_b32 v{vXE}, v{t+2}")
    set_voffW(e, vW1K, 1024)
    set_voffW(e, vWAB, 3072)
    e(f"s_cmp_eq_u32 s{sW}, 3\ns_cselect_b64 vcc, -1, 0")
    for j in range(4): e(f"v_cndmask_b32 v{vWAB+j}, v{vWAB+j}, v{vW1K+j}, vcc")
    e("s_waitcnt lgkmcnt(0)")
    for dst, src, size in [(S_AX, 64, 2097152), (S_WQKV, 66, 512*3072), (S_W1, 72, 524288), (S_WS, 86, WS_SIZE), (S_GW, 80, 1024), (S_W2, 74, 524288),
                           (S_WO, 68, 524288), (S_W3, 76, 512*3584), (S_W4, 78, 1792*1024), (S_OUT, 82, 2097152)]:
        e(f"s_mov_b32 s{dst}, s{src}\ns_mov_b32 s{dst+1}, s{src+1}\ns_mov_b32 s{dst+2}, {size}\ns_mov_b32 s{dst+3}, 0x20000")
    if PROFILE: e(f"v_mov_b32 v{vTS}, 0")
    stamp(e, "karg")
    e(f"s_load_dword s{sTAG}, s[{S_WS}:{S_WS+1}], 0")
    e(f"s_mov_b32 s{sJ}, s92")
    e(f"s_cmp_eq_u32 s{sW}, 3")
    for k in range(4): e(f"s_cselect_b32 s{S_DS+k}, s{S_W1+k}, s{S_WQKV+k}")
    e(f"s_lshl_b32 s{sT2}, s{sW}, 10\ns_cmp_eq_u32 s{sW}, 3\ns_cselect_b32 s{sT2}, 0, s{sT2}\ns_mov_b32 s{sQSTEP}, {32*3072}\ns_cselect_b32 s{sQSTEP}, {32*1024}, s{sQSTEP}")
    e(f"s_lshl_b32 s{sT3}, s{sFB}, 7\ns_add_u32 s{sQW}, s{sT2}, s{sT3}")
    e(f"s_lshl_b32 s{sB0}, s{sW}, 12")
    e(f"s_mul_i32 s{sB1}, s{sW}, {XM}\ns_lshl_b32 s{sB2}, s{sW}, 6")

def push_x(q, qq):
    e = q.e
    refs = push_dma_group(q, vXO, S_AX, f"s_add_u32 m0, s{sB1}, {qq*4*XM}\ns_add_u32 s{sQA}, s{sB2}, {256*qq}")
    def fn():
        e(f"s_add_u32 m0, s{sB1}, {qq*4*XM + 4096}")
        e(f"s_mov_b64 exec, 0xffff")
        tk = e.vm(f"buffer_load_dwordx4 v{vXE}, {srd(S_AX)}, s{sQA} offen lds")
        e(f"s_mov_b64 exec, -1")
        return tk
    refs.append(q.push(fn))
    return refs
def push_wab(q, c):
    return push_dma_group(q, vWAB, S_DS, f"s_add_u32 m0, s{sB0}, {SL(c % 5)}\ns_mov_b32 s{sQA}, s{sQW}\ns_add_u32 s{sQW}, s{sQW}, s{sQSTEP}")
def push_w2(q, k):
    return push_dma_group(q, vW1K, S_W2, f"s_add_u32 m0, s{sB0}, {SL(1+k)}\ns_lshl_b32 s{sQA}, s{sW}, 15\ns_lshl_b32 s{sT5}, s{sFB}, 7\ns_add_u32 s{sQA}, s{sQA}, s{sT5}\ns_add_u32 s{sQA}, s{sQA}, {k*128*1024}")
def w3_lds(g): return g * 8192 if g < 8 else SL(0) + (g - 8) * 8192
def push_w3(q, gl, ps=(0, 1)):
    refs = []
    for p in ps:
        refs += push_dma_group(q, vW3, S_W3, f"s_lshl_b32 s{sQA}, s{sW}, 13\ns_add_u32 m0, s{sQA}, {w3_lds(4*gl) + p*4096}\n"
                               f"s_mul_i32 s{sQA}, s{sW}, {32*3584}\ns_lshl_b32 s{sT5}, s{sV}, 8\ns_add_u32 s{sQA}, s{sQA}, s{sT5}\ns_add_u32 s{sQA}, s{sQA}, {4*gl*32*3584 + 128*p}")
    return refs
def region_m0(reg, slot):
    if reg == "A": return f"s_lshl_b32 s{sQA}, s{sW}, 14\ns_add_u32 m0, s{sQA}, {slot*4096}"
    if reg == "B": return f"s_lshl_b32 s{sQA}, s{sW}, 14\ns_add_u32 m0, s{sQA}, {SL(0) + slot*4096}"
    return f"s_lshl_b32 s{sQA}, s{sW}, 12\ns_add_u32 m0, s{sQA}, {SL(4)}"
def push_wp(q, srdn, rows_per_wave, g, reg, slot):
    return push_dma_group(q, vW1K, srdn, region_m0(reg, slot) + "\n" +
                          f"s_mul_i32 s{sQA}, s{sW}, {rows_per_wave*1024}\ns_lshl_b32 s{sT5}, s{sFB}, 7\ns_add_u32 s{sQA}, s{sQA}, s{sT5}\ns_add_u32 s{sQA}, s{sQA}, {g*32*1024}")
W4LOC = {g: (("A", g) if g < 4 else ("C", 0)) for g in range(5)}
W4LOC.update({5 + g: (("A", g) if g < 4 else ("C", 0)) for g in range(5)})
W4LOC.update({10 + g: ("B", g) for g in range(4)})
def push_w4(q, g):
    reg, slot = W4LOC[g]
    return push_dma_group(q, vW1K, S_W4, region_m0(reg, slot) + "\n" +
                          f"s_lshl_b32 s{sQA}, s{sW}, 15\ns_lshl_b32 s{sT5}, s{sFB}, 7\ns_add_u32 s{sQA}, s{sQA}, s{sT5}\ns_add_u32 s{sQA}, s{sQA}, {g*128*1024}")
def push_wo(q, g): return push_wp(q, S_WO, 128, g, "B", g)
def set_region_addrs(e):
    sel_addrP(e, vA + 4)
    e(f"s_lshl_b32 s{sT2}, s{sW}, 14\nv_add_u32 v{vA}, s{sT2}, v{vA+4}\nv_add_u32 v{vA+1}, s{sT2}, v{vA+5}")
    e(f"v_add_u32 v{vA+2}, {SL(0)}, v{vA}\nv_add_u32 v{vA+3}, {SL(0)}, v{vA+1}")
    e(f"s_lshl_b32 s{sT2}, s{sW}, 12\ns_add_u32 s{sT2}, s{sT2}, {SL(4)}\nv_add_u32 v{vA+4}, s{sT2}, v{vA+4}\nv_add_u32 v{vA+5}, s{sT2}, v{vA+5}")
def region_addr(reg, slot, c):
    return vA + {"A": 0, "B": 2, "C": 4}[reg] + c, (slot*4096 if reg != "C" else 0)
W4A = 128
def w4_to_agpr_fns(e):
    fns = []
    for s in range(10):
        reg, slot = W4LOC[s >> 1]
        for c in range(2):
            a, off = region_addr(reg, slot, c); off += (s & 1)*2048; d = W4A + (2*s + c)*4
            fns.append(lambda a=a, off=off, d=d: e.lds(f"ds_read_b64_tr_b16 {ar(d,2)}, v{a} offset:{off}"))
            fns.append(lambda a=a, off=off, d=d: e.lds(f"ds_read_b64_tr_b16 {ar(d+2,2)}, v{a} offset:{off+1024}"))
    return fns

def common_addr(e):
    t = vT0
    e(f"v_and_b32 v{t}, 15, v{vLANE}\nv_lshrrev_b32 v{t}, 2, v{t}")
    e(f"v_and_b32 v{t+1}, 3, v{vLANE}\nv_lshlrev_b32 v{t+1}, 3, v{t+1}")
    e(f"v_lshrrev_b32 v{t+2}, 4, v{vLANE}\nv_and_b32 v{t+2}, 1, v{t+2}\nv_lshlrev_b32 v{t+2}, 5, v{t+2}")
    e(f"v_add_u32 v{t+1}, v{t+1}, v{t+2}\nv_lshrrev_b32 v{t+2}, 1, v{t}")
    e(f"v_lshlrev_b32 v{t+3}, 7, v{t}\nv_add_u32 v{t+1}, v{t+1}, v{t+3}")
    for c in range(2):
        e(f"v_xor_b32 v{t+3}, {c}, v{t+2}\nv_lshlrev_b32 v{t+3}, 6, v{t+3}\nv_add_u32 v{t+3}, v{t+3}, v{t+1}")
        e(f"v_lshlrev_b32 v{t+4}, 10, v{vHH}\nv_add_u32 v{vAN+c}, v{t+3}, v{t+4}")
        e(f"v_lshlrev_b32 v{t+4}, 9, v{vHH}\nv_add_u32 v{vAP+c}, v{t+3}, v{t+4}")
    set_voffW(e, vW3, 3584)

AQ, AK, AV, AH = 64, 80, 96, 112
def stage_ab1(e, q, xrefs, wrefs):
    t = vT0
    e(f"s_xor_b32 s{sT0}, s{sI}, s{sC}")
    for kind in range(2):
        e(f"s_lshl_b32 s{sT2}, s{sI}, 5\ns_add_u32 s{sT2}, s{sT2}, 2")
        if kind: e(f"s_sub_u32 s{sT2}, s{sT2}, s{sDELTA}")
        e(f"v_add_u32 v{t}, s{sT2}, v{vT}\nv_lshrrev_b32 v{t+1}, 2, v{t}\nv_and_b32 v{t+1}, 3, v{t+1}\nv_lshlrev_b32 v{t}, 6, v{t}")
        for sp in range(2):
            e(f"s_xor_b32 s{sT3}, s{sT0}, {sp}\ns_lshl_b32 s{sT3}, s{sT3}, 1")
            e(f"v_add_u32 v{t+2}, s{sT3}, v{vHH}\nv_xor_b32 v{t+2}, v{t+2}, v{t+1}\nv_lshlrev_b32 v{t+2}, 4, v{t+2}\nv_add_u32 v{vA+2*kind+sp}, v{t}, v{t+2}")
    e(f"s_cmp_eq_u32 s{sC}, 0\ns_cselect_b64 vcc, -1, 0\nv_cndmask_b32 v{t}, v{vAN+1}, v{vAN}, vcc")
    for sp in range(2):
        e(f"s_xor_b32 s{sT3}, s{sT0}, {sp}\ns_lshl_b32 s{sT3}, s{sT3}, 11")
        e(f"s_add_u32 s{sT4}, s{sT3}, {SL(0)}\nv_add_u32 v{vA+4+2*sp}, s{sT4}, v{t}\ns_add_u32 s{sT4}, s{sT3}, {SL(3)}\nv_add_u32 v{vA+5+2*sp}, s{sT4}, v{t}")
    e(f"s_lshl_b32 s{sT3}, s{sT0}, 5\ns_add_u32 s{sT3}, s{sT3}, {PA_GW}\nv_lshlrev_b32 v{vA+8}, 4, v{vHH}\nv_add_u32 v{vA+8}, s{sT3}, v{vA+8}")
    FS2 = [[128, 152], [176, 200]]
    GW2 = [224, 228]
    SUM, SQ, GA, CS = 232, 234, 236, 238
    for r in range(SUM, CS + 2): e(f"v_mov_b32 v{r}, 0")
    def read_fns(c):
        fns = []
        slot = c % 5; seg = 1 if slot >= 3 else 0; off = (slot - 3*seg) * 16384
        for sp in range(2):
            F = FS2[c & 1][sp]
            fns.append(lambda F=F, sp=sp: e.lds(f"ds_read_b128 {vr(F,4)}, v{vA+sp} offset:{c*XM}"))
            fns.append(lambda F=F, sp=sp: e.lds(f"ds_read_b128 {vr(F+4,4)}, v{vA+2+sp} offset:{c*XM}"))
            for m in range(4):
                a = vA + 4 + 2*sp + seg
                fns.append(lambda F=F, m=m, a=a: e.lds(f"ds_read_b64_tr_b16 {vr(F+8+4*m,2)}, v{a} offset:{off + m*4096}"))
                fns.append(lambda F=F, m=m, a=a: e.lds(f"ds_read_b64_tr_b16 {vr(F+10+4*m,2)}, v{a} offset:{off + m*4096 + 512}"))
            if sp == 0: fns.append(lambda: e.lds(f"ds_read_b128 {vr(GW2[c & 1],4)}, v{vA+8} offset:{c*64}"))
        return fns
    def mfma_fns(c):
        fns = []
        for sp in range(2):
            F = FS2[c & 1][sp]; z = "0" if (c == 0 and sp == 0) else None
            for (d, a, b) in [(AQ, F+8, F), (AK, F, F+12), (AV, F, F+16), (AH, F+20, F+4)]:
                fns.append(lambda d=d, a=a, b=b, z=z: mfma(e, d, a, b, c=z))
        return fns
    def dots(c):
        if X("NODOT"): return
        F = FS2[c & 1][0]; G = GW2[c & 1]
        for r in range(4):
            e(f"v_dot2c_f32_bf16 v{SUM+(r&1)}, s{sONES}, v{F+4+r}\nv_dot2c_f32_bf16 v{SQ+(r&1)}, v{F+4+r}, v{F+4+r}")
        for r in range(4):
            e(f"v_dot2c_f32_bf16 v{GA+(r&1)}, v{F+r}, v{G+r}\nv_dot2c_f32_bf16 v{CS+(r&1)}, s{sONES}, v{F+20+r}")
    w2refs = []
    for c in range(17):
        if c < 16:
            q.wait(wrefs[c])
            if c % 4 == 0: q.wait(xrefs[c // 4])
        e.wait_lds_all()
        if c < 16:
            if not X("NOBAR"): e("s_barrier")
            if c >= 1 and c + 4 < 16:
                wrefs[c + 4] = push_wab(q, c + 4)
                if X("NODMA"):
                    for fn, r in q.q: r.tok = -1
                    q.q = []
            if c == 1: xrefs[2] = push_x(q, 2)
            if c == 3: xrefs[3] = push_x(q, 3)
            if c >= 12: w2refs.append(push_w2(q, c - 12))
            extra_push(e, q, c)
        if c in (1, 5, 9, 13): stamp(e, f"ab{c}")
        fill = read_fns(c) if c < 16 else []
        npop = min(len(q.q), 8)
        pops = [lambda: q.pop(1)] * npop
        merged = []
        for k in range(max(len(fill), 1)):
            if k < len(fill): merged.append(fill[k])
            want = (npop * (k + 1)) // max(len(fill), 1)
            while sum(1 for f in merged if f in pops) < want and False: pass
        merged = []; pi = 0
        for k, f in enumerate(fill):
            merged.append(f)
            if k % (4 if npop <= 5 else 2) == 1 and pi < npop: merged.append(pops[pi]); pi += 1
        merged += pops[pi:]
        if c == 0:
            for f in merged: f()
        else:
            if X("DOTFIRST"): dots(c - 1)
            interleave(mfma_fns(c - 1), merged)
            if not X("DOTFIRST"): dots(c - 1)
    e.L.append("L_abend: ; @soft")
    stamp(e, "abmain")
    e(f"s_lshl_b32 s{sT2}, s{sI}, 5\ns_add_u32 s{sT2}, s{sT2}, 2\nv_add_u32 v{t}, s{sT2}, v{vT}\nv_lshrrev_b32 v{t+1}, 2, v{t}\nv_and_b32 v{t+1}, 3, v{t+1}")
    e(f"s_lshl_b32 s{sT2}, s{sFB}, 1\ns_add_u32 s{sT2}, s{sT2}, s{sC}\ns_mul_i32 s{sT2}, s{sT2}, {XM}")
    e(f"v_lshlrev_b32 v{t}, 6, v{t}\nv_lshlrev_b32 v{t+2}, 3, v{vHH}\nv_add3_u32 v{t}, v{t}, v{t+2}, s{sT2}")
    for j in range(4):
        e(f"v_xor_b32 v{t+2}, {j}, v{t+1}\nv_lshlrev_b32 v{t+2}, 4, v{t+2}\nv_add_u32 v{t+2}, v{t+2}, v{t}")
        e.lds(f"ds_read_b64 {vr(vRES+2*j,2)}, v{t+2}")
    e(f"v_add_f32 v{t}, v{SUM}, v{SUM+1}\nv_add_f32 v{t+1}, v{SQ}, v{SQ+1}\nv_add_f32 v{t+2}, v{GA}, v{GA+1}\nv_add_f32 v{t+3}, v{CS}, v{CS+1}")
    e(f"s_lshl_b32 s{sT2}, s{sW}, 10\ns_add_u32 s{sT2}, s{sT2}, {PA_ST}\nv_add_u32 v{vA}, s{sT2}, v{vL16}")
    e.lds(f"ds_write_b128 v{vA}, {vr(t,4)}")
    e.wait_lds_all()
    e("s_barrier")
    if X("ALLTOUCH", "1") != "0" and X("AT1", "ab4") == "ab4":
        touch_all(e, [(S_W3T, 512*3584), (S_WO, 524288), (S_W4, 1792*1024)], 32)
    push_w3(q, 0, (0,)); q.drain(); touch16(e, S_W3T, 3)
    e(f"s_xor_b32 s{sT2}, s{sW}, 1\ns_lshl_b32 s{sT2}, s{sT2}, 10\ns_add_u32 s{sT2}, s{sT2}, {PA_ST}\nv_add_u32 v{vA}, s{sT2}, v{vL16}")
    e(f"s_xor_b32 s{sT2}, s{sW}, 2\ns_lshl_b32 s{sT2}, s{sT2}, 10\ns_add_u32 s{sT2}, s{sT2}, {PA_ST}\nv_add_u32 v{vA+1}, s{sT2}, v{vL16}")
    P = 128
    k0 = e.lds(f"ds_read_b96 {vr(P,3)}, v{vA}")
    k1 = e.lds(f"ds_read_b32 v{P+3}, v{vA+1} offset:12")
    e.wait_lds(k1)
    for r in range(4): e(f"v_add_f32 v{t+r}, v{t+r}, v{P+r}")
    halfsum(e, t, t+4); halfsum(e, t+1, t+4); halfsum(e, t+2, t+4)
    NM, RS = 132, 134
    ln_stats(e, t, t+1, NM, RS, t+4)
    e(f"v_mul_f32 v{t+2}, 0xbfb8aa3b, v{t+2}\nv_exp_f32 v{t+2}, v{t+2}\nv_add_f32 v{t+2}, 1.0, v{t+2}\nv_rcp_f32 v{t+2}, v{t+2}")
    e(f"s_lshl_b32 s{sT2}, s{sI}, 7\ns_add_u32 s{sT2}, s{sT2}, {PA_G}\nv_lshlrev_b32 v{t+5}, 2, v{vT}\nv_add_u32 v{t+5}, s{sT2}, v{t+5}")
    e.lds(f"ds_write_b32 v{t+5}, v{t+2}")
    e(f"s_lshl_b32 s{sT2}, s{sTB}, 6\ns_lshl_b32 s{sT3}, s{sI}, 5\ns_add_u32 s{sT2}, s{sT2}, s{sT3}\ns_sub_u32 s{sT2}, s{sT2}, s{sDELTA}")
    e(f"v_add_u32 v{t+4}, s{sT2}, v{vT}\nv_cmp_gt_u32 vcc, 2048, v{t+4}\nv_cndmask_b32 v{RS}, 0, v{RS}, vcc")
    corr_frags(e, t+3, NM, 136, 140, t+4)
    mfma(e, AH, 136, 140)
    q.drain()
    OUT = 144
    gelu_pairs(e, [AH + 2*k for k in range(4)], RS, [152 + 2*k for k in range(4)], [OUT + k for k in range(4)])
    push_w3(q, 0, (1,)); q.drain(); touch16(e, S_W3T, 4)
    gelu_pairs(e, [AH + 2*k for k in range(4, 8)], RS, [152 + 2*k for k in range(4, 8)], [OUT + k for k in range(4, 8)])
    stamp(e, "b1epi")
    purity(e)
    frag_soff(e, sB3, WS_HSH, 32, OWNKS)
    def st(sc):
        for h in range(2):
            e.vm(f"buffer_store_dwordx4 {vr(OUT+4*h,4)}, v{vL16}, {srd(S_WS)}, s{sB3} offen offset:{1024*h} {sc}", "store")
    tok = stores2(e, st, "h")
    if not wt("x1"):
        touch_dst(e, lambda: own_soff_q(e, WS_X1, 32), 16)
        def st2():
            e(f"s_lshl_b32 s{sQA}, s{sFB}, 1\ns_add_u32 s{sQA}, s{sQA}, s{sC}\ns_lshl_b32 s{sQA}, s{sQA}, 11\ns_lshl_b32 s{sT5}, s{sTB}, 6\ns_add_u32 s{sQA}, s{sQA}, s{sT5}")
            e(f"s_lshl_b32 s{sT5}, s{sI}, 5\ns_add_u32 s{sQA}, s{sQA}, s{sT5}\ns_lshl_b32 s{sQA}, s{sQA}, 3\ns_add_u32 s{sQA}, s{sQA}, {WS_ST2}")
            return sQA
        touch_dst(e, st2, 2)
    return w2refs, tok

def purity(e):
    l = e.newlabel("Lpur"); lx = e.newlabel("Lpurx"); lo = e.newlabel("Lpuro")
    t = vT0
    e.wait_vm(e.pub_ref.tok)
    e(f"s_and_b32 s{sT3}, s{sTAG}, 0xfffffff0\ns_mov_b32 s{sSPIN}, 0x40000")
    e(f"s_lshl_b32 s{sT2}, s{sU}, 7\ns_add_u32 s{sT2}, s{sT2}, {WS_PUB}")
    e.label(l)
    e(f"v_and_b32 v{t+2}, 0xfffffff0, v{vPUB}\nv_cmp_ne_u32 vcc, s{sT3}, v{t+2}\ns_cbranch_vccz {lo}")
    e(f"s_sub_u32 s{sSPIN}, s{sSPIN}, 1\ns_cmp_eq_u32 s{sSPIN}, 0\ns_cbranch_scc1 {lo}")
    e(f"v_and_b32 v{t+1}, 15, v{vLANE}\nv_lshlrev_b32 v{t+1}, 2, v{t+1}")
    e(f"buffer_load_dword v{vPUB}, v{t+1}, {srd(S_WS)}, s{sT2} offen sc1\ns_waitcnt vmcnt(0)\ns_branch {l}")
    e.label(lo)
    e(f"s_or_b32 s{sT3}, s{sT3}, s{sXCC}\nv_cmp_ne_u32 vcc, s{sT3}, v{vPUB}")
    e(f"s_cmp_eq_u64 vcc, 0\ns_cselect_b32 s{sPURE}, 1, 0")
    if X("FORCE_SLOW"): e(f"s_mov_b32 s{sPURE}, 0")

def extra_push(e, q, c):
    if X("CT2", "1") != "0" and c == int(X("CT2", "1")): q.push(lambda: touch_chunks(e, 9, 7))
    if X("SLOWT") and c == int(X("SLOWT")): q.push(lambda: touch_slow_ab(e))
    if X("SLOWT") and c == 7: q.push(lambda: touch_slow(e, S_W2, 512))
    LA = int(X("CTLA", 7))
    if X("CTOUCH", "0") != "0" and 0 <= c and 5 <= c + LA < 16: q.push(lambda: touch_chunk(e, c + LA))
    T16 = {6: (S_W2, 0), 8: (S_W2, 1), 11: (S_W3T, 0), 12: (S_W3T, 1), 14: (S_W3T, 2)}
    if c in T16: q.push(lambda: touch16(e, *T16[c]))
    if c == int(X("AT2", 12)) and X("ALLTOUCH", "1") != "0" and X("AT1", "ab4") == "ab":
        q.push(lambda: touch_all(e, [(S_W2, 524288), (S_W3T, 512*3584), (S_WO, 524288), (S_W4, 1792*1024)], 64))
    if c == 9: q.push(lambda: touch_code(e, "L_abend"))
    if c == 12 and not wt("h"): q.push(lambda: touch_dst(e, lambda: own_soff_q(e, WS_HSH, 32), 16))

    if c == 8:
        def fn():
            e(f"s_lshl_b32 s{sQA}, s{sU}, 7\ns_add_u32 s{sQA}, s{sQA}, {WS_PUB}\nv_and_b32 v{vPUB}, 15, v{vLANE}\nv_lshlrev_b32 v{vPUB}, 2, v{vPUB}")
            return e.vm(f"buffer_load_dword v{vPUB}, v{vPUB}, {srd(S_WS)}, s{sQA} offen sc1")
        e.pub_ref = q.push(fn)

def sel_addrP(e, dst):
    e(f"s_cmp_eq_u32 s{sC}, 0\ns_cselect_b64 vcc, -1, 0")
    e(f"v_cndmask_b32 v{dst}, v{vAP+1}, v{vAP}, vcc\nv_cndmask_b32 v{dst+1}, v{vAP}, v{vAP+1}, vcc")

PQR = 240
KVD = 80
def a1_epilogue(e, q, w2refs, tokh):
    t = vT0
    def phi_steps(acc, out, tmp):
        P = lambda r: vr(r, 2); st = []
        for k in range(8): st.append(lambda k=k: e(f"v_pk_mul_f32 {P(tmp+2*k)}, {P(acc+2*k)}, s[{sC_LOG2E}:{sC_LOG2E+1}]"))
        for k in range(16): st.append(lambda k=k: e(f"v_min_f32 v{tmp+k}, 0, v{tmp+k}"))
        for k in range(16): st.append(lambda k=k: e(f"v_exp_f32 v{tmp+k}, v{tmp+k}"))
        for k in range(16): st.append(lambda k=k: e(f"v_max_f32 v{acc+k}, 0, v{acc+k}"))
        for k in range(8): st.append(lambda k=k: e(f"v_pk_add_f32 {P(acc+2*k)}, {P(acc+2*k)}, {P(tmp+2*k)}"))
        for k in range(8): st.append(lambda k=k: e(f"v_pk_add_f32 {P(acc+2*k)}, {P(acc+2*k)}, s[{sC_EPS6}:{sC_EPS6+1}]"))
        for k in range(8): st.append(lambda k=k: e(f"v_cvt_pk_bf16_f32 v{out+k}, v{acc+2*k}, v{acc+2*k+1}"))
        return st
    TMP = 112
    PKF, VF, PQF, ONE = 128, 136, PQR, 152
    push_w3(q, 1, (0,)); q.drain(); touch16(e, S_W3T, 5)
    q.wait(w2refs[-1])
    e("s_barrier")
    sel_addrP(e, vA)
    e(f"s_lshl_b32 s{sT2}, s{sC}, 15\ns_add_u32 s{sT2}, s{sT2}, {SL(1)}\nv_add_u32 v{vA}, s{sT2}, v{vA}\nv_add_u32 v{vA+1}, s{sT2}, v{vA+1}")
    rd = []
    for s_ in range(16):
        for c in range(2):
            d = (2*s_ + c)*4
            rd.append(lambda d=d, c=c, s_=s_: e.lds(f"ds_read_b64_tr_b16 {ar(d,2)}, v{vA+c} offset:{s_*2048}"))
            rd.append(lambda d=d, c=c, s_=s_: e.lds(f"ds_read_b64_tr_b16 {ar(d+2,2)}, v{vA+c} offset:{s_*2048+1024}"))
    interleave(phi_steps(AK, PKF, TMP), rd)
    push_w3(q, 1, (1,)); q.drain(); touch16(e, S_W3T, 6)
    for k in range(8): e(f"v_cvt_pk_bf16_f32 v{VF+k}, v{AV+2*k}, v{AV+2*k+1}")
    for k in range(4): e(f"v_mov_b32 v{ONE+k}, s{sONES}")
    D2, D3 = KVD, 96
    mfma(e, D2, PKF, VF, c="0"); mfma(e, D3, PKF, ONE, c="0")
    mfma(e, D2, PKF + 4, VF + 4); mfma(e, D3, PKF + 4, ONE)
    e.wait_lds_all()
    stamp(e, "a1k")
    publish(e, teamflag(WS_FB1), upto=tokh)
    stamp(e, "b1pub")
    push_w3(q, 2); push_w3(q, 3)
    st = phi_steps(AQ, PQF, TMP)
    q.pop(4)
    interleave(st, [lambda: q.pop(1)] * 8)
    e(f"v_and_b32 v{t}, 16, v{vLANE}\nv_cmp_ne_u32 vcc, 0, v{t}")
    for r in range(8): e(f"v_cndmask_b32 v{D2+r}, v{D2+r}, v{D3+r}, vcc")
    for r in range(8): e(f"v_cndmask_b32 v{D2+8+r}, v{D3+8+r}, v{D2+8+r}, vcc")
    q.drain()
    e(f"s_lshl_b32 s{sT2}, s{sC}, 12\ns_add_u32 s{sT2}, s{sT2}, {SL(4)}\nv_add_u32 v{t}, s{sT2}, v{vL16}")
    l1 = e.newlabel("La1"); l2 = e.newlabel("La1")
    e(f"s_cmp_eq_u32 s{sI}, 0\ns_cbranch_scc1 {l1}")
    for rg in range(4): e(f"ds_write_b128 v{t}, {vr(D2+4*rg,4)} offset:{rg*1024}")
    e.label(l1)
    e.wait_lds_all()
    e("s_barrier")
    e(f"s_cmp_lg_u32 s{sI}, 0\ns_cbranch_scc1 {l2}")
    for rg in range(4): e(f"ds_read_b128 {vr(D3+4*rg,4)}, v{t} offset:{rg*1024}")
    e("s_waitcnt lgkmcnt(0)")
    for p in range(8): e(f"v_pk_add_f32 {vr(D2+2*p,2)}, {vr(D2+2*p,2)}, {vr(D3+2*p,2)}")
    e.label(l2)

def kv_store(e):
    t = vT0
    frag_soff(e, sB4, WS_PQ, 32, OWNKS)
    def stq(sc):
        for h in range(2):
            e.vm(f"buffer_store_dwordx4 {vr(PQR+4*h,4)}, v{vL16}, {srd(S_WS)}, s{sB4} offen offset:{1024*h} {sc}", "store")
    stores2(e, stq, "pq")
    l2 = e.newlabel("Lkv")
    e(f"s_cmp_lg_u32 s{sI}, 0\ns_cbranch_scc1 {l2}")
    e(f"v_and_b32 v{t+1}, 15, v{vT}\nv_mov_b32 v{t+2}, 16")
    e(f"v_and_b32 v{t+3}, 16, v{vLANE}\nv_cmp_ne_u32 vcc, 0, v{t+3}")
    e(f"v_cndmask_b32 v{t+4}, v{t+1}, v{t+2}, vcc\nv_cndmask_b32 v{t+5}, v{t+2}, v{t+1}, vcc")
    e(f"v_mul_u32_u24 v{t+3}, 544, v{vHH}")
    e(f"v_lshlrev_b32 v{t+4}, 5, v{t+4}\nv_add_u32 v{t+4}, v{t+4}, v{t+3}\nv_lshlrev_b32 v{t+5}, 5, v{t+5}\nv_add_u32 v{t+5}, v{t+5}, v{t+3}")
    e(f"s_lshl_b32 s{sT2}, s{sTB}, 3\ns_add_u32 s{sT2}, s{sT2}, s{sFB}\ns_mul_i32 s{sT2}, s{sT2}, 4352\ns_mul_i32 s{sT3}, s{sC}, 2176\ns_add_u32 s{sT2}, s{sT2}, s{sT3}\ns_add_u32 s{sB4}, s{sT2}, {WS_KVP}")
    for h in range(2):
        for qq in range(2):
            e(f"buffer_store_dwordx4 {vr(KVD+8*h+4*qq,4)}, v{t+4+h}, {srd(S_WS)}, s{sB4} offen offset:{1088*h + 16*qq} sc1")
            e.vm_kinds.append("store"); e.vm_n += 1
    e.label(l2)

def stage_b2(e, q):
    ACC = 96; HF = 128
    t = vT0
    frag_soff(e, sB3, WS_HSH, 32, f"s_lshl_b32 s{sT3}, s{sC}, 4")
    th = []
    for s in range(16):
        def fn(s=s):
            if s % 4 == 0: e(f"s_add_u32 s{sQA}, s{sB3}, {(s//4)*4096}")
            return e.vm(f"buffer_load_dwordx4 {vr(HF + 4*s, 4)}, v{vL16}, {srd(S_WS)}, s{sQA} offen offset:{(s&3)*1024} sc1")
        th.append(q.push(fn))
    if X("ALLTOUCH", "1") != "0" and X("AT1", "ab4") == "ab3":
        q.push(lambda: touch_all(e, [(S_WO, 524288), (S_W4, 1792*1024)], 32))
    q.pop(int(X("B2PRE", 8)))
    for s in range(16):
        q.wait(th[s])
        for c in range(2):
            mfma(e, ACC + 16*c, (2*s + c)*4, HF + 4*s, aa=True, c=("0" if s == 0 else None))
            if c == 0: q.pop(1)
    q.drain()
    kv_store(e)
    stamp(e, "b2main")
    e(f"s_lshl_b32 s{sT2}, s{sW}, 12\ns_add_u32 s{sT2}, s{sT2}, {SL(4)}\nv_add_u32 v{vA}, s{sT2}, v{vL16}")
    e(f"s_xor_b32 s{sT2}, s{sW}, 1\ns_lshl_b32 s{sT2}, s{sT2}, 12\ns_add_u32 s{sT2}, s{sT2}, {SL(4)}\nv_add_u32 v{vA+1}, s{sT2}, v{vL16}")
    for rg in range(4): e.lds(f"ds_write_b128 v{vA}, {vr(ACC+16+4*rg,4)} offset:{rg*1024}")
    e.wait_lds_all()
    e("s_barrier")
    tk = [e.lds(f"ds_read_b128 {vr(ACC+16+4*rg,4)}, v{vA+1} offset:{rg*1024}") for rg in range(4)]
    for rg in range(4):
        e.wait_lds(tk[rg])
        for p in range(2): e(f"v_pk_add_f32 {vr(ACC+4*rg+2*p,2)}, {vr(ACC+4*rg+2*p,2)}, {vr(ACC+16+4*rg+2*p,2)}")
    stamp(e, "b2red")
    q.drain(); touch16(e, S_WO, 0)
    for k in range(8):
        e(f"v_lshlrev_b32 v{t}, 16, v{vRES+k}\nv_and_b32 v{t+1}, 0xffff0000, v{vRES+k}")
        e(f"v_pk_add_f32 {vr(ACC+2*k,2)}, {vr(ACC+2*k,2)}, {vr(t,2)}")
        e(f"v_cvt_pk_bf16_f32 v{vRES+k}, v{ACC+2*k}, v{ACC+2*k+1}")
    frag_soff(e, sB3, WS_X1, 32, OWNKS)
    S, Q = 128, 130
    e(f"v_mov_b32 v{S}, 0\nv_mov_b32 v{S+1}, 0\nv_mov_b32 v{Q}, 0\nv_mov_b32 v{Q+1}, 0")
    for k in range(8):
        e(f"v_dot2c_f32_bf16 v{S+(k&1)}, s{sONES}, v{vRES+k}\nv_dot2c_f32_bf16 v{Q+(k&1)}, v{vRES+k}, v{vRES+k}")
    e(f"v_add_f32 v{S}, v{S}, v{S+1}\nv_add_f32 v{S+1}, v{Q}, v{Q+1}")
    halfsum(e, S, t); halfsum(e, S + 1, t)
    e(f"s_lshl_b32 s{sT2}, s{sFB}, 1\ns_add_u32 s{sT2}, s{sT2}, s{sC}\ns_lshl_b32 s{sT2}, s{sT2}, 11")
    e(f"s_lshl_b32 s{sT3}, s{sTB}, 6\ns_add_u32 s{sT2}, s{sT2}, s{sT3}\ns_lshl_b32 s{sT3}, s{sI}, 5\ns_add_u32 s{sT2}, s{sT2}, s{sT3}")
    e(f"s_lshl_b32 s{sT2}, s{sT2}, 3\ns_add_u32 s{sB4}, s{sT2}, {WS_ST2}")
    e(f"v_lshlrev_b32 v{t+2}, 3, v{vT}")
    def st(sc):
        for h in range(2):
            e.vm(f"buffer_store_dwordx4 {vr(vRES+4*h,4)}, v{vL16}, {srd(S_WS)}, s{sB3} offen offset:{1024*h} {sc}", "store")
        e.vm(f"buffer_store_dwordx2 {vr(S,2)}, v{t+2}, {srd(S_WS)}, s{sB4} offen {sc}", "store")
    return stores2(e, st, "x1")

CSA = 132
def b3_colsum(e, part):
    t = vT0
    WT = 136; ND = 6
    if part == 0:
        e(f"s_cmp_eq_u32 s{sC}, 0\ns_cselect_b64 vcc, -1, 0")
        e(f"v_cndmask_b32 v{vA+4}, v{vAP+1}, v{vAP}, vcc\ns_lshl_b32 s{sT2}, s{sI}, 12\nv_add_u32 v{vA+4}, s{sT2}, v{vA+4}\nv_add_u32 v{vA+5}, {SL(0)}, v{vA+4}")
        for r in range(4): e(f"v_mov_b32 v{CSA+r}, 0")
    def csread(s):
        g = s >> 1; off = (g % 8)*8192 + (s & 1)*2048
        return tr_frag(e, WT + (s % ND)*4, vA + 4 + g // 8, off, 1024)
    s0, s1 = 16*part, 16*part + 16
    rds = {s: csread(s) for s in range(s0, s0 + ND - 1)}
    for s in range(s0, s1):
        if s + ND - 1 < s1: rds[s + ND - 1] = csread(s + ND - 1)
        e.wait_lds(rds[s])
        for r in range(4): e(f"v_dot2c_f32_bf16 v{CSA+r}, s{sONES}, v{WT + (s % ND)*4 + r}")
    if part == 1:
        e(f"v_add_f32 v{CSA}, v{CSA}, v{CSA+1}\nv_add_f32 v{CSA+2}, v{CSA+2}, v{CSA+3}\nv_add_f32 v{CSA}, v{CSA}, v{CSA+2}")
        e(f"s_lshl_b32 s{sT2}, s{sW}, 8\ns_add_u32 s{sT2}, s{sT2}, {PA_CS3}\nv_lshlrev_b32 v{t}, 2, v{vLANE}\nv_add_u32 v{t}, s{sT2}, v{t}")
        e.lds(f"ds_write_b32 v{t}, v{CSA}")
        e.wait_lds_all()

def p4a_setup(e):
    e(f"s_xor_b32 s{sT1}, s{sI}, 1")
    frag_soff(e, sB4, WS_PQ, 32, f"s_lshl_b32 s{sT3}, s{sW}, 3")
    frag_soff(e, sB5, WS_PQ, 32, f"s_lshl_b32 s{sT3}, s{sW}, 3", blk=sT1)
    frag_soff(e, sB6, WS_H2, 112, f"s_lshl_b32 s{sT3}, s{sW}, 1")
    frag_soff(e, sB7, WS_H2, 112, f"s_lshl_b32 s{sT3}, s{sW}, 1", blk=sT1)
    e(f"s_lshl_b32 s{sT2}, s{sW}, 13\ns_add_u32 s{sB2}, s{sT2}, {WS_KVT}")
def push_kvt_loads(e, q):
    tk = {}
    for h in range(8):
        def fk(h=h):
            if h % 4 == 0: e(f"s_add_u32 s{sQA}, s{sB2}, {h*1024}")
            return e.vm(f"buffer_load_dwordx4 {ar(4*h,4)}, v{vL16}, {srd(S_WS)}, s{sQA} offen offset:{(h & 3)*1024} sc1")
        tk[h] = q.push(fk)
    return tk
def push_p4a_loads(e, q):
    tp = {}
    for h in range(8):
        for i in range(2):
            def fp(h=h, i=i):
                e(f"s_add_u32 s{sQA}, s{sB4+i}, {h*1024}")
                return e.vm(f"buffer_load_dwordx4 {ar(32 + (2*h+i)*4, 4)}, v{vL16}, {srd(S_WS)}, s{sQA} offen sc1")
            tp[(h, i)] = q.push(fp)
    return tp
def flags_check(e, off, nflags, preloaded):
    l = e.newlabel("Lfc"); lo = e.newlabel("Lfco"); t = vT0
    e(f"s_mov_b32 s{sSPIN}, 0x40000\ns_mov_b32 s{sT2}, {off}")
    e(f"v_lshlrev_b32 v{t+1}, 2, v{vLANE}\nv_cmp_gt_u32 vcc, {nflags}, v{vLANE}\ns_and_saveexec_b64 s[{sSAVE}:{sSAVE+1}], vcc")
    if not preloaded:
        e(f"buffer_load_dword v{vPUB}, v{t+1}, {srd(S_WS)}, s{sT2} offen sc1\ns_waitcnt vmcnt(0)")
    e.label(l)
    e(f"v_cmp_ne_u32 vcc, s{sTAG}, v{vPUB}\ns_cbranch_vccz {lo}")
    e(f"s_sub_u32 s{sSPIN}, s{sSPIN}, 1\ns_cmp_eq_u32 s{sSPIN}, 0\ns_cbranch_scc1 {lo}")
    e(f"buffer_load_dword v{vPUB}, v{t+1}, {srd(S_WS)}, s{sT2} offen sc1\ns_waitcnt vmcnt(0)\ns_branch {l}")
    e.label(lo)
    e(f"s_mov_b64 exec, s[{sSAVE}:{sSAVE+1}]")

def stage_b3(e, q):
    ACC = 64; t = vT0
    for c in range(2): e(f"v_mov_b32 v{vA+8+2*c}, v{vAP+c}\nv_add_u32 v{vA+8+2*c+1}, {SL(0)}, v{vAP+c}")
    def waddr(s, ft):
        g = s >> 1
        return vA + 8 + 2*(ft & 1) + g // 8, (g % 8)*8192 + (ft >> 1)*4096 + (s & 1)*2048
    e(f"s_lshl_b32 s{sT2}, s{sU}, 2\ns_add_u32 s{sT2}, s{sT2}, s{sW}\ns_lshl_b32 s{sT2}, s{sT2}, 15\ns_add_u32 s{sB3}, s{sT2}, {WS_X1}")
    e(f"s_lshl_b32 s{sT2}, s{sU}, 7\ns_lshl_b32 s{sT3}, s{sW}, 5\ns_add_u32 s{sT2}, s{sT2}, s{sT3}\ns_lshl_b32 s{sT2}, s{sT2}, 3\ns_add_u32 s{sB4}, s{sT2}, {WS_ST2}")
    e(f"v_lshlrev_b32 v{vA+6}, 17, v{vHH}\nv_lshlrev_b32 v{t+1}, 3, v{vT}\nv_add_u32 v{vA+6}, v{vA+6}, v{t+1}")
    CS4 = 152; CA, CB = 160, 176
    e("s_barrier")
    e(f"v_lshlrev_b32 v{t+2}, 2, v{vLANE}\nv_add_u32 v{t+2}, {PA_CS3}, v{t+2}")
    tc = [e.lds(f"ds_read_b32 v{CS4+k}, v{t+2} offset:{256*k}") for k in range(4)]
    WFS = [192, 208, 224]
    def read_fns(s):
        fns = []
        for ft in range(4):
            a, off = waddr(s, ft); d = WFS[s % 3] + ft*4
            fns.append(lambda a=a, off=off, d=d: e.lds(f"ds_read_b64_tr_b16 {vr(d,2)}, v{a} offset:{off}"))
            fns.append(lambda a=a, off=off, d=d: e.lds(f"ds_read_b64_tr_b16 {vr(d+2,2)}, v{a} offset:{off+1024}"))
        return fns
    e.wait_lds(tc)
    for k in range(4): corr_frags(e, CS4 + k, None, CA + 4*k, None, t)
    rdtok = {}
    for s in range(2):
        for f in read_fns(s): rdtok[s] = f()
    poll(e, f"s_lshl_b32 s{sT2}, s{sU}, 7\ns_add_u32 s{sT2}, s{sT2}, {WS_FB2}", 16)
    stamp(e, "b3poll")
    STT = 136
    tst = []
    for k in range(8):
        def fn(k=k):
            e(f"s_add_u32 s{sQA}, s{sB4}, {k*16384}")
            return e.vm(f"buffer_load_dwordx2 {vr(STT+2*k,2)}, v{vA+6}, {srd(S_WS)}, s{sQA} offen sc1")
        tst.append(q.push(fn))
    tx = []
    for s in range(32):
        def fn(s=s):
            if s % 4 == 0: e(f"s_add_u32 s{sQA}, s{sB3}, {(s//4)*4096}")
            return e.vm(f"buffer_load_dwordx4 {ar(4*s,4)}, v{vL16}, {srd(S_WS)}, s{sQA} offen offset:{(s&3)*1024} sc1")
        tx.append(q.push(fn))
    q.pop(8 + 6)
    q.wait(tst[-1])
    for k in range(1, 8): e(f"v_pk_add_f32 {vr(STT,2)}, {vr(STT,2)}, {vr(STT+2*k,2)}")
    halfsum(e, STT, t); halfsum(e, STT + 1, t)
    NM, RS = 240, 242
    ln_stats(e, STT, STT + 1, NM, RS, t)
    corr_frags(e, None, NM, None, CB, t)
    for k in range(4):
        mfma(e, ACC + 16*k, CA + 4*k, CB, c="0"); q.pop(1)
    stamp(e, "b3st")
    w4 = {}
    for s in range(32):
        if X("FINE") and s in (4, 8, 12, 16, 24): stamp(e, f"b3s{s}")
        e.wait_lds(rdtok[s]); q.wait(tx[s])
        if s == 15:
            e("s_barrier")
            set_region_addrs(e)
            for g in range(5): w4[g] = push_w4(q, g)
        if s in (4, 8, 12, 16, 20, 24): q.push(lambda s=s: touch16(e, S_W4, 1 + (s - 4)//4))
        if s == 10: q.push(lambda: touch_code(e, "L_b3end"))

        if s == int(X("H2T", 27)) and not wt("h2"):
            def h2d():
                e(f"s_lshl_b32 s{sQA}, s{sU}, 2\ns_add_u32 s{sQA}, s{sQA}, s{sW}\ns_mul_i32 s{sQA}, s{sQA}, 112\ns_lshl_b32 s{sT5}, s{sV}, 3\ns_add_u32 s{sQA}, s{sQA}, s{sT5}")
                e(f"s_lshl_b32 s{sQA}, s{sQA}, 10\ns_add_u32 s{sQA}, s{sQA}, {WS_H2}")
                return sQA
            q.push(lambda: touch_dst(e, h2d, 64))
        fill = read_fns(s + 2) if s + 2 < 32 else []
        mains = [(lambda ft=ft: mfma(e, ACC + 16*ft, WFS[s % 3] + ft*4, 4*s, ba=True)) for ft in range(4)]
        toks = []
        fl = [(lambda f=f: toks.append(f())) for f in fill]
        fl.insert(2, lambda: q.pop(1)); fl.insert(6, lambda: q.pop(1))
        interleave(mains, fl)
        if toks: rdtok[s + 2] = toks[-1]
    e.L.append("L_b3end: ; @soft")
    stamp(e, "b3main")
    e("s_barrier")
    e(f"s_lshl_b32 s{sT2}, s{sU}, 2\ns_add_u32 s{sT2}, s{sT2}, s{sW}\ns_mul_i32 s{sT2}, s{sT2}, 112\ns_lshl_b32 s{sT3}, s{sV}, 3\ns_add_u32 s{sT2}, s{sT2}, s{sT3}")
    e(f"s_lshl_b32 s{sT2}, s{sT2}, 10\ns_add_u32 s{sB3}, s{sT2}, {WS_H2}\ns_add_u32 s{sB4}, s{sB3}, 4096")
    OUT = 128; TMP = 192
    def gelq(ft, half, npop):
        ks = range(4*half, 4*half + 4)
        gelu_pairs(e, [ACC + 16*ft + 2*k for k in ks], RS, [TMP + 2*k for k in ks], [OUT + 8*ft + k for k in ks], q, npop)
    q.wait(w4[4])
    rdf = w4_to_agpr_fns(e)
    e(f"s_mov_b32 s84, s{sB4}")
    tokst = None
    sB3h, = (sB3,)
    p4a_setup(e)
    wo = [push_wo(q, 0)]
    tp = push_p4a_loads(e, q)
    pq_items = q.q[4:]; q.q = q.q[:4]
    NPQ = int(X("EPIPQ", 8))
    q.q += pq_items[:2]
    wo += [push_wo(q, 1)]
    q.q += pq_items[2:NPQ]
    wo += [push_wo(q, 2), push_wo(q, 3)]
    rest = pq_items[NPQ:]
    nit = len(q.q)
    for ft in range(4):
        for f in rdf[10*ft:10*ft + 10]: f()
        for half in range(2):
            k = 2*ft + half
            want = nit * (k + 1) // 7 if k < 7 else nit
            gelq(ft, half, max(0, want - (nit - len(q.q))))
        def st(sc, ft=ft):
            for h in range(2):
                so = sB3 if ft < 2 else 84
                e.vm(f"buffer_store_dwordx4 {vr(OUT+8*ft+4*h,4)}, v{vL16}, {srd(S_WS)}, s{so} offen offset:{((2*ft+h)&3)*1024} {sc}", "store")
        tokst = stores2(e, st, "h2")
    q.drain()
    stamp(e, "gel3")
    e.wait_lds_all()
    e(f"s_mov_b32 s{sQA}, {WS_FA2}\nv_lshlrev_b32 v{vPUB}, 2, v{vLANE}")
    fa2tok = e.vm(f"buffer_load_dword v{vPUB}, v{vPUB}, {srd(S_WS)}, s{sQA} offen sc1")
    q.q = rest
    e.wait_vm(tokst)
    e("s_barrier")
    lq = e.newlabel("Lp3")
    e(f"s_cmp_lg_u32 s{sW}, 0\ns_cbranch_scc1 {lq}")
    e(teamflag(WS_FB3))
    l2 = e.newlabel("Lp3"); l3 = e.newlabel("Lp3")
    e(f"s_cmp_eq_u32 s{sPURE}, 0\ns_cbranch_scc1 {l2}")
    flag_store(e, sT2, "")
    e(f"s_branch {l3}")
    e.label(l2)
    flag_store(e, sT2, "sc1")
    e.label(l3)
    e.label(lq)
    e.vm_kinds.append("store"); e.vm_n += 1
    stamp(e, "p4pub")
    e.wait_vm(fa2tok)
    flags_check(e, WS_FA2, 32, True)
    stamp(e, "fa2")
    return wo, w4, tp

def stage_a2(e, q):
    t = vT0
    e(f"s_lshl_b32 s{sHEAD}, s{sU}, 1\ns_add_u32 s{sHEAD}, s{sHEAD}, s{sV}\ns_sub_u32 s{sHEAD}, s{sHEAD}, 14")
    poll(e, f"s_lshr_b32 s{sT2}, s{sHEAD}, 2\ns_lshl_b32 s{sT2}, s{sT2}, 7\ns_add_u32 s{sT2}, s{sT2}, {WS_FA1}", 32)
    e(f"v_and_b32 v{t+1}, 15, v{vT}\nv_mov_b32 v{t+2}, 16\nv_and_b32 v{t+3}, 16, v{vLANE}")
    e(f"s_and_b32 s{sT2}, s{sHEAD}, 1\ns_lshl_b32 s{sT2}, s{sT2}, 4\nv_cmp_ne_u32 vcc, s{sT2}, v{t+3}")
    e(f"v_cndmask_b32 v{t+4}, v{t+1}, v{t+2}, vcc")
    e(f"v_mul_u32_u24 v{t+3}, 544, v{vHH}\nv_lshlrev_b32 v{t+4}, 5, v{t+4}\nv_add_u32 v{t+4}, v{t+4}, v{t+3}")
    e(f"s_lshr_b32 s{sT2}, s{sHEAD}, 2\ns_lshl_b32 s{sT3}, s{sW}, 6\ns_add_u32 s{sT2}, s{sT2}, s{sT3}\ns_mul_i32 s{sT2}, s{sT2}, 4352")
    e(f"s_and_b32 s{sT3}, s{sHEAD}, 3\ns_mul_i32 s{sT3}, s{sT3}, 1088\ns_add_u32 s{sT2}, s{sT2}, s{sT3}\ns_add_u32 s{sB3}, s{sT2}, {WS_KVP}")
    B = 64; tk = []
    for k in range(8):
        if k: e(f"s_add_u32 s{sB3}, s{sB3}, {8*4352}")
        for qq in range(2):
            tk.append(e.vm(f"buffer_load_dwordx4 {vr(B+8*k+4*qq,4)}, v{t+4}, {srd(S_WS)}, s{sB3} offen offset:{16*qq} sc1"))
    for k in range(1, 8):
        e.wait_vm(tk[2*k+1])
        for p in range(4): e(f"v_pk_add_f32 {vr(B+2*p,2)}, {vr(B+2*p,2)}, {vr(B+8*k+2*p,2)}")
    e(f"s_lshl_b32 s{sT2}, s{sW}, 11\ns_add_u32 s{sT2}, s{sT2}, {PA_ST}\nv_add_u32 v{t}, s{sT2}, v{vL16}") if False else None
    XB = SL(3)
    e(f"s_lshl_b32 s{sT2}, s{sW}, 11\ns_add_u32 s{sT2}, s{sT2}, {XB}\nv_add_u32 v{t}, s{sT2}, v{vL16}")
    e.lds(f"ds_write_b128 v{t}, {vr(B,4)}"); e.lds(f"ds_write_b128 v{t}, {vr(B+4,4)} offset:1024")
    e.wait_lds_all()
    e("s_barrier")
    l = e.newlabel("La2")
    e(f"s_cmp_lg_u32 s{sW}, 0\ns_cbranch_scc1 {l}")
    e(f"v_add_u32 v{t}, {XB}, v{vL16}")
    for k in range(1, 4):
        e(f"ds_read_b128 {vr(B+8*k,4)}, v{t} offset:{2048*k}\nds_read_b128 {vr(B+8*k+4,4)}, v{t} offset:{2048*k+1024}")
    e("s_waitcnt lgkmcnt(0)")
    for k in range(1, 4):
        for p in range(4): e(f"v_pk_add_f32 {vr(B+2*p,2)}, {vr(B+2*p,2)}, {vr(B+8*k+2*p,2)}")
    for p in range(4): e(f"v_cvt_pk_bf16_f32 v{B+32+p}, v{B+2*p}, v{B+2*p+1}")
    e(f"s_lshl_b32 s{sT2}, s{sHEAD}, 10\ns_add_u32 s{sB3}, s{sT2}, {WS_KVT}")
    e(f"buffer_store_dwordx4 {vr(B+32,4)}, v{vL16}, {srd(S_WS)}, s{sB3} offen sc1")
    e("s_waitcnt vmcnt(0)")
    e(f"s_lshl_b32 s{sT2}, s{sHEAD}, 2\ns_add_u32 s{sT2}, s{sT2}, {WS_FA2}")
    flag_store(e, sT2, "sc1")
    e.label(l)
    e("s_barrier")
    for k in range(1, 7): touch16(e, S_W4, k)
    touch_code(e, "L_b3end")
    set_region_addrs(e)
    w4 = {g: push_w4(q, g) for g in range(5)}
    for g in range(4): push_wo(q, g)
    q.drain()
    e.wait_vm_all()
    for f in w4_to_agpr_fns(e): f()
    e.wait_lds_all()
    p4a_setup(e)
    flags_check(e, WS_FA2, 32, False)
    push_p4a_loads(e, q)
    q.pop(int(X("EPIPQ", 8)))
    q.q = []
    e.wait_vm_all()

def stage_p4(e, q, wo, w4in, tp):
    ACCB, ACCA = 64, 128
    WF = 192
    t = vT0
    l = e.newlabel("Lep")
    e(f"s_or_b32 s{sT2}, s2, s{sW}\ns_cmp_lg_u32 s{sT2}, 0\ns_cbranch_scc1 {l}")
    e(f"s_mov_b32 s{sT2}, {WS_EPOCH}")
    flag_store(e, sT2, "sc1")
    e.label(l)
    e.vm_kinds.append("store"); e.vm_n += 1
    pend = q.q; q.q = []
    tk = push_kvt_loads(e, q)
    kv_items = q.q; q.q = []
    def grab(fn):
        r = fn(); it = q.q; q.q = []; return r, it
    w4in = dict(w4in); w4it = {}
    for g in range(5, 10): w4in[g], w4it[g] = grab(lambda g=g: push_w4(q, g))
    order = kv_items[0:4] + pend[0:2] + kv_items[4:8] + pend[2:]
    for g in range(5, 10): order += w4it[g]
    q.q = order
    q.pop(6)
    G = [208, 210]; OMG = [212, 214]
    e(f"v_lshlrev_b32 v{t}, 2, v{vT}\nv_add_u32 v{t}, {PA_G}, v{t}")
    e(f"s_lshl_b32 s{sT2}, s{sI}, 7\nv_add_u32 v{t+1}, s{sT2}, v{t}\ns_xor_b32 s{sT2}, s{sT2}, 128\nv_add_u32 v{t+2}, s{sT2}, v{t}")
    tg = [e.lds(f"ds_read_b32 v{G[0]}, v{t+1}"), e.lds(f"ds_read_b32 v{G[1]}, v{t+2}")]
    e.wait_lds(tg)
    for i in range(2): e(f"v_sub_f32 v{OMG[i]}, 1.0, v{G[i]}")
    OD = [216, 232]
    OF = [[46, 50], [248, 252]]
    SC = [56, 58]
    def wo_reads(h):
        tok = None
        for c in range(2): tok = tr_frag(e, WF + (h&1)*8 + c*4, vA + 2 + c, h*2048, 1024)
        return tok
    def omm(h):
        q.wait(tp[(h, 1)]); q.wait(tk[h])
        for i in range(2):
            e(f"v_mfma_f32_32x32x16_bf16 {vr(OD[i],16)}, {ar(4*h,4)}, {ar(32 + (2*h+i)*4,4)}, 0")
            q.pop(2)
    def oval(h):
        par = h & 1
        for i in range(2):
            num = OD[i] + (8 if h & 1 else 0); den = OD[i] + (0 if h & 1 else 8)
            e(f"v_add_f32 v{SC[i]}, 0x358637bd, v{den}\nv_rcp_f32 v{SC[i]}, v{SC[i]}\nv_mul_f32 v{SC[i]}, v{SC[i]}, v{G[i]}")
            for p in range(8): e(f"v_mul_f32 v{num+p}, v{num+p}, v{SC[i]}")
            for p in range(4): e(f"v_cvt_pk_bf16_f32 v{OF[par][i]+p}, v{num+2*p}, v{num+2*p+1}")
    def amm(h):
        par = h & 1
        for i in range(2):
            for c in range(2):
                mfma(e, ACCA + (2*i + c)*16, WF + par*8 + c*4, OF[par][i], c=("0" if h == 0 else None))
            q.pop(2)
    q.wait(wo[0])
    rd = {0: wo_reads(0)}
    omm(0)
    for h in range(8):
        if h + 1 < 8:
            if (h + 1) % 2 == 0: q.wait(wo[(h + 1) >> 1])
            rd[h+1] = wo_reads(h + 1)
        oval(h)
        if h + 1 < 8: omm(h + 1)
        e.wait_lds(rd[h])
        amm(h)
    stamp(e, "p4A")
    q.drain()
    w4 = dict(w4in); w4.update({g: push_w4(q, g) for g in range(10, 14)})
    q.drain()
    poll(e, f"s_lshl_b32 s{sT2}, s{sU}, 7\ns_add_u32 s{sT2}, s{sT2}, {WS_FB3}", 14)
    stamp(e, "p4pollB")
    HD = 16
    th = {}
    def hpush(s):
        for i in range(2):
            def fn(s=s, i=i):
                e(f"s_add_u32 s{sQA}, s{sB6+i}, {(s >> 1)*8192 + (s & 1)*1024}")
                return e.vm(f"buffer_load_dwordx4 {ar(((s % HD)*2 + i)*4, 4)}, v{vL16}, {srd(S_WS)}, s{sQA} offen sc1")
            th[(s, i)] = q.push(fn)
    for s in range(HD): hpush(s)
    q.pop(10)
    WFS = [192, 200, 216]
    def read_fns(s):
        if s < 10 or s >= 28: return []
        g = s >> 1; reg, slot = W4LOC[g]; fns = []
        for c in range(2):
            a, off = region_addr(reg, slot, c); off += (s & 1)*2048; d = WFS[s % 3] + 4*c
            fns.append(lambda a=a, off=off, d=d: e.lds(f"ds_read_b64_tr_b16 {vr(d,2)}, v{a} offset:{off}"))
            fns.append(lambda a=a, off=off, d=d: e.lds(f"ds_read_b64_tr_b16 {vr(d+2,2)}, v{a} offset:{off+1024}"))
        return fns
    rdtok = {}
    for s in range(28):
        if X("FINE") and s in (1, 5, 10, 16, 22): stamp(e, f"p4s{s}")
        if s + 2 >= 10 and (s + 2) % 2 == 0 and (s + 2) < 28: q.wait(w4[(s + 2) >> 1])
        if s in rdtok: e.wait_lds(rdtok[s])
        q.wait(th[(s, 1)])
        mains = []
        for i in range(2):
            for c in range(2):
                z = "0" if s == 0 else None
                if s < 10:
                    mains.append(lambda i=i, c=c, z=z: mfma(e, ACCB + (2*i + c)*16, W4A + (2*s + c)*4, ((s % HD)*2 + i)*4, aa=True, ba=True, c=z))
                else:
                    mains.append(lambda i=i, c=c, z=z: mfma(e, ACCB + (2*i + c)*16, WFS[s % 3] + 4*c, ((s % HD)*2 + i)*4, ba=True, c=z))
        toks = []
        fl = [(lambda f=f: toks.append(f())) for f in read_fns(s + 2)]
        fl.insert(0, lambda: q.pop(1)); fl.insert(min(3, len(fl)), lambda: q.pop(1))
        interleave(mains, fl)
        if toks: rdtok[s + 2] = toks[-1]
        if s + HD < 28: hpush(s + HD)
    stamp(e, "p4B")
    for i in range(2):
        for c in range(2):
            qq = 2*i + c
            for p in range(8):
                e(f"v_pk_fma_f32 {vr(ACCB+16*qq+2*p,2)}, {vr(ACCB+16*qq+2*p,2)}, {vr(OMG[i],2)}, {vr(ACCA+16*qq+2*p,2)} op_sel_hi:[1,0,1]")
    aw = vA + 8
    e(f"s_lshl_b32 s{sT0}, s{sW}, 14\nv_add_u32 v{aw}, s{sT0}, v{vL16}")
    for k in range(1, 4):
        for rg in range(4): e.lds(f"ds_write_b128 v{aw}, {vr(ACCB + 16*k + 4*rg, 4)} offset:{(k-1)*4096 + rg*1024}")
    for k in range(1, 4):
        e(f"s_xor_b32 s{sT0}, s{sW}, {k}\ns_lshl_b32 s{sT0}, s{sT0}, 14\nv_add_u32 v{aw+k}, s{sT0}, v{vL16}")
    e.wait_lds_all()
    e("s_barrier")
    toks = []
    for k in range(1, 4):
        for rg in range(4): toks.append(e.lds(f"ds_read_b128 {vr(ACCB + 16*k + 4*rg, 4)}, v{aw+k} offset:{(k-1)*4096 + rg*1024}"))
    for k in range(1, 4):
        e.wait_lds(toks[4*k-1])
        for p in range(8): e(f"v_pk_add_f32 {vr(ACCB+2*p,2)}, {vr(ACCB+2*p,2)}, {vr(ACCB+16*k+2*p,2)}")
    stamp(e, "p4red")
    for k in range(8):
        e(f"v_lshlrev_b32 v{t}, 16, v{vRES+k}\nv_and_b32 v{t+1}, 0xffff0000, v{vRES+k}")
        e(f"v_pk_fma_f32 {vr(ACCB+2*k,2)}, {vr(t,2)}, {vr(OMG[0],2)}, {vr(ACCB+2*k,2)} op_sel_hi:[1,0,1]")
        e(f"v_cvt_pk_bf16_f32 v{128+k}, v{ACCB+2*k}, v{ACCB+2*k+1}")
    for pr in range(2):
        a, b = 128 + 4*pr, 128 + 4*pr + 2
        e(f"v_permlane32_swap_b32 v{a}, v{b}\nv_permlane32_swap_b32 v{a+1}, v{b+1}")
    e(f"s_lshl_b32 s{sT2}, s{sTB}, 6\ns_lshl_b32 s{sT3}, s{sI}, 5\ns_add_u32 s{sT2}, s{sT2}, s{sT3}")
    e(f"v_add_u32 v{t}, s{sT2}, v{vT}\nv_lshlrev_b32 v{t}, 10, v{t}")
    e(f"s_lshl_b32 s{sT2}, s{sFB}, 7\ns_lshl_b32 s{sT3}, s{sC}, 6\ns_add_u32 s{sT2}, s{sT2}, s{sT3}")
    e(f"v_lshlrev_b32 v{t+1}, 4, v{vHH}\nv_add3_u32 v{t}, v{t}, v{t+1}, s{sT2}")
    for pr in range(2):
        e.vm(f"buffer_store_dwordx4 {vr(128+4*pr,4)}, v{t}, {srd(S_OUT)}, 0 offen offset:{32*pr}", "store")

def build():
    e = E(); q = VQ(e)
    prologue(e, q)
    xrefs, wrefs = {}, {}
    AT = X("AT1", "ab4")
    ALLW = [(S_WQKV, 512*3072), (S_W1, 524288), (S_W2, 524288), (S_W3, 512*3584), (S_WO, 524288), (S_W4, 1792*1024)]
    def fg():
        e(f"s_mov_b32 m0, {PA_GW}")
        return e.vm(f"buffer_load_dwordx4 v{vL16}, {srd(S_GW)}, 0 offen lds")
    def t_ab(): touch_all(e, [(S_AX, 2097152), (S_WQKV, 512*3072), (S_W1, 524288)], 32)
    def t_all():
        if AT == "ab4":
            touch_all(e, [(S_WQKV, 512*3072), (S_AX, 2097152), (S_W1, 524288)], 32)
            touch_all(e, [(S_W2, 524288)], 4)
        elif AT == "ab3": touch_all(e, [(S_WQKV, 512*3072), (S_AX, 2097152), (S_W1, 524288), (S_W2, 524288), (S_W3, 512*3584)], 64)
        else: touch_all(e, ALLW, 64)
    ORD = X("ORD", "g w x T C").replace("_", " ").split()
    for o in ORD:
        if o == "T" and X("ALLTOUCH", "1") != "0": q.push(t_ab if AT == "ab" else t_all)
        if o == "g": q.push(fg)
        if o == "x": xrefs[0] = push_x(q, 0)
        if o == "w": wrefs[0] = push_wab(q, 0)
        if o == "C" and X("CT2", "1") != "0": q.push(lambda: touch_chunks(e, 1, 8))
        if o == "S": q.push(lambda: touch_slow_ab(e))
    q.drain()
    wrefs[1] = push_wab(q, 1); xrefs[1] = push_x(q, 1)
    for c in range(2, 5): wrefs[c] = push_wab(q, c)
    common_addr(e)
    q.pop(4)
    for k in range(4): e(f"s_mov_b32 s{S_W3T+k}, s{S_W3+k}")
    e(f"s_cmp_ge_u32 s{sV}, 14\ns_cselect_b32 s{S_W3+2}, 0, s{S_W3+2}")
    e(f"s_mov_b32 s{sC_LOG2E}, 0x3fb8aa3b\ns_mov_b32 s{sC_LOG2E+1}, 0x3fb8aa3b")
    c0 = -2.0 * 0.7978845608028654 * 1.4426950408889634; c1 = c0 * 0.044715
    e(f"s_mov_b32 s{sC_G1}, {f2u(c1):#x}\ns_mov_b32 s{sC_G1+1}, {f2u(c1):#x}")
    e(f"s_mov_b32 s{sC_EPS6}, 0x358637bd\ns_mov_b32 s{sC_EPS6+1}, 0x358637bd\ns_mov_b32 s{sONES}, 0x3f803f80")
    e(f"v_mov_b32 v{vG0C}, {f2u(c0):#x}\nv_mov_b32 v{vG0C+1}, {f2u(c0):#x}")
    stamp(e, "iss14")
    e("s_waitcnt lgkmcnt(0)")
    e(f"s_mul_i32 s{sTAG}, s{sTAG}, 1664525\ns_add_u32 s{sTAG}, s{sTAG}, 1013904223")
    l = e.newlabel("Lpub0")
    e(f"s_cmp_lg_u32 s{sW}, 0\ns_cbranch_scc1 {l}")
    e(teamflag(WS_PUB))
    e(f"s_and_b32 s{sT3}, s{sTAG}, 0xfffffff0\ns_or_b32 s{sT3}, s{sT3}, s{sXCC}")
    e(f"v_mov_b32 v{vT0}, s{sT3}\nv_mov_b32 v{vT0+1}, 0\nv_cmp_eq_u32 vcc, 0, v{vLANE}\ns_and_saveexec_b64 s[{sSAVE}:{sSAVE+1}], vcc")
    e(f"buffer_store_dword v{vT0}, v{vT0+1}, {srd(S_WS)}, s{sT2} offen sc1")
    e(f"s_mov_b64 exec, s[{sSAVE}:{sSAVE+1}]")
    e.label(l)
    e.vm_kinds.append("store"); e.vm_n += 1
    stamp(e, "pro")
    w2refs, tokh = stage_ab1(e, q, xrefs, wrefs)
    stamp(e, "hst")
    a1_epilogue(e, q, w2refs, tokh)
    stamp(e, "a1epi")
    poll(e, f"s_lshl_b32 s{sT2}, s{sU}, 7\ns_and_b32 s{sT3}, s{sTB}, 1\ns_lshl_b32 s{sT3}, s{sT3}, 5\ns_add_u32 s{sT2}, s{sT2}, s{sT3}\ns_add_u32 s{sT2}, s{sT2}, {WS_FB1}", 8)
    stamp(e, "b2poll")
    tok = stage_b2(e, q)
    touch_code(e, "L_b3start")
    tok = e.vm_n - 1 if False else tok
    lk = e.newlabel("Lcs")
    e(f"s_cmp_ge_u32 s{sV}, 14\ns_cbranch_scc1 {lk}")
    b3_colsum(e, 0)
    e.label(lk)
    publish(e, teamflag(WS_FB2))
    l = e.newlabel("Lfa1")
    e(f"s_cmp_lg_u32 s{sW}, 0\ns_cbranch_scc1 {l}")
    e(f"s_lshl_b32 s{sT2}, s{sFB}, 7\ns_lshl_b32 s{sT3}, s{sTB}, 2\ns_add_u32 s{sT2}, s{sT2}, s{sT3}\ns_add_u32 s{sT2}, s{sT2}, {WS_FA1}")
    flag_store(e, sT2, "sc1")
    e.label(l)
    e.vm_kinds.append("store"); e.vm_n += 1
    stamp(e, "b2pub")
    touch16(e, S_WO, 1); touch16(e, S_W4, 0)
    la2 = e.newlabel("LA2"); lj = e.newlabel("LJ")
    e(f"s_cmp_ge_u32 s{sV}, 14\ns_cbranch_scc1 {la2}")
    e.L.append("L_b3start: ; @soft")
    b3_colsum(e, 1)
    stamp(e, "b3cs")
    wo, w4, tp = stage_b3(e, q)
    snap = (e.vm_n, list(e.vm_kinds), e.vm_done, e.ld_n, e.ld_done); qsnap = list(q.q); q.q = []
    e(f"s_branch {lj}")
    e.label(la2)
    stage_a2(e, q)
    e.label(lj)
    e.vm_n, e.vm_kinds, e.vm_done, e.ld_n, e.ld_done = snap
    q.q = qsnap
    e.wait_lds_all()
    stage_p4(e, q, wo, w4, tp)
    stamp(e, "end")
    stamp_flush(e)
    e.wait_vm_all()
    e.label("L_end")
    e("s_endpgm")
    e.label("L_codeend")
    body = e.text()
    return kernel_file([dict(name=KN, body=body, grid=256, block=256, lds=LDS_BYTES, vgpr=512, accum=256, sgpr=102)]), e

if __name__ == "__main__":
    txt, e = build()
    open(sys.argv[1], "w").write(txt)
    n = sum(1 for l in txt.split("\n") if l.startswith("    ") and not l.strip().startswith(";"))
    print("instructions:", n, "nops inserted:", e.nops_inserted)
    open(sys.argv[1] + ".stamps", "w").write(" ".join(STAMPS))
```

```python
import sys, os, struct
sys.path.insert(0, os.path.dirname(os.path.abspath(__file__)))
from emit import E
from asmlib import KN, kernel_file
def X(n, d=None):
    v = os.environ.get(n)
    return v if v is not None else d
WS_EPOCH = 0x0
WS_PUB, WS_FB1, WS_FB2, WS_FB3 = 0x1000, 0x2000, 0x3000, 0x4000
WS_FA1 = 0x5000
WS_FA2 = 0x6000
WS_TS = 0x20000
WS_HSH, WS_X1, WS_PQ, WS_ST2, WS_KVT, WS_KVP, WS_H2 = 0x100000, 0x300000, 0x500000, 0x700000, 0x780000, 0x800000, 0x1000000
WS_SIZE = 0x10000000
XM = 4352
def SL(k): return 69632 + 16384 * k
PA = 151552
PA_GW, PA_G, PA_ST, PA_CS3 = PA, PA + 1024, PA + 1536, PA + 5632
LDS_BYTES = 163840
P4B = 36864
S_AX, S_WQKV, S_WO, S_DS, S_W1, S_W2, S_W3, S_W4, S_OUT, S_WS, S_GW = 4, 8, 12, 16, 20, 24, 28, 32, 36, 40, 44
sW, sTB, sFB, sU, sV, sTAG, sPURE, sXCC = 48, 49, 50, 51, 52, 53, 54, 55
sT0, sT1, sT2, sT3, sT4, sT5 = 56, 57, 58, 59, 60, 61
sSAVE = 62
sQA, sQW, sQSTEP, sJ = 64, 65, 66, 67
sB0, sB1, sB2, sB3 = 68, 69, 70, 71
sC_LOG2E, sC_G1, sC_EPS6 = 72, 74, 76
sONES = 78
sB4, sB5, sB6, sB7 = 80, 81, 82, 83
sI, sC, sSPIN, sDELTA, sHEAD = 90, 91, 93, 94, 95
sFLG = 79
S_W3F = S_W3
S_W3T = 44
SIZES = {S_WQKV: 512*3072, S_W1: 524288, S_W2: 524288, S_W3: 512*3584, S_WO: 524288, S_W4: 1792*1024}
vLANE, vT, vHH, vL16, vL128 = 1, 2, 3, 4, 5
vAN, vAP = 6, 8
vW1K, vW3, vWAB, vXO, vXE = 10, 14, 18, 22, 26
vJUNK = 27
vG0C = 28
vRES = 30
vA = 38
vT0 = 54
vPUB = 63
vTCH = 50
vTS = 0
PROFILE = not X("NOPROF")
STAMPS = []
def srd(n): return f"s[{n}:{n+3}]"
def vr(a, n=1): return f"v{a}" if n == 1 else f"v[{a}:{a+n-1}]"
def ar(a, n=1): return f"a{a}" if n == 1 else f"a[{a}:{a+n-1}]"
def f2u(x): return struct.unpack("<I", struct.pack("<f", x))[0]

class Ref:
    def __init__(self): self.tok = None
class VQ:
    def __init__(self, e): self.e = e; self.q = []
    def push(self, fn):
        r = Ref(); self.q.append((fn, r)); return r
    def pop(self, n=1):
        for _ in range(n):
            if not self.q: return
            fn, r = self.q.pop(0); r.tok = fn()
    def force(self, r):
        while r.tok is None: self.pop(1)
    def wait(self, r):
        if isinstance(r, (list, tuple)): r = r[-1]
        self.force(r); self.e.wait_vm(r.tok)
    def drain(self): self.pop(len(self.q))
    def take(self, n=None):
        n = len(self.q) if n is None else min(n, len(self.q))
        items, self.q = self.q[:n], self.q[n:]
        return Stag(self.e, items)
class Stag:
    def __init__(self, e, items): self.e = e; self.items = items; self.n0 = None
    def point(self, k):
        e = self.e
        if not self.items: return
        if k == 0: self.n0 = e.vm_n
        else:
            assert e.vm_n == self.n1, "VMEM issued inside a stagger region"
            del e.vm_kinds[self.n0:]; e.vm_n = self.n0
        l = e.skip_begin(f"s_cmp_lg_u32 s{sW}, {k}")
        for fn, r in self.items: r.tok = fn()
        e.skip_end(l)
        self.n1 = e.vm_n

def stamp(e, name):
    if not PROFILE: return
    idx = len(STAMPS); STAMPS.append(str(name)); assert idx < 62
    e(f"s_memtime s[96:97]\ns_waitcnt lgkmcnt(0)\ns_sub_u32 s96, s96, s98\nv_writelane_b32 v{vTS}, s96, {idx}")
    e.ld_done = e.ld_n
def stamp_flush(e):
    if not PROFILE: return
    e(f"s_memrealtime s[96:97]\ns_waitcnt lgkmcnt(0)\nv_writelane_b32 v{vTS}, s96, 63\nv_writelane_b32 v{vTS}, s100, 62")
    e(f"s_lshl_b32 s{sT0}, s2, 2\ns_add_u32 s{sT0}, s{sT0}, s{sW}\ns_lshl_b32 s{sT0}, s{sT0}, 8\ns_add_u32 s{sT0}, s{sT0}, {WS_TS}")
    e(f"v_lshlrev_b32 v{vT0}, 2, v{vLANE}")
    e.vm(f"buffer_store_dword v{vTS}, v{vT0}, {srd(S_WS)}, s{sT0} offen", "store")

def push_dma_group(q, voff, srdn, setup, n=4):
    e = q.e; refs = []
    for j in range(n):
        def fn(j=j):
            if j == 0: e(setup)
            off = f" offset:{1024*j}" if j else ""
            if X("NOVM"): return -1
            return e.vm(f"buffer_load_dwordx4 v{voff+j}, {srd(srdn)}, s{sQA} offen{off} lds")
        refs.append(q.push(fn))
    return refs
def push_touch(q, srdn, share, k0, n):
    e = q.e
    for k in range(n):
        def fn(k=k):
            e(f"s_mul_i32 s{sQA}, s{sJ}, {share}\ns_lshl_b32 s{sT5}, s{sW}, 13\ns_add_u32 s{sQA}, s{sQA}, s{sT5}")
            if k0 + k: e(f"s_add_u32 s{sQA}, s{sQA}, {(k0+k)*32768}")
            return e.vm(f"buffer_load_dword v{vJUNK}, v{vL128}, {srd(srdn)}, s{sQA} offen")
        q.push(fn)

def touch_blk(e, srdn, blk0):
    e(f"s_lshl_b32 s{sQA}, s{sJ}, 2\ns_add_u32 s{sQA}, s{sQA}, s{sW}" + (f"\ns_add_u32 s{sQA}, s{sQA}, {blk0}" if blk0 else "") + f"\ns_lshl_b32 s{sQA}, s{sQA}, 13")
    return e.vm(f"buffer_load_dword v{vJUNK}, v{vL128}, {srd(srdn)}, s{sQA} offen")
def touch16(e, srdn, k):
    en = X("T16", "wo,w4").split(",")
    nm = {S_W2: "w2", S_W3T: "w3", S_WO: "wo", S_W4: "w4"}[srdn]
    if nm not in en: return None
    e(f"s_lshl_b32 s{sQA}, s{sJ}, 2\ns_add_u32 s{sQA}, s{sQA}, s{sW}\ns_lshl_b32 s{sQA}, s{sQA}, 11" + (f"\ns_add_u32 s{sQA}, s{sQA}, {k*262144}" if k else ""))
    e("s_mov_b64 exec, 0xffff")
    tk = e.vm(f"buffer_load_dword v{vJUNK}, v{vL128}, {srd(srdn)}, s{sQA} offen")
    e("s_mov_b64 exec, -1")
    return tk
def touch_chunk(e, c):
    e(f"s_lshl_b32 s{sQA}, s{sJ}, 2\ns_add_u32 s{sQA}, s{sQA}, s{sW}\ns_cmp_lt_u32 s{sQA}, 96")
    e(f"s_cselect_b32 s84, s{S_WQKV}, s{S_W1}\ns_cselect_b32 s85, s{S_WQKV+1}, s{S_W1+1}\ns_cselect_b32 s86, s{S_WQKV+2}, s{S_W1+2}\ns_mov_b32 s87, 0x20000")
    e(f"s_mov_b32 s{sT5}, {c*32768 - 96*1024}\ns_cselect_b32 s{sT5}, {c*98304}, s{sT5}\ns_lshl_b32 s{sQA}, s{sQA}, 10\ns_add_u32 s{sQA}, s{sQA}, s{sT5}")
    e("s_mov_b64 exec, 0xff")
    tk = e.vm(f"buffer_load_dword v{vJUNK}, v{vL128}, s[84:87], s{sQA} offen")
    e("s_mov_b64 exec, -1")
    return tk
def set_exec(n):
    if n <= 32: return f"s_mov_b64 exec, {hex((1 << n) - 1)}" if n < 32 else "s_mov_b32 exec_lo, -1\ns_mov_b32 exec_hi, 0"
    return f"s_mov_b32 exec_hi, {hex((1 << (n - 32)) - 1)}"
def touch_chunks(e, c0, nch):
    e(f"s_lshl_b32 s{sQA}, s{sJ}, 2\ns_add_u32 s{sQA}, s{sQA}, s{sW}\ns_cmp_lt_u32 s{sQA}, 96")
    e(f"s_cselect_b32 s84, s{S_WQKV}, s{S_W1}\ns_cselect_b32 s85, s{S_WQKV+1}, s{S_W1+1}\ns_cselect_b32 s86, s{S_WQKV+2}, s{S_W1+2}\ns_mov_b32 s87, 0x20000")
    e(f"s_mov_b32 s{sT5}, 32768\ns_cselect_b32 s{sT5}, 98304, s{sT5}")
    e(f"v_lshrrev_b32 v{vTCH}, 3, v{vLANE}\nv_mul_lo_u32 v{vTCH}, v{vTCH}, s{sT5}\nv_and_b32 v{vTCH+1}, 7, v{vLANE}\nv_lshlrev_b32 v{vTCH+1}, 7, v{vTCH+1}\nv_add_u32 v{vTCH}, v{vTCH}, v{vTCH+1}")
    e(f"s_mul_i32 s{sT5}, s{sT5}, {c0}\ns_cmp_lt_u32 s{sQA}, 96\ns_cselect_b32 s83, 0, 96\ns_sub_u32 s{sQA}, s{sQA}, s83\ns_lshl_b32 s{sQA}, s{sQA}, 10\ns_add_u32 s{sQA}, s{sQA}, s{sT5}")
    if nch < 8: e(set_exec(8*nch))
    tk = e.vm(f"buffer_load_dword v{vJUNK}, v{vTCH}, s[84:87], s{sQA} offen")
    if nch < 8: e("s_mov_b64 exec, -1")
    return tk
def touch_slow_ab(e, ch=3):
    e(f"s_lshl_b32 s{sQA}, s{sJ}, 2\ns_add_u32 s{sQA}, s{sQA}, s{sW}\ns_cmp_lt_u32 s{sQA}, 96")
    e(f"s_cselect_b32 s84, s{S_WQKV}, s{S_W1}\ns_cselect_b32 s85, s{S_WQKV+1}, s{S_W1+1}\ns_cselect_b32 s86, s{S_WQKV+2}, s{S_W1+2}\ns_mov_b32 s87, 0x20000")
    e(f"s_cselect_b32 s{sT5}, 0, 96\ns_sub_u32 s{sQA}, s{sQA}, s{sT5}\ns_lshl_b32 s{sQA}, s{sQA}, 14\ns_add_u32 s{sQA}, s{sQA}, {ch*128}")
    e(f"v_lshlrev_b32 v{vTCH}, 10, v{vLANE}")
    e("s_mov_b64 exec, 0xffff")
    tk = e.vm(f"buffer_load_dword v{vJUNK}, v{vTCH}, s[84:87], s{sQA} offen")
    e("s_mov_b64 exec, -1")
    return tk
def touch_slow(e, srdn, nrows, ch=3):
    per = nrows // 128
    e(f"s_lshl_b32 s{sQA}, s{sJ}, 2\ns_add_u32 s{sQA}, s{sQA}, s{sW}\ns_mul_i32 s{sQA}, s{sQA}, {per*1024}\ns_add_u32 s{sQA}, s{sQA}, {ch*128}")
    e(f"v_lshlrev_b32 v{vTCH}, 10, v{vLANE}")
    e(set_exec(per))
    tk = e.vm(f"buffer_load_dword v{vJUNK}, v{vTCH}, {srd(srdn)}, s{sQA} offen")
    e("s_mov_b64 exec, -1")
    return tk
def touch_all(e, segs, lanes):
    blk = lanes * 128
    e(f"s_lshl_b32 s{sQA}, s2, 2\ns_add_u32 s{sQA}, s{sQA}, s{sW}")
    sr0 = segs[0][0]
    e(f"s_mov_b32 s84, s{sr0}\ns_mov_b32 s85, s{sr0+1}\ns_mov_b32 s86, {segs[0][1]}\ns_mov_b32 s87, 0x20000\ns_mov_b32 s{sT5}, 0")
    lo = 0
    for k in range(1, len(segs)):
        assert segs[k-1][1] % blk == 0
        lo += segs[k-1][1] // blk
        sr = segs[k][0]
        e(f"s_cmp_ge_u32 s{sQA}, {lo}\ns_cselect_b32 s84, s{sr}, s84\ns_cselect_b32 s85, s{sr+1}, s85\ns_cselect_b32 s86, {segs[k][1]}, s86\ns_cselect_b32 s{sT5}, {lo}, s{sT5}")
    assert lo + -(-segs[-1][1] // blk) <= 1024, lo
    e(f"s_sub_u32 s{sQA}, s{sQA}, s{sT5}\ns_mul_i32 s{sQA}, s{sQA}, {blk}")
    if lanes < 64: e(set_exec(lanes))
    tk = e.vm(f"buffer_load_dword v{vJUNK}, v{vL128}, s[84:87], s{sQA} offen")
    if lanes < 64: e("s_mov_b64 exec, -1")
    return tk
def touch_code(e, label):
    if X("CODETOUCH", "0") == "0": return None
    e(f"s_lshl_b32 s{sT5}, s{sW}, 13\ns_add_u32 s{sT5}, s{sT5}, {label}-L_pc\ns_min_u32 s{sT5}, s{sT5}, L_codeend-L_pc-8192")
    e(f"s_add_u32 s84, s88, s{sT5}\ns_addc_u32 s85, s89, 0")
    e(f"v_mov_b32 v{vTCH+1}, s85\nv_add_co_u32 v{vTCH}, vcc, s84, v{vL128}\nv_addc_co_u32 v{vTCH+1}, vcc, 0, v{vTCH+1}, vcc")
    return e.vm(f"global_load_dword v{vJUNK}, v[{vTCH}:{vTCH+1}], off")
def touch_dst(e, setup_fn, nlanes):
    if X("DSTTOUCH", "1") == "0": return None
    reg = setup_fn()
    if nlanes < 64: e(f"s_mov_b64 exec, {hex((1 << nlanes) - 1)}")
    tk = e.vm(f"buffer_load_dword v{vJUNK}, v{vL128}, {srd(S_WS)}, s{reg} offen")
    if nlanes < 64: e("s_mov_b64 exec, -1")
    return tk
def touch_round0(e):
    e(f"s_lshl_b32 s{sQA}, s{sJ}, 2\ns_add_u32 s{sQA}, s{sQA}, s{sW}\ns_cmp_lt_u32 s{sQA}, 64")
    for k in range(4): e(f"s_cselect_b32 s{S_DS+k}, s{S_WO+k}, s{S_W4+k}")
    e(f"s_cselect_b32 s{sT5}, 0, 64\ns_sub_u32 s{sQA}, s{sQA}, s{sT5}\ns_lshl_b32 s{sQA}, s{sQA}, 13")
    return e.vm(f"buffer_load_dword v{vJUNK}, v{vL128}, {srd(S_DS)}, s{sQA} offen")
def set_voffW(e, dst, ld):
    t = vT0
    e(f"v_lshrrev_b32 v{t}, 3, v{vLANE}\nv_mul_u32_u24 v{t}, {ld}, v{t}")
    e(f"v_lshrrev_b32 v{t+1}, 2, v{vLANE}\nv_lshrrev_b32 v{t+2}, 4, v{vLANE}\nv_xor_b32 v{t+1}, v{t+1}, v{t+2}\nv_and_b32 v{t+1}, 1, v{t+1}")
    e(f"v_lshlrev_b32 v{t+1}, 6, v{t+1}\nv_and_b32 v{t+2}, 3, v{vLANE}\nv_lshlrev_b32 v{t+2}, 4, v{t+2}")
    e(f"v_add3_u32 v{dst}, v{t}, v{t+1}, v{t+2}")
    for j in range(1, 4): e(f"v_add_u32 v{dst+j}, {j*(8*ld-1024)}, v{dst}")

def flag_store(e, soff, sc):
    e(f"v_mov_b32 v{vT0}, s{sTAG}\nv_mov_b32 v{vT0+1}, 0")
    e(f"v_cmp_eq_u32 vcc, 0, v{vLANE}\ns_and_saveexec_b64 s[{sSAVE}:{sSAVE+1}], vcc")
    e(f"buffer_store_dword v{vT0}, v{vT0+1}, {srd(S_WS)}, s{soff} offen {sc}")
    e(f"s_mov_b64 exec, s[{sSAVE}:{sSAVE+1}]")
def publish(e, setup, always_slow=False, upto=None):
    if upto is None: e.wait_vm_all()
    else: e.wait_vm(upto)
    e("s_barrier")
    l = e.newlabel("Lpub")
    e(f"s_cmp_lg_u32 s{sW}, 0\ns_cbranch_scc1 {l}")
    e(setup)
    if always_slow: flag_store(e, sT2, "sc1")
    else:
        l2 = e.newlabel("Lpub"); l3 = e.newlabel("Lpub")
        e(f"s_cmp_eq_u32 s{sPURE}, 0\ns_cbranch_scc1 {l2}")
        flag_store(e, sT2, "")
        e(f"s_branch {l3}")
        e.label(l2)
        flag_store(e, sT2, "sc1")
        e.label(l3)
    e.label(l)
    e.vm_kinds.append("store"); e.vm_n += 1
def poll(e, setup, nflags):
    l = e.newlabel("Lpoll"); lx = e.newlabel("Lpollx"); ls = e.newlabel("Lpolls")
    e(f"s_cmp_lg_u32 s{sW}, 0\ns_cbranch_scc1 {ls}")
    e(setup)
    e(f"v_lshlrev_b32 v{vT0+1}, 2, v{vLANE}")
    e(f"v_cmp_gt_u32 vcc, {nflags}, v{vLANE}\ns_and_saveexec_b64 s[{sSAVE}:{sSAVE+1}], vcc")
    e(f"s_mov_b32 s{sSPIN}, 0x40000")
    e.label(l)
    e(f"s_sub_u32 s{sSPIN}, s{sSPIN}, 1\ns_cmp_eq_u32 s{sSPIN}, 0\ns_cbranch_scc1 {lx}")
    e(f"buffer_load_dword v{vT0}, v{vT0+1}, {srd(S_WS)}, s{sT2} offen sc1")
    e("s_waitcnt vmcnt(0)")
    e(f"v_cmp_ne_u32 vcc, s{sTAG}, v{vT0}")
    e(f"s_cbranch_vccnz {l}")
    e.label(lx)
    e(f"s_mov_b64 exec, s[{sSAVE}:{sSAVE+1}]")
    e.label(ls)
    e("s_barrier")
def wt(name): return name in X("WT", "pq,h2").split(",")
def flags_async(e, setup, nflags):
    e(setup)
    e(f"s_mov_b32 s{sFLG}, s{sT2}")
    e(f"v_min_u32 v{vPUB}, {nflags-1}, v{vLANE}\nv_lshlrev_b32 v{vPUB}, 2, v{vPUB}")
    return e.vm(f"buffer_load_dword v{vPUB}, v{vPUB}, {srd(S_WS)}, s{sFLG} offen sc1")
def flags_wait(e, tok, nflags):
    e.wait_vm(tok)
    l = e.newlabel("Lfw"); lo = e.newlabel("Lfwo"); t = vT0
    e(f"s_mov_b32 s{sSPIN}, 0x40000")
    e.label(l)
    e(f"v_cmp_ne_u32 vcc, s{sTAG}, v{vPUB}\ns_cbranch_vccz {lo}")
    e(f"s_sub_u32 s{sSPIN}, s{sSPIN}, 1\ns_cmp_eq_u32 s{sSPIN}, 0\ns_cbranch_scc1 {lo}")
    e(f"v_min_u32 v{t+1}, {nflags-1}, v{vLANE}\nv_lshlrev_b32 v{t+1}, 2, v{t+1}")
    e(f"buffer_load_dword v{vPUB}, v{t+1}, {srd(S_WS)}, s{sFLG} offen sc1\ns_waitcnt vmcnt(0)\ns_branch {l}")
    e.label(lo)
def stores2(e, fn, name=None):
    if name and wt(name):
        fn("sc1"); return e.vm_n - 1
    l2 = e.newlabel("Lst"); l3 = e.newlabel("Lst")
    e(f"s_cmp_eq_u32 s{sPURE}, 0\ns_cbranch_scc1 {l2}")
    n0 = e.vm_n; fn(""); n1 = e.vm_n
    e(f"s_branch {l3}")
    e.label(l2)
    del e.vm_kinds[n0:]; e.vm_n = n0
    fn("sc1"); assert e.vm_n == n1
    e.label(l3)
    return n1 - 1
def tr_frag(e, dst, addr, off, second, acc=False):
    r = ar if acc else vr
    e.lds(f"ds_read_b64_tr_b16 {r(dst,2)}, v{addr} offset:{off}")
    return e.lds(f"ds_read_b64_tr_b16 {r(dst+2,2)}, v{addr} offset:{off+second}")
def mfma(e, d, a, b, c=None, aa=False, ba=False):
    A = ar(a, 4) if aa else vr(a, 4); B = ar(b, 4) if ba else vr(b, 4)
    C = vr(d, 16) if c is None else c
    e(f"v_mfma_f32_32x32x16_bf16 {vr(d,16)}, {A}, {B}, {C}")
def interleave(mains, fillers):
    n = len(mains); m = len(fillers); k = 0
    for i, f in enumerate(mains):
        f()
        upto = (m * (i + 1) + n - 1) // n if i + 1 < n else m
        while k < upto: fillers[k](); k += 1
def gelu_pairs(e, accs, rstd, tmp, outs, q=None, npop=0):
    n = len(accs); P = lambda r: vr(r, 2)
    steps = [
        lambda k: f"v_pk_mul_f32 {P(accs[k])}, {P(accs[k])}, {P(rstd)} op_sel_hi:[1,0]",
        lambda k: f"v_pk_mul_f32 {P(tmp[k])}, {P(accs[k])}, {P(accs[k])}",
        lambda k: f"v_pk_fma_f32 {P(tmp[k])}, {P(tmp[k])}, s[{sC_G1}:{sC_G1+1}], {P(vG0C)}",
        lambda k: f"v_pk_mul_f32 {P(tmp[k])}, {P(tmp[k])}, {P(accs[k])}",
        lambda k: f"v_exp_f32 v{tmp[k]}, v{tmp[k]}\nv_exp_f32 v{tmp[k]+1}, v{tmp[k]+1}",
        lambda k: f"v_pk_add_f32 {P(tmp[k])}, {P(tmp[k])}, 1.0 op_sel_hi:[1,0]",
        lambda k: f"v_rcp_f32 v{tmp[k]}, v{tmp[k]}\nv_rcp_f32 v{tmp[k]+1}, v{tmp[k]+1}",
        lambda k: f"v_pk_mul_f32 {P(accs[k])}, {P(accs[k])}, {P(tmp[k])}",
        lambda k: f"v_cvt_pk_bf16_f32 v{outs[k]}, v{accs[k]}, v{accs[k]+1}"]
    left = npop
    for si, st in enumerate(steps):
        for k in range(n): e(st(k))
        if q is not None and left > 0:
            m = -(-left // (len(steps) - si)); q.pop(m); left -= m
def halfsum(e, r, t):
    e(f"v_mov_b32 v{t}, v{r}\nv_permlane32_swap_b32 v{r}, v{t}\nv_add_f32 v{r}, v{r}, v{t}")
def corr_frags(e, cs, negmean, A, B, t):
    if cs is not None:
        e(f"v_cvt_pk_bf16_f32 v{t}, v{cs}, v{cs}\nv_and_b32 v{t}, 0xffff0000, v{t}\nv_sub_f32 v{t}, v{cs}, v{t}")
        e(f"v_cvt_pk_bf16_f32 v{A}, v{cs}, v{t}\nv_mov_b32 v{A+1}, v{A}\nv_mov_b32 v{A+2}, 0\nv_mov_b32 v{A+3}, 0")
    if negmean is not None:
        e(f"v_cvt_pk_bf16_f32 v{B}, v{negmean}, v{negmean}\nv_and_b32 v{t}, 0xffff0000, v{B}\nv_sub_f32 v{t}, v{negmean}, v{t}")
        e(f"v_cvt_pk_bf16_f32 v{B+1}, v{t}, v{t}\nv_mov_b32 v{B+2}, 0\nv_mov_b32 v{B+3}, 0")
def ln_stats(e, S, Q, negmean, rstd, t):
    e(f"v_mul_f32 v{negmean}, 0xbb000000, v{S}\nv_mul_f32 v{t}, 0x3b000000, v{Q}")
    e(f"v_fma_f32 v{t}, -v{negmean}, v{negmean}, v{t}\nv_max_f32 v{t}, 0, v{t}\nv_add_f32 v{t}, 0x3727c5ac, v{t}\nv_rsq_f32 v{rstd}, v{t}")
def frag_soff(e, dst, base, nks, ks_lines, blk=None):
    blk = sI if blk is None else blk
    e(ks_lines)
    e(f"s_lshl_b32 s{sT2}, s{sTB}, 1\ns_add_u32 s{sT2}, s{sT2}, s{blk}\ns_mul_i32 s{sT2}, s{sT2}, {nks}\ns_add_u32 s{sT2}, s{sT2}, s{sT3}")
    e(f"s_lshl_b32 s{sT2}, s{sT2}, 10\ns_add_u32 s{dst}, s{sT2}, {base}")
def own_soff_q(e, base, nks):
    e(f"s_lshl_b32 s{sQA}, s{sTB}, 1\ns_add_u32 s{sQA}, s{sQA}, s{sI}\ns_mul_i32 s{sQA}, s{sQA}, {nks}\ns_lshl_b32 s{sT5}, s{sFB}, 2\ns_add_u32 s{sQA}, s{sQA}, s{sT5}")
    e(f"s_lshl_b32 s{sT5}, s{sC}, 1\ns_add_u32 s{sQA}, s{sQA}, s{sT5}\ns_lshl_b32 s{sQA}, s{sQA}, 10\ns_add_u32 s{sQA}, s{sQA}, {base}")
    return sQA
OWNKS = f"s_lshl_b32 s{sT3}, s{sFB}, 2\ns_lshl_b32 s{sT4}, s{sC}, 1\ns_add_u32 s{sT3}, s{sT3}, s{sT4}"
teamflag = lambda base: f"s_lshl_b32 s{sT2}, s{sU}, 7\ns_lshl_b32 s{sT3}, s{sV}, 2\ns_add_u32 s{sT2}, s{sT2}, s{sT3}\ns_add_u32 s{sT2}, s{sT2}, {base}"

def prologue(e, q):
    e(f"s_cmp_ge_u32 s2, 256\ns_cbranch_scc1 L_end")
    if PROFILE: e("s_memrealtime s[100:101]\ns_memtime s[98:99]")
    e(f"s_getpc_b64 s[{sT0}:{sT0+1}]")
    e.label("L_pc")
    e(f"s_mov_b32 s88, s{sT0}\ns_mov_b32 s89, s{sT1}")
    e("s_load_dwordx16 s[64:79], s[0:1], 0\ns_load_dwordx8 s[80:87], s[0:1], 64")
    for k in range(2):
        e(f"v_lshlrev_b32 v30, 7, v0" + (f"\nv_add_u32 v30, {0x8000*k}, v30" if k else "") + f"\nv_min_u32 v30, L_codeend-L_pc-4, v30\nv_mov_b32 v31, s{sT1}")
        e(f"v_add_co_u32 v30, vcc, s{sT0}, v30\nv_addc_co_u32 v31, vcc, 0, v31, vcc")
        e.vm(f"global_load_dword v{vJUNK}, v[30:31], off")
    e(f"v_and_b32 v{vLANE}, 63, v0\nv_lshrrev_b32 v{vT0}, 6, v0\nv_readfirstlane_b32 s{sW}, v{vT0}")
    e(f"v_and_b32 v{vT}, 31, v{vLANE}\nv_lshrrev_b32 v{vHH}, 5, v{vLANE}\nv_lshlrev_b32 v{vL16}, 4, v{vLANE}\nv_lshlrev_b32 v{vL128}, 7, v{vLANE}")
    e(f"s_and_b32 s{sT2}, s2, 7\ns_lshr_b32 s{sT3}, s2, 3")
    e(f"s_lshr_b32 s{sT4}, s{sT3}, 3\ns_lshl_b32 s{sTB}, s{sT2}, 2\ns_add_u32 s{sTB}, s{sTB}, s{sT4}")
    e(f"s_and_b32 s{sFB}, s{sT3}, 7\ns_lshr_b32 s{sU}, s{sTB}, 1\ns_and_b32 s{sV}, s{sT3}, 15")
    e(f"s_lshr_b32 s{sI}, s{sW}, 1\ns_and_b32 s{sC}, s{sW}, 1\ns_mov_b32 s92, s{sT3}")
    e(f"s_getreg_b32 s{sXCC}, hwreg(HW_REG_XCC_ID, 0, 4)")
    e(f"s_lshr_b32 s{sT2}, s{sFB}, 1\ns_lshr_b32 s{sT3}, s{sT2}, 1\ns_add_u32 s{sT3}, s{sT3}, 1")
    e(f"s_sub_u32 s{sT4}, 0, s{sT3}\ns_bitcmp1_b32 s{sT2}, 0\ns_cselect_b32 s{sDELTA}, s{sT4}, s{sT3}")
    t = vT0
    e(f"s_lshl_b32 s{sT4}, s{sTB}, 6\ns_sub_u32 s{sT4}, s{sT4}, 2")
    e(f"v_and_b32 v{t}, 3, v{vLANE}\nv_lshrrev_b32 v{t+1}, 4, v{vLANE}\nv_xor_b32 v{t}, v{t}, v{t+1}\nv_and_b32 v{t}, 3, v{t}\nv_lshlrev_b32 v{t}, 4, v{t}")
    e(f"v_lshrrev_b32 v{t+1}, 2, v{vLANE}\nv_add_u32 v{t+1}, s{sT4}, v{t+1}")
    for j in range(5):
        e(f"v_add_u32 v{t+2}, {16*j}, v{t+1}\nv_max_i32 v{t+2}, 0, v{t+2}\nv_min_i32 v{t+2}, 2047, v{t+2}")
        e(f"v_lshlrev_b32 v{t+2}, 10, v{t+2}\nv_add_u32 v{t+2}, v{t+2}, v{t}")
        if j == 0: e(f"v_mov_b32 v{vXO}, v{t+2}")
        elif j < 4: e(f"v_subrev_u32 v{vXO+j}, {1024*j}, v{t+2}")
        else: e(f"v_mov_b32 v{vXE}, v{t+2}")
    set_voffW(e, vW1K, 1024)
    set_voffW(e, vWAB, 3072)
    e(f"s_cmp_eq_u32 s{sW}, 3\ns_cselect_b64 vcc, -1, 0")
    for j in range(4): e(f"v_cndmask_b32 v{vWAB+j}, v{vWAB+j}, v{vW1K+j}, vcc")
    e("s_waitcnt lgkmcnt(0)")
    for dst, src, size in [(S_AX, 64, 2097152), (S_WQKV, 66, 512*3072), (S_W1, 72, 524288), (S_WS, 86, WS_SIZE), (S_GW, 80, 1024), (S_W2, 74, 524288),
                           (S_WO, 68, 524288), (S_W3, 76, 512*3584), (S_W4, 78, 1792*1024), (S_OUT, 82, 2097152)]:
        e(f"s_mov_b32 s{dst}, s{src}\ns_mov_b32 s{dst+1}, s{src+1}\ns_mov_b32 s{dst+2}, {size}\ns_mov_b32 s{dst+3}, 0x20000")
    if PROFILE: e(f"v_mov_b32 v{vTS}, 0")
    stamp(e, "karg")
    e(f"s_load_dword s{sTAG}, s[{S_WS}:{S_WS+1}], 0")
    e(f"s_mov_b32 s{sJ}, s92")
    e(f"s_cmp_eq_u32 s{sW}, 3")
    for k in range(4): e(f"s_cselect_b32 s{S_DS+k}, s{S_W1+k}, s{S_WQKV+k}")
    e(f"s_lshl_b32 s{sT2}, s{sW}, 10\ns_cmp_eq_u32 s{sW}, 3\ns_cselect_b32 s{sT2}, 0, s{sT2}\ns_mov_b32 s{sQSTEP}, {32*3072}\ns_cselect_b32 s{sQSTEP}, {32*1024}, s{sQSTEP}")
    e(f"s_lshl_b32 s{sT3}, s{sFB}, 7\ns_add_u32 s{sQW}, s{sT2}, s{sT3}")
    e(f"s_lshl_b32 s{sB0}, s{sW}, 12")
    e(f"s_mul_i32 s{sB1}, s{sW}, {XM}\ns_lshl_b32 s{sB2}, s{sW}, 6")

def push_x(q, qq):
    e = q.e
    refs = push_dma_group(q, vXO, S_AX, f"s_add_u32 m0, s{sB1}, {qq*4*XM}\ns_add_u32 s{sQA}, s{sB2}, {256*qq}")
    def fn():
        e(f"s_add_u32 m0, s{sB1}, {qq*4*XM + 4096}")
        e(f"s_mov_b64 exec, 0xffff")
        tk = -1 if X("NOVM") else e.vm(f"buffer_load_dwordx4 v{vXE}, {srd(S_AX)}, s{sQA} offen lds")
        e(f"s_mov_b64 exec, -1")
        return tk
    refs.append(q.push(fn))
    return refs
def push_wab(q, c):
    return push_dma_group(q, vWAB, S_DS, f"s_add_u32 m0, s{sB0}, {SL(c % 5)}\ns_mov_b32 s{sQA}, s{sQW}\ns_add_u32 s{sQW}, s{sQW}, s{sQSTEP}")
def push_w2(q, k):
    return push_dma_group(q, vW1K, S_W2, f"s_add_u32 m0, s{sB0}, {SL(1+k)}\ns_lshl_b32 s{sQA}, s{sW}, 15\ns_lshl_b32 s{sT5}, s{sFB}, 7\ns_add_u32 s{sQA}, s{sQA}, s{sT5}\ns_add_u32 s{sQA}, s{sQA}, {k*128*1024}")
def w3_lds(g): return g * 8192 if g < 8 else SL(0) + (g - 8) * 8192
def push_w3(q, gl, ps=(0, 1)):
    refs = []
    for p in ps:
        refs += push_dma_group(q, vW3, S_W3, f"s_lshl_b32 s{sQA}, s{sW}, 13\ns_add_u32 m0, s{sQA}, {w3_lds(4*gl) + p*4096}\n"
                               f"s_mul_i32 s{sQA}, s{sW}, {32*3584}\ns_lshl_b32 s{sT5}, s{sV}, 8\ns_add_u32 s{sQA}, s{sQA}, s{sT5}\ns_add_u32 s{sQA}, s{sQA}, {4*gl*32*3584 + 128*p}")
    return refs
def region_m0(reg, slot):
    if reg == "A": return f"s_lshl_b32 s{sQA}, s{sW}, 14\ns_add_u32 m0, s{sQA}, {slot*4096}"
    if reg == "B": return f"s_lshl_b32 s{sQA}, s{sW}, 14\ns_add_u32 m0, s{sQA}, {SL(0) + slot*4096}"
    return f"s_lshl_b32 s{sQA}, s{sW}, 12\ns_add_u32 m0, s{sQA}, {SL(4)}"
def push_wp(q, srdn, rows_per_wave, g, reg, slot):
    return push_dma_group(q, vW1K, srdn, region_m0(reg, slot) + "\n" +
                          f"s_mul_i32 s{sQA}, s{sW}, {rows_per_wave*1024}\ns_lshl_b32 s{sT5}, s{sFB}, 7\ns_add_u32 s{sQA}, s{sQA}, s{sT5}\ns_add_u32 s{sQA}, s{sQA}, {g*32*1024}")
W4LOC = {g: (("A", g) if g < 4 else ("C", 0)) for g in range(5)}
W4LOC.update({5 + g: (("A", g) if g < 4 else ("C", 0)) for g in range(5)})
W4LOC.update({10 + g: ("B", g) for g in range(4)})
def push_w4(q, g):
    reg, slot = W4LOC[g]
    return push_dma_group(q, vW1K, S_W4, region_m0(reg, slot) + "\n" +
                          f"s_lshl_b32 s{sQA}, s{sW}, 15\ns_lshl_b32 s{sT5}, s{sFB}, 7\ns_add_u32 s{sQA}, s{sQA}, s{sT5}\ns_add_u32 s{sQA}, s{sQA}, {g*128*1024}")
def push_wo(q, g): return push_wp(q, S_WO, 128, g, "B", g)
def set_region_addrs(e):
    sel_addrP(e, vA + 4)
    e(f"s_lshl_b32 s{sT2}, s{sW}, 14\nv_add_u32 v{vA}, s{sT2}, v{vA+4}\nv_add_u32 v{vA+1}, s{sT2}, v{vA+5}")
    e(f"v_add_u32 v{vA+2}, {SL(0)}, v{vA}\nv_add_u32 v{vA+3}, {SL(0)}, v{vA+1}")
    e(f"s_lshl_b32 s{sT2}, s{sW}, 12\ns_add_u32 s{sT2}, s{sT2}, {SL(4)}\nv_add_u32 v{vA+4}, s{sT2}, v{vA+4}\nv_add_u32 v{vA+5}, s{sT2}, v{vA+5}")
def region_addr(reg, slot, c):
    return vA + {"A": 0, "B": 2, "C": 4}[reg] + c, (slot*4096 if reg != "C" else 0)
W4A = 128
def w4_to_agpr_fns(e):
    fns = []
    for s in range(10):
        reg, slot = W4LOC[s >> 1]
        for c in range(2):
            a, off = region_addr(reg, slot, c); off += (s & 1)*2048; d = W4A + (2*s + c)*4
            fns.append(lambda a=a, off=off, d=d: e.lds(f"ds_read_b64_tr_b16 {ar(d,2)}, v{a} offset:{off}"))
            fns.append(lambda a=a, off=off, d=d: e.lds(f"ds_read_b64_tr_b16 {ar(d+2,2)}, v{a} offset:{off+1024}"))
    return fns

def common_addr(e):
    t = vT0
    e(f"v_and_b32 v{t}, 15, v{vLANE}\nv_lshrrev_b32 v{t}, 2, v{t}")
    e(f"v_and_b32 v{t+1}, 3, v{vLANE}\nv_lshlrev_b32 v{t+1}, 3, v{t+1}")
    e(f"v_lshrrev_b32 v{t+2}, 4, v{vLANE}\nv_and_b32 v{t+2}, 1, v{t+2}\nv_lshlrev_b32 v{t+2}, 5, v{t+2}")
    e(f"v_add_u32 v{t+1}, v{t+1}, v{t+2}\nv_lshrrev_b32 v{t+2}, 1, v{t}")
    e(f"v_lshlrev_b32 v{t+3}, 7, v{t}\nv_add_u32 v{t+1}, v{t+1}, v{t+3}")
    for c in range(2):
        e(f"v_xor_b32 v{t+3}, {c}, v{t+2}\nv_lshlrev_b32 v{t+3}, 6, v{t+3}\nv_add_u32 v{t+3}, v{t+3}, v{t+1}")
        e(f"v_lshlrev_b32 v{t+4}, 10, v{vHH}\nv_add_u32 v{vAN+c}, v{t+3}, v{t+4}")
        e(f"v_lshlrev_b32 v{t+4}, 9, v{vHH}\nv_add_u32 v{vAP+c}, v{t+3}, v{t+4}")
    set_voffW(e, vW3, 3584)

AQ, AK, AV, AH = 64, 80, 96, 112
def stage_ab1(e, q, xrefs, wrefs):
    t = vT0
    e(f"s_xor_b32 s{sT0}, s{sI}, s{sC}")
    for kind in range(2):
        e(f"s_lshl_b32 s{sT2}, s{sI}, 5\ns_add_u32 s{sT2}, s{sT2}, 2")
        if kind: e(f"s_sub_u32 s{sT2}, s{sT2}, s{sDELTA}")
        e(f"v_add_u32 v{t}, s{sT2}, v{vT}\nv_lshrrev_b32 v{t+1}, 2, v{t}\nv_and_b32 v{t+1}, 3, v{t+1}\nv_lshlrev_b32 v{t}, 6, v{t}")
        for sp in range(2):
            e(f"s_xor_b32 s{sT3}, s{sT0}, {sp}\ns_lshl_b32 s{sT3}, s{sT3}, 1")
            e(f"v_add_u32 v{t+2}, s{sT3}, v{vHH}\nv_xor_b32 v{t+2}, v{t+2}, v{t+1}\nv_lshlrev_b32 v{t+2}, 4, v{t+2}\nv_add_u32 v{vA+2*kind+sp}, v{t}, v{t+2}")
    e(f"s_cmp_eq_u32 s{sC}, 0\ns_cselect_b64 vcc, -1, 0\nv_cndmask_b32 v{t}, v{vAN+1}, v{vAN}, vcc")
    for sp in range(2):
        e(f"s_xor_b32 s{sT3}, s{sT0}, {sp}\ns_lshl_b32 s{sT3}, s{sT3}, 11")
        e(f"s_add_u32 s{sT4}, s{sT3}, {SL(0)}\nv_add_u32 v{vA+4+2*sp}, s{sT4}, v{t}\ns_add_u32 s{sT4}, s{sT3}, {SL(3)}\nv_add_u32 v{vA+5+2*sp}, s{sT4}, v{t}")
    e(f"s_lshl_b32 s{sT3}, s{sT0}, 5\ns_add_u32 s{sT3}, s{sT3}, {PA_GW}\nv_lshlrev_b32 v{vA+8}, 4, v{vHH}\nv_add_u32 v{vA+8}, s{sT3}, v{vA+8}")
    FS2 = [[128, 152], [176, 200]]
    GW2 = [224, 228]
    SUM, SQ, GA, CS = 232, 234, 236, 238
    for r in range(SUM, CS + 2): e(f"v_mov_b32 v{r}, 0")
    def read_fns(c):
        fns = []
        slot = c % 5; seg = 1 if slot >= 3 else 0; off = (slot - 3*seg) * 16384
        for sp in range(2):
            F = FS2[c & 1][sp]
            fns.append(lambda F=F, sp=sp: e.lds(f"ds_read_b128 {vr(F,4)}, v{vA+sp} offset:{c*XM}"))
            fns.append(lambda F=F, sp=sp: e.lds(f"ds_read_b128 {vr(F+4,4)}, v{vA+2+sp} offset:{c*XM}"))
            for m in range(4):
                a = vA + 4 + 2*sp + seg
                fns.append(lambda F=F, m=m, a=a: e.lds(f"ds_read_b64_tr_b16 {vr(F+8+4*m,2)}, v{a} offset:{off + m*4096}"))
                fns.append(lambda F=F, m=m, a=a: e.lds(f"ds_read_b64_tr_b16 {vr(F+10+4*m,2)}, v{a} offset:{off + m*4096 + 512}"))
            if sp == 0: fns.append(lambda: e.lds(f"ds_read_b128 {vr(GW2[c & 1],4)}, v{vA+8} offset:{c*64}"))
        return fns
    def mfma_fns(c):
        fns = []
        for sp in range(2):
            F = FS2[c & 1][sp]; z = "0" if (c == 0 and sp == 0) else None
            for (d, a, b) in [(AQ, F+8, F), (AK, F, F+12), (AV, F, F+16), (AH, F+20, F+4)]:
                fns.append(lambda d=d, a=a, b=b, z=z: mfma(e, d, a, b, c=z))
        return fns
    def dots(c):
        if X("NODOT"): return
        F = FS2[c & 1][0]; G = GW2[c & 1]
        for r in range(4):
            e(f"v_dot2c_f32_bf16 v{SUM+(r&1)}, s{sONES}, v{F+4+r}\nv_dot2c_f32_bf16 v{SQ+(r&1)}, v{F+4+r}, v{F+4+r}")
        for r in range(4):
            e(f"v_dot2c_f32_bf16 v{GA+(r&1)}, v{F+r}, v{G+r}\nv_dot2c_f32_bf16 v{CS+(r&1)}, s{sONES}, v{F+20+r}")
    w2refs = []
    for c in range(17):
        if c < 16:
            q.wait(wrefs[c])
            if c % 4 == 0: q.wait(xrefs[c // 4])
        e.wait_lds_all()
        if c < 16:
            if not X("NOBAR"): e("s_barrier")
            if c >= 1 and c + 4 < 16:
                wrefs[c + 4] = push_wab(q, c + 4)
                if X("NODMA"):
                    for fn, r in q.q: r.tok = -1
                    q.q = []
            if c == 1: xrefs[2] = push_x(q, 2)
            if c == 3: xrefs[3] = push_x(q, 3)
            if c >= 12: w2refs.append(push_w2(q, c - 12))
            extra_push(e, q, c)
        if c in (1, 5, 9, 13): stamp(e, f"ab{c}")
        fill = read_fns(c) if c < 16 else []
        npop = min(len(q.q), 8)
        pops = [lambda: q.pop(1)] * npop
        merged = []
        for k in range(max(len(fill), 1)):
            if k < len(fill): merged.append(fill[k])
            want = (npop * (k + 1)) // max(len(fill), 1)
            while sum(1 for f in merged if f in pops) < want and False: pass
        merged = []; pi = 0
        for k, f in enumerate(fill):
            merged.append(f)
            if k % (4 if npop <= 5 else 2) == 1 and pi < npop: merged.append(pops[pi]); pi += 1
        merged += pops[pi:]
        if c == 0:
            for f in merged: f()
        else:
            if X("DOTFIRST"): dots(c - 1)
            interleave(mfma_fns(c - 1), merged)
            if not X("DOTFIRST"): dots(c - 1)
    e.L.append("L_abend: ; @soft")
    stamp(e, "abmain")
    e(f"s_lshl_b32 s{sT2}, s{sI}, 5\ns_add_u32 s{sT2}, s{sT2}, 2\nv_add_u32 v{t}, s{sT2}, v{vT}\nv_lshrrev_b32 v{t+1}, 2, v{t}\nv_and_b32 v{t+1}, 3, v{t+1}")
    e(f"s_lshl_b32 s{sT2}, s{sFB}, 1\ns_add_u32 s{sT2}, s{sT2}, s{sC}\ns_mul_i32 s{sT2}, s{sT2}, {XM}")
    e(f"v_lshlrev_b32 v{t}, 6, v{t}\nv_lshlrev_b32 v{t+2}, 3, v{vHH}\nv_add3_u32 v{t}, v{t}, v{t+2}, s{sT2}")
    for j in range(4):
        e(f"v_xor_b32 v{t+2}, {j}, v{t+1}\nv_lshlrev_b32 v{t+2}, 4, v{t+2}\nv_add_u32 v{t+2}, v{t+2}, v{t}")
        e.lds(f"ds_read_b64 {vr(vRES+2*j,2)}, v{t+2}")
    e(f"v_add_f32 v{t}, v{SUM}, v{SUM+1}\nv_add_f32 v{t+1}, v{SQ}, v{SQ+1}\nv_add_f32 v{t+2}, v{GA}, v{GA+1}\nv_add_f32 v{t+3}, v{CS}, v{CS+1}")
    e(f"s_lshl_b32 s{sT2}, s{sW}, 10\ns_add_u32 s{sT2}, s{sT2}, {PA_ST}\nv_add_u32 v{vA}, s{sT2}, v{vL16}")
    e.lds(f"ds_write_b128 v{vA}, {vr(t,4)}")
    e.wait_lds_all()
    e("s_barrier")
    if X("ALLTOUCH", "1") != "0" and X("AT1", "ab4") == "ab4":
        touch_all(e, [(S_W3T, 512*3584), (S_WO, 524288), (S_W4, 1792*1024)], 32)
    push_w3(q, 0, (0,)); q.drain(); touch16(e, S_W3T, 3)
    e(f"s_xor_b32 s{sT2}, s{sW}, 1\ns_lshl_b32 s{sT2}, s{sT2}, 10\ns_add_u32 s{sT2}, s{sT2}, {PA_ST}\nv_add_u32 v{vA}, s{sT2}, v{vL16}")
    e(f"s_xor_b32 s{sT2}, s{sW}, 2\ns_lshl_b32 s{sT2}, s{sT2}, 10\ns_add_u32 s{sT2}, s{sT2}, {PA_ST}\nv_add_u32 v{vA+1}, s{sT2}, v{vL16}")
    P = 128
    k0 = e.lds(f"ds_read_b96 {vr(P,3)}, v{vA}")
    k1 = e.lds(f"ds_read_b32 v{P+3}, v{vA+1} offset:12")
    e.wait_lds(k1)
    for r in range(4): e(f"v_add_f32 v{t+r}, v{t+r}, v{P+r}")
    halfsum(e, t, t+4); halfsum(e, t+1, t+4); halfsum(e, t+2, t+4)
    NM, RS = 132, 134
    ln_stats(e, t, t+1, NM, RS, t+4)
    e(f"v_mul_f32 v{t+2}, 0xbfb8aa3b, v{t+2}\nv_exp_f32 v{t+2}, v{t+2}\nv_add_f32 v{t+2}, 1.0, v{t+2}\nv_rcp_f32 v{t+2}, v{t+2}")
    e(f"s_lshl_b32 s{sT2}, s{sI}, 7\ns_add_u32 s{sT2}, s{sT2}, {PA_G}\nv_lshlrev_b32 v{t+5}, 2, v{vT}\nv_add_u32 v{t+5}, s{sT2}, v{t+5}")
    e.lds(f"ds_write_b32 v{t+5}, v{t+2}")
    e(f"s_lshl_b32 s{sT2}, s{sTB}, 6\ns_lshl_b32 s{sT3}, s{sI}, 5\ns_add_u32 s{sT2}, s{sT2}, s{sT3}\ns_sub_u32 s{sT2}, s{sT2}, s{sDELTA}")
    e(f"v_add_u32 v{t+4}, s{sT2}, v{vT}\nv_cmp_gt_u32 vcc, 2048, v{t+4}\nv_cndmask_b32 v{RS}, 0, v{RS}, vcc")
    corr_frags(e, t+3, NM, 136, 140, t+4)
    mfma(e, AH, 136, 140)
    q.drain()
    OUT = 144
    gelu_pairs(e, [AH + 2*k for k in range(4)], RS, [152 + 2*k for k in range(4)], [OUT + k for k in range(4)])
    push_w3(q, 0, (1,)); q.drain(); touch16(e, S_W3T, 4)
    gelu_pairs(e, [AH + 2*k for k in range(4, 8)], RS, [152 + 2*k for k in range(4, 8)], [OUT + k for k in range(4, 8)])
    stamp(e, "b1epi")
    purity(e)
    frag_soff(e, sB3, WS_HSH, 32, OWNKS)
    def st(sc):
        for h in range(2):
            e.vm(f"buffer_store_dwordx4 {vr(OUT+4*h,4)}, v{vL16}, {srd(S_WS)}, s{sB3} offen offset:{1024*h} {sc}", "store")
    tok = stores2(e, st, "h")
    if not wt("x1"):
        touch_dst(e, lambda: own_soff_q(e, WS_X1, 32), 16)
        def st2():
            e(f"s_lshl_b32 s{sQA}, s{sFB}, 1\ns_add_u32 s{sQA}, s{sQA}, s{sC}\ns_lshl_b32 s{sQA}, s{sQA}, 11\ns_lshl_b32 s{sT5}, s{sTB}, 6\ns_add_u32 s{sQA}, s{sQA}, s{sT5}")
            e(f"s_lshl_b32 s{sT5}, s{sI}, 5\ns_add_u32 s{sQA}, s{sQA}, s{sT5}\ns_lshl_b32 s{sQA}, s{sQA}, 3\ns_add_u32 s{sQA}, s{sQA}, {WS_ST2}")
            return sQA
        touch_dst(e, st2, 2)
    return w2refs, tok

def purity(e):
    l = e.newlabel("Lpur"); lx = e.newlabel("Lpurx"); lo = e.newlabel("Lpuro")
    t = vT0
    e.wait_vm(e.pub_ref.tok)
    e(f"s_and_b32 s{sT3}, s{sTAG}, 0xfffffff0\ns_mov_b32 s{sSPIN}, 0x40000")
    e(f"s_lshl_b32 s{sT2}, s{sU}, 7\ns_add_u32 s{sT2}, s{sT2}, {WS_PUB}")
    e.label(l)
    e(f"v_and_b32 v{t+2}, 0xfffffff0, v{vPUB}\nv_cmp_ne_u32 vcc, s{sT3}, v{t+2}\ns_cbranch_vccz {lo}")
    e(f"s_sub_u32 s{sSPIN}, s{sSPIN}, 1\ns_cmp_eq_u32 s{sSPIN}, 0\ns_cbranch_scc1 {lo}")
    e(f"v_and_b32 v{t+1}, 15, v{vLANE}\nv_lshlrev_b32 v{t+1}, 2, v{t+1}")
    e(f"buffer_load_dword v{vPUB}, v{t+1}, {srd(S_WS)}, s{sT2} offen sc1\ns_waitcnt vmcnt(0)\ns_branch {l}")
    e.label(lo)
    e(f"s_or_b32 s{sT3}, s{sT3}, s{sXCC}\nv_cmp_ne_u32 vcc, s{sT3}, v{vPUB}")
    e(f"s_cmp_eq_u64 vcc, 0\ns_cselect_b32 s{sPURE}, 1, 0")
    if X("FORCE_SLOW"): e(f"s_mov_b32 s{sPURE}, 0")

def extra_push(e, q, c):
    if X("CT2", "0") != "0" and c == int(X("CT2", "0")): q.push(lambda: touch_chunks(e, 9, 7))
    if c == 0: q.push(lambda: touch_slow_ab(e))
    if c == 7: q.push(lambda: touch_slow(e, S_W2, 512))
    LA = int(X("CTLA", 7))
    if X("CTOUCH", "0") != "0" and 0 <= c and 5 <= c + LA < 16: q.push(lambda: touch_chunk(e, c + LA))
    T16 = {6: (S_W2, 0), 8: (S_W2, 1), 11: (S_W3T, 0), 12: (S_W3T, 1), 14: (S_W3T, 2)}
    if c in T16: q.push(lambda: touch16(e, *T16[c]))
    if c == int(X("AT2", 12)) and X("ALLTOUCH", "1") != "0" and X("AT1", "ab4") == "ab":
        q.push(lambda: touch_all(e, [(S_W2, 524288), (S_W3T, 512*3584), (S_WO, 524288), (S_W4, 1792*1024)], 64))
    if c == 9: q.push(lambda: touch_code(e, "L_abend"))
    if c == 12 and not wt("h"): q.push(lambda: touch_dst(e, lambda: own_soff_q(e, WS_HSH, 32), 16))

    if c == 8:
        def fn():
            e(f"s_lshl_b32 s{sQA}, s{sU}, 7\ns_add_u32 s{sQA}, s{sQA}, {WS_PUB}\nv_and_b32 v{vPUB}, 15, v{vLANE}\nv_lshlrev_b32 v{vPUB}, 2, v{vPUB}")
            return e.vm(f"buffer_load_dword v{vPUB}, v{vPUB}, {srd(S_WS)}, s{sQA} offen sc1")
        e.pub_ref = q.push(fn)

def sel_addrP(e, dst):
    e(f"s_cmp_eq_u32 s{sC}, 0\ns_cselect_b64 vcc, -1, 0")
    e(f"v_cndmask_b32 v{dst}, v{vAP+1}, v{vAP}, vcc\nv_cndmask_b32 v{dst+1}, v{vAP}, v{vAP+1}, vcc")

PQR = 240
KVD = 80
def a1_epilogue(e, q, w2refs, tokh):
    t = vT0
    def phi_steps(acc, out, tmp):
        P = lambda r: vr(r, 2); st = []
        for k in range(8): st.append(lambda k=k: e(f"v_pk_mul_f32 {P(tmp+2*k)}, {P(acc+2*k)}, s[{sC_LOG2E}:{sC_LOG2E+1}]"))
        for k in range(16): st.append(lambda k=k: e(f"v_min_f32 v{tmp+k}, 0, v{tmp+k}"))
        for k in range(16): st.append(lambda k=k: e(f"v_exp_f32 v{tmp+k}, v{tmp+k}"))
        for k in range(16): st.append(lambda k=k: e(f"v_max_f32 v{acc+k}, 0, v{acc+k}"))
        for k in range(8): st.append(lambda k=k: e(f"v_pk_add_f32 {P(acc+2*k)}, {P(acc+2*k)}, {P(tmp+2*k)}"))
        for k in range(8): st.append(lambda k=k: e(f"v_pk_add_f32 {P(acc+2*k)}, {P(acc+2*k)}, s[{sC_EPS6}:{sC_EPS6+1}]"))
        for k in range(8): st.append(lambda k=k: e(f"v_cvt_pk_bf16_f32 v{out+k}, v{acc+2*k}, v{acc+2*k+1}"))
        return st
    TMP = 112
    PKF, VF, PQF, ONE = 128, 136, PQR, 152
    push_w3(q, 1, (0,)); q.drain(); touch16(e, S_W3T, 5)
    q.wait(w2refs[-1])
    e("s_barrier")
    sel_addrP(e, vA)
    e(f"s_lshl_b32 s{sT2}, s{sC}, 15\ns_add_u32 s{sT2}, s{sT2}, {SL(1)}\nv_add_u32 v{vA}, s{sT2}, v{vA}\nv_add_u32 v{vA+1}, s{sT2}, v{vA+1}")
    rd = []
    for s_ in range(16):
        for c in range(2):
            d = (2*s_ + c)*4
            rd.append(lambda d=d, c=c, s_=s_: e.lds(f"ds_read_b64_tr_b16 {ar(d,2)}, v{vA+c} offset:{s_*2048}"))
            rd.append(lambda d=d, c=c, s_=s_: e.lds(f"ds_read_b64_tr_b16 {ar(d+2,2)}, v{vA+c} offset:{s_*2048+1024}"))
    interleave(phi_steps(AK, PKF, TMP), rd)
    push_w3(q, 1, (1,)); q.drain(); touch16(e, S_W3T, 6)
    for k in range(8): e(f"v_cvt_pk_bf16_f32 v{VF+k}, v{AV+2*k}, v{AV+2*k+1}")
    for k in range(4): e(f"v_mov_b32 v{ONE+k}, s{sONES}")
    D2, D3 = KVD, 96
    mfma(e, D2, PKF, VF, c="0"); mfma(e, D3, PKF, ONE, c="0")
    mfma(e, D2, PKF + 4, VF + 4); mfma(e, D3, PKF + 4, ONE)
    e.wait_lds_all()
    stamp(e, "a1k")
    publish(e, teamflag(WS_FB1), upto=tokh)
    stamp(e, "b1pub")
    push_w3(q, 2); push_w3(q, 3)
    st = phi_steps(AQ, PQF, TMP)
    q.pop(4)
    interleave(st, [lambda: q.pop(1)] * 8)
    e(f"v_and_b32 v{t}, 16, v{vLANE}\nv_cmp_ne_u32 vcc, 0, v{t}")
    for r in range(8): e(f"v_cndmask_b32 v{D2+r}, v{D2+r}, v{D3+r}, vcc")
    for r in range(8): e(f"v_cndmask_b32 v{D2+8+r}, v{D3+8+r}, v{D2+8+r}, vcc")
    q.drain()
    e(f"s_lshl_b32 s{sT2}, s{sC}, 12\ns_add_u32 s{sT2}, s{sT2}, {SL(4)}\nv_add_u32 v{t}, s{sT2}, v{vL16}")
    e.fb1tok = flags_async(e, f"s_lshl_b32 s{sT2}, s{sU}, 7\ns_and_b32 s{sT3}, s{sTB}, 1\ns_lshl_b32 s{sT3}, s{sT3}, 5\ns_add_u32 s{sT2}, s{sT2}, s{sT3}\ns_add_u32 s{sT2}, s{sT2}, {WS_FB1}", 8)
    l1 = e.newlabel("La1"); l2 = e.newlabel("La1")
    e(f"s_cmp_eq_u32 s{sI}, 0\ns_cbranch_scc1 {l1}")
    for rg in range(4): e(f"ds_write_b128 v{t}, {vr(D2+4*rg,4)} offset:{rg*1024}")
    e.label(l1)
    e.wait_lds_all()
    e("s_barrier")
    e(f"s_cmp_lg_u32 s{sI}, 0\ns_cbranch_scc1 {l2}")
    for rg in range(4): e(f"ds_read_b128 {vr(D3+4*rg,4)}, v{t} offset:{rg*1024}")
    e("s_waitcnt lgkmcnt(0)")
    for p in range(8): e(f"v_pk_add_f32 {vr(D2+2*p,2)}, {vr(D2+2*p,2)}, {vr(D3+2*p,2)}")
    e.label(l2)

def kv_store(e):
    t = vT0
    frag_soff(e, sB4, WS_PQ, 32, OWNKS)
    def stq(sc):
        for h in range(2):
            e.vm(f"buffer_store_dwordx4 {vr(PQR+4*h,4)}, v{vL16}, {srd(S_WS)}, s{sB4} offen offset:{1024*h} {sc}", "store")
    stores2(e, stq, "pq")
    l2 = e.newlabel("Lkv")
    e(f"s_cmp_lg_u32 s{sI}, 0\ns_cbranch_scc1 {l2}")
    e(f"v_and_b32 v{t+1}, 15, v{vT}\nv_mov_b32 v{t+2}, 16")
    e(f"v_and_b32 v{t+3}, 16, v{vLANE}\nv_cmp_ne_u32 vcc, 0, v{t+3}")
    e(f"v_cndmask_b32 v{t+4}, v{t+1}, v{t+2}, vcc\nv_cndmask_b32 v{t+5}, v{t+2}, v{t+1}, vcc")
    e(f"v_mul_u32_u24 v{t+3}, 544, v{vHH}")
    e(f"v_lshlrev_b32 v{t+4}, 5, v{t+4}\nv_add_u32 v{t+4}, v{t+4}, v{t+3}\nv_lshlrev_b32 v{t+5}, 5, v{t+5}\nv_add_u32 v{t+5}, v{t+5}, v{t+3}")
    e(f"s_lshl_b32 s{sT2}, s{sTB}, 3\ns_add_u32 s{sT2}, s{sT2}, s{sFB}\ns_mul_i32 s{sT2}, s{sT2}, 4352\ns_mul_i32 s{sT3}, s{sC}, 2176\ns_add_u32 s{sT2}, s{sT2}, s{sT3}\ns_add_u32 s{sB4}, s{sT2}, {WS_KVP}")
    for h in range(2):
        for qq in range(2):
            e(f"buffer_store_dwordx4 {vr(KVD+8*h+4*qq,4)}, v{t+4+h}, {srd(S_WS)}, s{sB4} offen offset:{1088*h + 16*qq} sc1")
            e.vm_kinds.append("store"); e.vm_n += 1
    e.label(l2)

def stage_b2(e, q):
    ACC = 96; HF = 128
    t = vT0
    frag_soff(e, sB3, WS_HSH, 32, f"s_lshl_b32 s{sT3}, s{sC}, 4")
    th = []
    for s in range(16):
        def fn(s=s):
            if s % 4 == 0: e(f"s_add_u32 s{sQA}, s{sB3}, {(s//4)*4096}")
            return e.vm(f"buffer_load_dwordx4 {vr(HF + 4*s, 4)}, v{vL16}, {srd(S_WS)}, s{sQA} offen offset:{(s&3)*1024} sc1")
        th.append(q.push(fn))
    if X("ALLTOUCH", "1") != "0" and X("AT1", "ab4") == "ab3":
        q.push(lambda: touch_all(e, [(S_WO, 524288), (S_W4, 1792*1024)], 32))
    q.pop(int(X("B2PRE", 8)))
    for s in range(16):
        q.wait(th[s])
        for c in range(2):
            mfma(e, ACC + 16*c, (2*s + c)*4, HF + 4*s, aa=True, c=("0" if s == 0 else None))
            if c == 0: q.pop(1)
    q.drain()
    kv_store(e)
    stamp(e, "b2main")
    e(f"s_lshl_b32 s{sT2}, s{sW}, 12\ns_add_u32 s{sT2}, s{sT2}, {SL(4)}\nv_add_u32 v{vA}, s{sT2}, v{vL16}")
    e(f"s_xor_b32 s{sT2}, s{sW}, 1\ns_lshl_b32 s{sT2}, s{sT2}, 12\ns_add_u32 s{sT2}, s{sT2}, {SL(4)}\nv_add_u32 v{vA+1}, s{sT2}, v{vL16}")
    for rg in range(4): e.lds(f"ds_write_b128 v{vA}, {vr(ACC+16+4*rg,4)} offset:{rg*1024}")
    e.wait_lds_all()
    e("s_barrier")
    tk = [e.lds(f"ds_read_b128 {vr(ACC+16+4*rg,4)}, v{vA+1} offset:{rg*1024}") for rg in range(4)]
    for rg in range(4):
        e.wait_lds(tk[rg])
        for p in range(2): e(f"v_pk_add_f32 {vr(ACC+4*rg+2*p,2)}, {vr(ACC+4*rg+2*p,2)}, {vr(ACC+16+4*rg+2*p,2)}")
    stamp(e, "b2red")
    q.drain(); touch16(e, S_WO, 0)
    for k in range(8):
        e(f"v_lshlrev_b32 v{t}, 16, v{vRES+k}\nv_and_b32 v{t+1}, 0xffff0000, v{vRES+k}")
        e(f"v_pk_add_f32 {vr(ACC+2*k,2)}, {vr(ACC+2*k,2)}, {vr(t,2)}")
        e(f"v_cvt_pk_bf16_f32 v{vRES+k}, v{ACC+2*k}, v{ACC+2*k+1}")
    frag_soff(e, sB3, WS_X1, 32, OWNKS)
    S, Q = 128, 130
    e(f"v_mov_b32 v{S}, 0\nv_mov_b32 v{S+1}, 0\nv_mov_b32 v{Q}, 0\nv_mov_b32 v{Q+1}, 0")
    for k in range(8):
        e(f"v_dot2c_f32_bf16 v{S+(k&1)}, s{sONES}, v{vRES+k}\nv_dot2c_f32_bf16 v{Q+(k&1)}, v{vRES+k}, v{vRES+k}")
    e(f"v_add_f32 v{S}, v{S}, v{S+1}\nv_add_f32 v{S+1}, v{Q}, v{Q+1}")
    halfsum(e, S, t); halfsum(e, S + 1, t)
    e(f"s_lshl_b32 s{sT2}, s{sFB}, 1\ns_add_u32 s{sT2}, s{sT2}, s{sC}\ns_lshl_b32 s{sT2}, s{sT2}, 11")
    e(f"s_lshl_b32 s{sT3}, s{sTB}, 6\ns_add_u32 s{sT2}, s{sT2}, s{sT3}\ns_lshl_b32 s{sT3}, s{sI}, 5\ns_add_u32 s{sT2}, s{sT2}, s{sT3}")
    e(f"s_lshl_b32 s{sT2}, s{sT2}, 3\ns_add_u32 s{sB4}, s{sT2}, {WS_ST2}")
    e(f"v_lshlrev_b32 v{t+2}, 3, v{vT}")
    def st(sc):
        for h in range(2):
            e.vm(f"buffer_store_dwordx4 {vr(vRES+4*h,4)}, v{vL16}, {srd(S_WS)}, s{sB3} offen offset:{1024*h} {sc}", "store")
        e.vm(f"buffer_store_dwordx2 {vr(S,2)}, v{t+2}, {srd(S_WS)}, s{sB4} offen {sc}", "store")
    return stores2(e, st, "x1")

CSA = 132
def b3_colsum(e, part):
    t = vT0
    WT = 136; ND = 6
    if part == 0:
        e(f"s_cmp_eq_u32 s{sC}, 0\ns_cselect_b64 vcc, -1, 0")
        e(f"v_cndmask_b32 v{vA+4}, v{vAP+1}, v{vAP}, vcc\ns_lshl_b32 s{sT2}, s{sI}, 12\nv_add_u32 v{vA+4}, s{sT2}, v{vA+4}\nv_add_u32 v{vA+5}, {SL(0)}, v{vA+4}")
        for r in range(4): e(f"v_mov_b32 v{CSA+r}, 0")
    def csread(s):
        g = s >> 1; off = (g % 8)*8192 + (s & 1)*2048
        return tr_frag(e, WT + (s % ND)*4, vA + 4 + g // 8, off, 1024)
    s0, s1 = 16*part, 16*part + 16
    rds = {s: csread(s) for s in range(s0, s0 + ND - 1)}
    for s in range(s0, s1):
        if s + ND - 1 < s1: rds[s + ND - 1] = csread(s + ND - 1)
        e.wait_lds(rds[s])
        for r in range(4): e(f"v_dot2c_f32_bf16 v{CSA+r}, s{sONES}, v{WT + (s % ND)*4 + r}")
    if part == 1:
        e(f"v_add_f32 v{CSA}, v{CSA}, v{CSA+1}\nv_add_f32 v{CSA+2}, v{CSA+2}, v{CSA+3}\nv_add_f32 v{CSA}, v{CSA}, v{CSA+2}")
        e(f"s_lshl_b32 s{sT2}, s{sW}, 8\ns_add_u32 s{sT2}, s{sT2}, {PA_CS3}\nv_lshlrev_b32 v{t}, 2, v{vLANE}\nv_add_u32 v{t}, s{sT2}, v{t}")
        e.lds(f"ds_write_b32 v{t}, v{CSA}")
        e.wait_lds_all()

def p4a_setup(e):
    e(f"s_xor_b32 s{sT1}, s{sI}, 1")
    frag_soff(e, sB4, WS_PQ, 32, f"s_lshl_b32 s{sT3}, s{sW}, 3")
    frag_soff(e, sB5, WS_PQ, 32, f"s_lshl_b32 s{sT3}, s{sW}, 3", blk=sT1)
    frag_soff(e, sB6, WS_H2, 112, f"s_lshl_b32 s{sT3}, s{sW}, 1")
    frag_soff(e, sB7, WS_H2, 112, f"s_lshl_b32 s{sT3}, s{sW}, 1", blk=sT1)
    e(f"s_lshl_b32 s{sT2}, s{sW}, 13\ns_add_u32 s{sB2}, s{sT2}, {WS_KVT}")
def push_kvt_loads(e, q):
    tk = {}
    for h in range(8):
        def fk(h=h):
            if h % 4 == 0: e(f"s_add_u32 s{sQA}, s{sB2}, {h*1024}")
            return e.vm(f"buffer_load_dwordx4 {ar(4*h,4)}, v{vL16}, {srd(S_WS)}, s{sQA} offen offset:{(h & 3)*1024} sc1")
        tk[h] = q.push(fk)
    return tk
def push_p4a_loads(e, q):
    tp = {}
    for h in range(8):
        for i in range(2):
            def fp(h=h, i=i):
                e(f"s_add_u32 s{sQA}, s{sB4+i}, {h*1024}")
                return e.vm(f"buffer_load_dwordx4 {ar(32 + (2*h+i)*4, 4)}, v{vL16}, {srd(S_WS)}, s{sQA} offen sc1")
            tp[(h, i)] = q.push(fp)
    return tp
def flags_check(e, off, nflags, preloaded):
    l = e.newlabel("Lfc"); lo = e.newlabel("Lfco"); t = vT0
    e(f"s_mov_b32 s{sSPIN}, 0x40000\ns_mov_b32 s{sT2}, {off}")
    e(f"v_lshlrev_b32 v{t+1}, 2, v{vLANE}\nv_cmp_gt_u32 vcc, {nflags}, v{vLANE}\ns_and_saveexec_b64 s[{sSAVE}:{sSAVE+1}], vcc")
    if not preloaded:
        e(f"buffer_load_dword v{vPUB}, v{t+1}, {srd(S_WS)}, s{sT2} offen sc1\ns_waitcnt vmcnt(0)")
    e.label(l)
    e(f"v_cmp_ne_u32 vcc, s{sTAG}, v{vPUB}\ns_cbranch_vccz {lo}")
    e(f"s_sub_u32 s{sSPIN}, s{sSPIN}, 1\ns_cmp_eq_u32 s{sSPIN}, 0\ns_cbranch_scc1 {lo}")
    e(f"buffer_load_dword v{vPUB}, v{t+1}, {srd(S_WS)}, s{sT2} offen sc1\ns_waitcnt vmcnt(0)\ns_branch {l}")
    e.label(lo)
    e(f"s_mov_b64 exec, s[{sSAVE}:{sSAVE+1}]")

def stage_b3(e, q):
    ACC = 64; t = vT0
    for c in range(2): e(f"v_mov_b32 v{vA+8+2*c}, v{vAP+c}\nv_add_u32 v{vA+8+2*c+1}, {SL(0)}, v{vAP+c}")
    def waddr(s, ft):
        g = s >> 1
        return vA + 8 + 2*(ft & 1) + g // 8, (g % 8)*8192 + (ft >> 1)*4096 + (s & 1)*2048
    e(f"s_lshl_b32 s{sT2}, s{sU}, 2\ns_add_u32 s{sT2}, s{sT2}, s{sW}\ns_lshl_b32 s{sT2}, s{sT2}, 15\ns_add_u32 s{sB3}, s{sT2}, {WS_X1}")
    e(f"s_lshl_b32 s{sT2}, s{sU}, 7\ns_lshl_b32 s{sT3}, s{sW}, 5\ns_add_u32 s{sT2}, s{sT2}, s{sT3}\ns_lshl_b32 s{sT2}, s{sT2}, 3\ns_add_u32 s{sB4}, s{sT2}, {WS_ST2}")
    e(f"v_lshlrev_b32 v{vA+6}, 17, v{vHH}\nv_lshlrev_b32 v{t+1}, 3, v{vT}\nv_add_u32 v{vA+6}, v{vA+6}, v{t+1}")
    CS4 = 152; CA, CB = 160, 176
    e("s_barrier")
    e(f"v_lshlrev_b32 v{t+2}, 2, v{vLANE}\nv_add_u32 v{t+2}, {PA_CS3}, v{t+2}")
    tc = [e.lds(f"ds_read_b32 v{CS4+k}, v{t+2} offset:{256*k}") for k in range(4)]
    WFS = [192, 208, 224]
    def read_fns(s):
        fns = []
        for ft in range(4):
            a, off = waddr(s, ft); d = WFS[s % 3] + ft*4
            fns.append(lambda a=a, off=off, d=d: e.lds(f"ds_read_b64_tr_b16 {vr(d,2)}, v{a} offset:{off}"))
            fns.append(lambda a=a, off=off, d=d: e.lds(f"ds_read_b64_tr_b16 {vr(d+2,2)}, v{a} offset:{off+1024}"))
        return fns
    e.wait_lds(tc)
    for k in range(4): corr_frags(e, CS4 + k, None, CA + 4*k, None, t)
    rdtok = {}
    for s in range(2):
        for f in read_fns(s): rdtok[s] = f()
    flags_wait(e, e.fb2tok, 16)
    stamp(e, "b3poll")
    STT = 136
    tst = []
    for k in range(8):
        def fn(k=k):
            e(f"s_add_u32 s{sQA}, s{sB4}, {k*16384}")
            return e.vm(f"buffer_load_dwordx2 {vr(STT+2*k,2)}, v{vA+6}, {srd(S_WS)}, s{sQA} offen sc1")
        tst.append(q.push(fn))
    tx = []
    for s in range(32):
        def fn(s=s):
            if s % 4 == 0: e(f"s_add_u32 s{sQA}, s{sB3}, {(s//4)*4096}")
            return e.vm(f"buffer_load_dwordx4 {ar(4*s,4)}, v{vL16}, {srd(S_WS)}, s{sQA} offen offset:{(s&3)*1024} sc1")
        tx.append(q.push(fn))
    q.pop(8 + 6)
    q.wait(tst[-1])
    for k in range(1, 8): e(f"v_pk_add_f32 {vr(STT,2)}, {vr(STT,2)}, {vr(STT+2*k,2)}")
    halfsum(e, STT, t); halfsum(e, STT + 1, t)
    NM, RS = 240, 242
    ln_stats(e, STT, STT + 1, NM, RS, t)
    corr_frags(e, None, NM, None, CB, t)
    for k in range(4):
        mfma(e, ACC + 16*k, CA + 4*k, CB, c="0"); q.pop(1)
    stamp(e, "b3st")
    w4 = {}
    for s in range(32):
        if X("FINE") and s in (4, 8, 12, 16, 24): stamp(e, f"b3s{s}")
        e.wait_lds(rdtok[s]); q.wait(tx[s])
        if s == 15:
            e("s_barrier")
            set_region_addrs(e)
            for g in range(5): w4[g] = push_w4(q, g)
        if s in (4, 8, 12, 16, 20, 24): q.push(lambda s=s: touch16(e, S_W4, 1 + (s - 4)//4))
        if s == 10: q.push(lambda: touch_code(e, "L_b3end"))

        if s == int(X("H2T", 27)) and not wt("h2"):
            def h2d():
                e(f"s_lshl_b32 s{sQA}, s{sU}, 2\ns_add_u32 s{sQA}, s{sQA}, s{sW}\ns_mul_i32 s{sQA}, s{sQA}, 112\ns_lshl_b32 s{sT5}, s{sV}, 3\ns_add_u32 s{sQA}, s{sQA}, s{sT5}")
                e(f"s_lshl_b32 s{sQA}, s{sQA}, 10\ns_add_u32 s{sQA}, s{sQA}, {WS_H2}")
                return sQA
            q.push(lambda: touch_dst(e, h2d, 64))
        fill = read_fns(s + 2) if s + 2 < 32 else []
        mains = [(lambda ft=ft: mfma(e, ACC + 16*ft, WFS[s % 3] + ft*4, 4*s, ba=True)) for ft in range(4)]
        toks = []
        fl = [(lambda f=f: toks.append(f())) for f in fill]
        fl.insert(2, lambda: q.pop(1)); fl.insert(6, lambda: q.pop(1))
        interleave(mains, fl)
        if toks: rdtok[s + 2] = toks[-1]
    e.L.append("L_b3end: ; @soft")
    stamp(e, "b3main")
    e("s_barrier")
    e(f"s_lshl_b32 s{sT2}, s{sU}, 2\ns_add_u32 s{sT2}, s{sT2}, s{sW}\ns_mul_i32 s{sT2}, s{sT2}, 112\ns_lshl_b32 s{sT3}, s{sV}, 3\ns_add_u32 s{sT2}, s{sT2}, s{sT3}")
    e(f"s_lshl_b32 s{sT2}, s{sT2}, 10\ns_add_u32 s{sB3}, s{sT2}, {WS_H2}\ns_add_u32 s{sB4}, s{sB3}, 4096")
    OUT = 128; TMP = 192
    def gelq(ft, half, npop):
        ks = range(4*half, 4*half + 4)
        gelu_pairs(e, [ACC + 16*ft + 2*k for k in ks], RS, [TMP + 2*k for k in ks], [OUT + 8*ft + k for k in ks], q, npop)
    q.wait(w4[4])
    rdf = w4_to_agpr_fns(e)
    e(f"s_mov_b32 s84, s{sB4}")
    tokst = None
    sB3h, = (sB3,)
    p4a_setup(e)
    wo = [push_wo(q, 0)]
    tp = push_p4a_loads(e, q)
    pq_items = q.q[4:]; q.q = q.q[:4]
    NPQ = int(X("EPIPQ", 8))
    q.q += pq_items[:2]
    wo += [push_wo(q, 1)]
    q.q += pq_items[2:NPQ]
    wo += [push_wo(q, 2), push_wo(q, 3)]
    rest = pq_items[NPQ:]
    nit = len(q.q)
    for ft in range(4):
        for f in rdf[10*ft:10*ft + 10]: f()
        for half in range(2):
            k = 2*ft + half
            want = nit * (k + 1) // 7 if k < 7 else nit
            gelq(ft, half, max(0, want - (nit - len(q.q))))
        def st(sc, ft=ft):
            for h in range(2):
                so = sB3 if ft < 2 else 84
                e.vm(f"buffer_store_dwordx4 {vr(OUT+8*ft+4*h,4)}, v{vL16}, {srd(S_WS)}, s{so} offen offset:{((2*ft+h)&3)*1024} {sc}", "store")
        tokst = stores2(e, st, "h2")
    q.drain()
    stamp(e, "gel3")
    e.wait_lds_all()
    e(f"s_mov_b32 s{sQA}, {WS_FA2}\nv_lshlrev_b32 v{vPUB}, 2, v{vLANE}")
    fa2tok = e.vm(f"buffer_load_dword v{vPUB}, v{vPUB}, {srd(S_WS)}, s{sQA} offen sc1")
    q.q = rest
    e.wait_vm(tokst)
    e("s_barrier")
    lq = e.newlabel("Lp3")
    e(f"s_cmp_lg_u32 s{sW}, 0\ns_cbranch_scc1 {lq}")
    e(teamflag(WS_FB3))
    l2 = e.newlabel("Lp3"); l3 = e.newlabel("Lp3")
    e(f"s_cmp_eq_u32 s{sPURE}, 0\ns_cbranch_scc1 {l2}")
    flag_store(e, sT2, "")
    e(f"s_branch {l3}")
    e.label(l2)
    flag_store(e, sT2, "sc1")
    e.label(l3)
    e.label(lq)
    e.vm_kinds.append("store"); e.vm_n += 1
    stamp(e, "p4pub")
    e.wait_vm(fa2tok)
    flags_check(e, WS_FA2, 32, True)
    stamp(e, "fa2")
    return wo, w4, tp

def stage_a2(e, q):
    t = vT0
    e(f"s_lshl_b32 s{sHEAD}, s{sU}, 1\ns_add_u32 s{sHEAD}, s{sHEAD}, s{sV}\ns_sub_u32 s{sHEAD}, s{sHEAD}, 14")
    poll(e, f"s_lshr_b32 s{sT2}, s{sHEAD}, 2\ns_lshl_b32 s{sT2}, s{sT2}, 7\ns_add_u32 s{sT2}, s{sT2}, {WS_FA1}", 32)
    e(f"v_and_b32 v{t+1}, 15, v{vT}\nv_mov_b32 v{t+2}, 16\nv_and_b32 v{t+3}, 16, v{vLANE}")
    e(f"s_and_b32 s{sT2}, s{sHEAD}, 1\ns_lshl_b32 s{sT2}, s{sT2}, 4\nv_cmp_ne_u32 vcc, s{sT2}, v{t+3}")
    e(f"v_cndmask_b32 v{t+4}, v{t+1}, v{t+2}, vcc")
    e(f"v_mul_u32_u24 v{t+3}, 544, v{vHH}\nv_lshlrev_b32 v{t+4}, 5, v{t+4}\nv_add_u32 v{t+4}, v{t+4}, v{t+3}")
    e(f"s_lshr_b32 s{sT2}, s{sHEAD}, 2\ns_lshl_b32 s{sT3}, s{sW}, 6\ns_add_u32 s{sT2}, s{sT2}, s{sT3}\ns_mul_i32 s{sT2}, s{sT2}, 4352")
    e(f"s_and_b32 s{sT3}, s{sHEAD}, 3\ns_mul_i32 s{sT3}, s{sT3}, 1088\ns_add_u32 s{sT2}, s{sT2}, s{sT3}\ns_add_u32 s{sB3}, s{sT2}, {WS_KVP}")
    B = 64; tk = []
    for k in range(8):
        if k: e(f"s_add_u32 s{sB3}, s{sB3}, {8*4352}")
        for qq in range(2):
            tk.append(e.vm(f"buffer_load_dwordx4 {vr(B+8*k+4*qq,4)}, v{t+4}, {srd(S_WS)}, s{sB3} offen offset:{16*qq} sc1"))
    for k in range(1, 8):
        e.wait_vm(tk[2*k+1])
        for p in range(4): e(f"v_pk_add_f32 {vr(B+2*p,2)}, {vr(B+2*p,2)}, {vr(B+8*k+2*p,2)}")
    e(f"s_lshl_b32 s{sT2}, s{sW}, 11\ns_add_u32 s{sT2}, s{sT2}, {PA_ST}\nv_add_u32 v{t}, s{sT2}, v{vL16}") if False else None
    XB = SL(3)
    e(f"s_lshl_b32 s{sT2}, s{sW}, 11\ns_add_u32 s{sT2}, s{sT2}, {XB}\nv_add_u32 v{t}, s{sT2}, v{vL16}")
    e.lds(f"ds_write_b128 v{t}, {vr(B,4)}"); e.lds(f"ds_write_b128 v{t}, {vr(B+4,4)} offset:1024")
    e.wait_lds_all()
    e("s_barrier")
    l = e.newlabel("La2")
    e(f"s_cmp_lg_u32 s{sW}, 0\ns_cbranch_scc1 {l}")
    e(f"v_add_u32 v{t}, {XB}, v{vL16}")
    for k in range(1, 4):
        e(f"ds_read_b128 {vr(B+8*k,4)}, v{t} offset:{2048*k}\nds_read_b128 {vr(B+8*k+4,4)}, v{t} offset:{2048*k+1024}")
    e("s_waitcnt lgkmcnt(0)")
    for k in range(1, 4):
        for p in range(4): e(f"v_pk_add_f32 {vr(B+2*p,2)}, {vr(B+2*p,2)}, {vr(B+8*k+2*p,2)}")
    for p in range(4): e(f"v_cvt_pk_bf16_f32 v{B+32+p}, v{B+2*p}, v{B+2*p+1}")
    e(f"s_lshl_b32 s{sT2}, s{sHEAD}, 10\ns_add_u32 s{sB3}, s{sT2}, {WS_KVT}")
    e(f"buffer_store_dwordx4 {vr(B+32,4)}, v{vL16}, {srd(S_WS)}, s{sB3} offen sc1")
    e("s_waitcnt vmcnt(0)")
    e(f"s_lshl_b32 s{sT2}, s{sHEAD}, 2\ns_add_u32 s{sT2}, s{sT2}, {WS_FA2}")
    flag_store(e, sT2, "sc1")
    e.label(l)
    e("s_barrier")
    for k in range(1, 7): touch16(e, S_W4, k)
    touch_code(e, "L_b3end")
    set_region_addrs(e)
    w4 = {g: push_w4(q, g) for g in range(5)}
    for g in range(4): push_wo(q, g)
    q.drain()
    e.wait_vm_all()
    for f in w4_to_agpr_fns(e): f()
    e.wait_lds_all()
    p4a_setup(e)
    flags_check(e, WS_FA2, 32, False)
    push_p4a_loads(e, q)
    q.pop(int(X("EPIPQ", 8)))
    q.q = []
    e.wait_vm_all()

def stage_p4(e, q, wo, w4in, tp):
    ACCB, ACCA = 64, 128
    WF = 192
    t = vT0
    l = e.newlabel("Lep")
    e(f"s_or_b32 s{sT2}, s2, s{sW}\ns_cmp_lg_u32 s{sT2}, 0\ns_cbranch_scc1 {l}")
    e(f"s_mov_b32 s{sT2}, {WS_EPOCH}")
    flag_store(e, sT2, "sc1")
    e.label(l)
    e.vm_kinds.append("store"); e.vm_n += 1
    pend = q.q; q.q = []
    tk = push_kvt_loads(e, q)
    kv_items = q.q; q.q = []
    def grab(fn):
        r = fn(); it = q.q; q.q = []; return r, it
    w4in = dict(w4in); w4it = {}
    for g in range(5, 10): w4in[g], w4it[g] = grab(lambda g=g: push_w4(q, g))
    order = kv_items[0:4] + pend[0:2] + kv_items[4:8] + pend[2:]
    for g in range(5, 10): order += w4it[g]
    q.q = order
    q.pop(6)
    G = [208, 210]; OMG = [212, 214]
    e(f"v_lshlrev_b32 v{t}, 2, v{vT}\nv_add_u32 v{t}, {PA_G}, v{t}")
    e(f"s_lshl_b32 s{sT2}, s{sI}, 7\nv_add_u32 v{t+1}, s{sT2}, v{t}\ns_xor_b32 s{sT2}, s{sT2}, 128\nv_add_u32 v{t+2}, s{sT2}, v{t}")
    tg = [e.lds(f"ds_read_b32 v{G[0]}, v{t+1}"), e.lds(f"ds_read_b32 v{G[1]}, v{t+2}")]
    e.wait_lds(tg)
    for i in range(2): e(f"v_sub_f32 v{OMG[i]}, 1.0, v{G[i]}")
    OD = [216, 232]
    OF = [[46, 50], [248, 252]]
    SC = [56, 58]
    def wo_reads(h):
        tok = None
        for c in range(2): tok = tr_frag(e, WF + (h&1)*8 + c*4, vA + 2 + c, h*2048, 1024)
        return tok
    ODS = [[64, 80], [96, 112]]
    def omm_fns(h):
        return [(lambda i=i: e(f"v_mfma_f32_32x32x16_bf16 {vr(ODS[h & 1][i],16)}, {ar(4*h,4)}, {ar(32 + (2*h+i)*4,4)}, 0")) for i in range(2)]
    def oval_fns(h):
        par = h & 1; fns = []
        for i in range(2):
            od = ODS[par][i]
            num = od + (8 if h & 1 else 0); den = od + (0 if h & 1 else 8)
            fns.append(lambda i=i, den=den: e(f"v_add_f32 v{SC[i]}, 0x358637bd, v{den}"))
            fns.append(lambda i=i: e(f"v_rcp_f32 v{SC[i]}, v{SC[i]}"))
        for i in range(2):
            fns.append(lambda i=i: e(f"v_mul_f32 v{SC[i]}, v{SC[i]}, v{G[i]}"))
        for i in range(2):
            od = ODS[par][i]; num = od + (8 if h & 1 else 0)
            for p in range(8): fns.append(lambda i=i, p=p, num=num: e(f"v_mul_f32 v{num+p}, v{num+p}, v{SC[i]}"))
            for p in range(4): fns.append(lambda i=i, p=p, num=num: e(f"v_cvt_pk_bf16_f32 v{OF[par][i]+p}, v{num+2*p}, v{num+2*p+1}"))
        return fns
    def amm_fns(h):
        par = h & 1; fns = []
        for i in range(2):
            for c in range(2):
                fns.append(lambda i=i, c=c: mfma(e, ACCA + (2*i + c)*16, WF + par*8 + c*4, OF[par][i], c=("0" if h == 0 else None)))
        return fns
    def wo_read_fns(h):
        fns = []
        for c in range(2):
            d = WF + (h&1)*8 + c*4
            fns.append(lambda d=d, c=c: e.lds(f"ds_read_b64_tr_b16 {vr(d,2)}, v{vA+2+c} offset:{h*2048}"))
            fns.append(lambda d=d, c=c: e.lds(f"ds_read_b64_tr_b16 {vr(d+2,2)}, v{vA+2+c} offset:{h*2048+1024}"))
        return fns
    def need(h):
        q.wait(tp[(h, 1)]); q.wait(tk[h])
    q.wait(wo[0])
    for f in wo_read_fns(0): f()
    need(0)
    for f in omm_fns(0): f()
    need(1)
    for f in omm_fns(1): f()
    for f in oval_fns(0): f()
    for h in range(8):
        e.wait_lds_all()
        if h + 2 < 8: need(h + 2)
        if h + 1 < 8 and (h + 1) % 2 == 0: q.wait(wo[(h + 1) >> 1])
        if h == 6: e.fb3tok = flags_async(e, f"s_lshl_b32 s{sT2}, s{sU}, 7\ns_add_u32 s{sT2}, s{sT2}, {WS_FB3}", 14)
        mains = amm_fns(h) + (omm_fns(h + 2) if h + 2 < 8 else [])
        fill = (wo_read_fns(h + 1) if h + 1 < 8 else []) + (oval_fns(h + 1) if h + 1 < 8 else [])
        npop = 3 if h < 6 else 0
        for k in range(npop): fill.insert(6 + 9*k, lambda: q.pop(1))
        interleave(mains, fill)
    stamp(e, "p4A")
    q.drain()
    w4 = dict(w4in); w4.update({g: push_w4(q, g) for g in range(10, 14)})
    q.drain()
    flags_wait(e, e.fb3tok, 14)
    stamp(e, "p4pollB")
    HD = 16
    th = {}
    def hpush(s):
        for i in range(2):
            def fn(s=s, i=i):
                e(f"s_add_u32 s{sQA}, s{sB6+i}, {(s >> 1)*8192 + (s & 1)*1024}")
                return e.vm(f"buffer_load_dwordx4 {ar(((s % HD)*2 + i)*4, 4)}, v{vL16}, {srd(S_WS)}, s{sQA} offen sc1")
            th[(s, i)] = q.push(fn)
    for s in range(HD): hpush(s)
    q.pop(10)
    WFS = [192, 200, 216]
    def read_fns(s):
        if s < 10 or s >= 28: return []
        g = s >> 1; reg, slot = W4LOC[g]; fns = []
        for c in range(2):
            a, off = region_addr(reg, slot, c); off += (s & 1)*2048; d = WFS[s % 3] + 4*c
            fns.append(lambda a=a, off=off, d=d: e.lds(f"ds_read_b64_tr_b16 {vr(d,2)}, v{a} offset:{off}"))
            fns.append(lambda a=a, off=off, d=d: e.lds(f"ds_read_b64_tr_b16 {vr(d+2,2)}, v{a} offset:{off+1024}"))
        return fns
    rdtok = {}
    for s in range(28):
        if X("FINE") and s in (1, 5, 10, 16, 22): stamp(e, f"p4s{s}")
        if s + 2 >= 10 and (s + 2) % 2 == 0 and (s + 2) < 28: q.wait(w4[(s + 2) >> 1])
        if s in rdtok: e.wait_lds(rdtok[s])
        q.wait(th[(s, 1)])
        mains = []
        for i in range(2):
            for c in range(2):
                z = "0" if s == 0 else None
                if s < 10:
                    mains.append(lambda i=i, c=c, z=z: mfma(e, ACCB + (2*i + c)*16, W4A + (2*s + c)*4, ((s % HD)*2 + i)*4, aa=True, ba=True, c=z))
                else:
                    mains.append(lambda i=i, c=c, z=z: mfma(e, ACCB + (2*i + c)*16, WFS[s % 3] + 4*c, ((s % HD)*2 + i)*4, ba=True, c=z))
        toks = []
        fl = [(lambda f=f: toks.append(f())) for f in read_fns(s + 2)]
        fl.insert(0, lambda: q.pop(1)); fl.insert(min(3, len(fl)), lambda: q.pop(1))
        interleave(mains, fl)
        if toks: rdtok[s + 2] = toks[-1]
        if s + HD < 28: hpush(s + HD)
    stamp(e, "p4B")
    for i in range(2):
        for c in range(2):
            qq = 2*i + c
            for p in range(8):
                e(f"v_pk_fma_f32 {vr(ACCB+16*qq+2*p,2)}, {vr(ACCB+16*qq+2*p,2)}, {vr(OMG[i],2)}, {vr(ACCA+16*qq+2*p,2)} op_sel_hi:[1,0,1]")
    aw = vA + 8
    e(f"s_lshl_b32 s{sT0}, s{sW}, 14\nv_add_u32 v{aw}, s{sT0}, v{vL16}")
    for k in range(1, 4):
        for rg in range(4): e.lds(f"ds_write_b128 v{aw}, {vr(ACCB + 16*k + 4*rg, 4)} offset:{(k-1)*4096 + rg*1024}")
    for k in range(1, 4):
        e(f"s_xor_b32 s{sT0}, s{sW}, {k}\ns_lshl_b32 s{sT0}, s{sT0}, 14\nv_add_u32 v{aw+k}, s{sT0}, v{vL16}")
    e.wait_lds_all()
    e("s_barrier")
    toks = []
    for k in range(1, 4):
        for rg in range(4): toks.append(e.lds(f"ds_read_b128 {vr(ACCB + 16*k + 4*rg, 4)}, v{aw+k} offset:{(k-1)*4096 + rg*1024}"))
    for k in range(1, 4):
        e.wait_lds(toks[4*k-1])
        for p in range(8): e(f"v_pk_add_f32 {vr(ACCB+2*p,2)}, {vr(ACCB+2*p,2)}, {vr(ACCB+16*k+2*p,2)}")
    stamp(e, "p4red")
    for k in range(8):
        e(f"v_lshlrev_b32 v{t}, 16, v{vRES+k}\nv_and_b32 v{t+1}, 0xffff0000, v{vRES+k}")
        e(f"v_pk_fma_f32 {vr(ACCB+2*k,2)}, {vr(t,2)}, {vr(OMG[0],2)}, {vr(ACCB+2*k,2)} op_sel_hi:[1,0,1]")
        e(f"v_cvt_pk_bf16_f32 v{128+k}, v{ACCB+2*k}, v{ACCB+2*k+1}")
    for pr in range(2):
        a, b = 128 + 4*pr, 128 + 4*pr + 2
        e(f"v_permlane32_swap_b32 v{a}, v{b}\nv_permlane32_swap_b32 v{a+1}, v{b+1}")
    e(f"s_lshl_b32 s{sT2}, s{sTB}, 6\ns_lshl_b32 s{sT3}, s{sI}, 5\ns_add_u32 s{sT2}, s{sT2}, s{sT3}")
    e(f"v_add_u32 v{t}, s{sT2}, v{vT}\nv_lshlrev_b32 v{t}, 10, v{t}")
    e(f"s_lshl_b32 s{sT2}, s{sFB}, 7\ns_lshl_b32 s{sT3}, s{sC}, 6\ns_add_u32 s{sT2}, s{sT2}, s{sT3}")
    e(f"v_lshlrev_b32 v{t+1}, 4, v{vHH}\nv_add3_u32 v{t}, v{t}, v{t+1}, s{sT2}")
    for pr in range(2):
        e.vm(f"buffer_store_dwordx4 {vr(128+4*pr,4)}, v{t}, {srd(S_OUT)}, 0 offen offset:{32*pr} {X('OUTSC', '')}", "store")

def build():
    e = E(); q = VQ(e)
    prologue(e, q)
    xrefs, wrefs = {}, {}
    AT = X("AT1", "ab4")
    ALLW = [(S_WQKV, 512*3072), (S_W1, 524288), (S_W2, 524288), (S_W3, 512*3584), (S_WO, 524288), (S_W4, 1792*1024)]
    def fg():
        e(f"s_mov_b32 m0, {PA_GW}")
        return e.vm(f"buffer_load_dwordx4 v{vL16}, {srd(S_GW)}, 0 offen lds")
    def t_ab(): touch_all(e, [(S_AX, 2097152), (S_WQKV, 512*3072), (S_W1, 524288)], 32)
    def t_all():
        if AT == "ab4":
            touch_all(e, [(S_WQKV, 512*3072), (S_AX, 2097152), (S_W1, 524288)], 32)
            touch_all(e, [(S_W2, 524288)], 4)
        elif AT == "ab3": touch_all(e, [(S_WQKV, 512*3072), (S_AX, 2097152), (S_W1, 524288), (S_W2, 524288), (S_W3, 512*3584)], 64)
        else: touch_all(e, ALLW, 64)
    ORD = X("ORD", "g w x T C").replace("_", " ").split()
    for o in ORD:
        if o == "T" and X("ALLTOUCH", "1") != "0": q.push(t_ab if AT == "ab" else t_all)
        if o == "g": q.push(fg)
        if o == "x": xrefs[0] = push_x(q, 0)
        if o == "w": wrefs[0] = push_wab(q, 0)
        if o == "C" and X("CT2", "0") != "0": q.push(lambda: touch_chunks(e, 1, 8))
        if o == "S": q.push(lambda: touch_slow_ab(e))
    q.drain()
    wrefs[1] = push_wab(q, 1); xrefs[1] = push_x(q, 1)
    for c in range(2, 5): wrefs[c] = push_wab(q, c)
    common_addr(e)
    q.pop(4)
    for k in range(4): e(f"s_mov_b32 s{S_W3T+k}, s{S_W3+k}")
    e(f"s_cmp_ge_u32 s{sV}, 14\ns_cselect_b32 s{S_W3+2}, 0, s{S_W3+2}")
    e(f"s_mov_b32 s{sC_LOG2E}, 0x3fb8aa3b\ns_mov_b32 s{sC_LOG2E+1}, 0x3fb8aa3b")
    c0 = -2.0 * 0.7978845608028654 * 1.4426950408889634; c1 = c0 * 0.044715
    e(f"s_mov_b32 s{sC_G1}, {f2u(c1):#x}\ns_mov_b32 s{sC_G1+1}, {f2u(c1):#x}")
    e(f"s_mov_b32 s{sC_EPS6}, 0x358637bd\ns_mov_b32 s{sC_EPS6+1}, 0x358637bd\ns_mov_b32 s{sONES}, 0x3f803f80")
    e(f"v_mov_b32 v{vG0C}, {f2u(c0):#x}\nv_mov_b32 v{vG0C+1}, {f2u(c0):#x}")
    stamp(e, "iss14")
    e("s_waitcnt lgkmcnt(0)")
    e(f"s_mul_i32 s{sTAG}, s{sTAG}, 1664525\ns_add_u32 s{sTAG}, s{sTAG}, 1013904223")
    l = e.newlabel("Lpub0")
    e(f"s_cmp_lg_u32 s{sW}, 0\ns_cbranch_scc1 {l}")
    e(teamflag(WS_PUB))
    e(f"s_and_b32 s{sT3}, s{sTAG}, 0xfffffff0\ns_or_b32 s{sT3}, s{sT3}, s{sXCC}")
    e(f"v_mov_b32 v{vT0}, s{sT3}\nv_mov_b32 v{vT0+1}, 0\nv_cmp_eq_u32 vcc, 0, v{vLANE}\ns_and_saveexec_b64 s[{sSAVE}:{sSAVE+1}], vcc")
    e(f"buffer_store_dword v{vT0}, v{vT0+1}, {srd(S_WS)}, s{sT2} offen sc1")
    e(f"s_mov_b64 exec, s[{sSAVE}:{sSAVE+1}]")
    e.label(l)
    e.vm_kinds.append("store"); e.vm_n += 1
    stamp(e, "pro")
    w2refs, tokh = stage_ab1(e, q, xrefs, wrefs)
    stamp(e, "hst")
    a1_epilogue(e, q, w2refs, tokh)
    stamp(e, "a1epi")
    flags_wait(e, e.fb1tok, 8)
    stamp(e, "b2poll")
    tok = stage_b2(e, q)
    touch_code(e, "L_b3start")
    tok = e.vm_n - 1 if False else tok
    lk = e.newlabel("Lcs")
    e(f"s_cmp_ge_u32 s{sV}, 14\ns_cbranch_scc1 {lk}")
    b3_colsum(e, 0)
    e.label(lk)
    publish(e, teamflag(WS_FB2))
    l = e.newlabel("Lfa1")
    e(f"s_cmp_lg_u32 s{sW}, 0\ns_cbranch_scc1 {l}")
    e(f"s_lshl_b32 s{sT2}, s{sFB}, 7\ns_lshl_b32 s{sT3}, s{sTB}, 2\ns_add_u32 s{sT2}, s{sT2}, s{sT3}\ns_add_u32 s{sT2}, s{sT2}, {WS_FA1}")
    flag_store(e, sT2, "sc1")
    e.label(l)
    e.vm_kinds.append("store"); e.vm_n += 1
    stamp(e, "b2pub")
    touch16(e, S_WO, 1); touch16(e, S_W4, 0)
    la2 = e.newlabel("LA2"); lj = e.newlabel("LJ")
    e(f"s_cmp_ge_u32 s{sV}, 14\ns_cbranch_scc1 {la2}")
    e.L.append("L_b3start: ; @soft")
    e.fb2tok = flags_async(e, f"s_lshl_b32 s{sT2}, s{sU}, 7\ns_add_u32 s{sT2}, s{sT2}, {WS_FB2}", 16)
    b3_colsum(e, 1)
    stamp(e, "b3cs")
    wo, w4, tp = stage_b3(e, q)
    snap = (e.vm_n, list(e.vm_kinds), e.vm_done, e.ld_n, e.ld_done); qsnap = list(q.q); q.q = []
    e(f"s_branch {lj}")
    e.label(la2)
    stage_a2(e, q)
    e.label(lj)
    e.vm_n, e.vm_kinds, e.vm_done, e.ld_n, e.ld_done = snap
    q.q = qsnap
    e.wait_lds_all()
    stage_p4(e, q, wo, w4, tp)
    stamp(e, "end")
    stamp_flush(e)
    e.wait_vm_all()
    e.label("L_end")
    e("s_endpgm")
    e.label("L_codeend")
    body = e.text()
    return kernel_file([dict(name=KN, body=body, grid=256, block=256, lds=LDS_BYTES, vgpr=512, accum=256, sgpr=102)]), e

if __name__ == "__main__":
    txt, e = build()
    open(sys.argv[1], "w").write(txt)
    n = sum(1 for l in txt.split("\n") if l.startswith("    ") and not l.strip().startswith(";"))
    print("instructions:", n, "nops inserted:", e.nops_inserted)
    open(sys.argv[1] + ".stamps", "w").write(" ".join(STAMPS))
```

```python
import sys, os, struct
sys.path.insert(0, os.path.dirname(os.path.abspath(__file__)))
from emit import E
from asmlib import KN, kernel_file
def X(n, d=None):
    v = os.environ.get(n)
    return v if v is not None else d
WS_EPOCH = 0x0
WS_PUB, WS_FB1, WS_FB2, WS_FB3 = 0x1000, 0x2000, 0x3000, 0x4000
WS_FA1 = 0x5000
WS_FA2 = 0x6000
WS_TS = 0x20000
WS_HSH, WS_X1, WS_PQ, WS_ST2, WS_KVT, WS_KVP, WS_H2 = 0x100000, 0x300000, 0x500000, 0x700000, 0x780000, 0x800000, 0x1000000
WS_SIZE = 0x10000000
XM = 4352
def SL(k): return 69632 + 16384 * k
PA = 151552
PA_GW, PA_G, PA_ST, PA_CS3 = PA, PA + 1024, PA + 1536, PA + 5632
LDS_BYTES = 163840
P4B = 36864
S_AX, S_WQKV, S_WO, S_DS, S_W1, S_W2, S_W3, S_W4, S_OUT, S_WS, S_GW = 4, 8, 12, 16, 20, 24, 28, 32, 36, 40, 44
sW, sTB, sFB, sU, sV, sTAG, sPURE, sXCC = 48, 49, 50, 51, 52, 53, 54, 55
sT0, sT1, sT2, sT3, sT4, sT5 = 56, 57, 58, 59, 60, 61
sSAVE = 62
sQA, sQW, sQSTEP, sJ = 64, 65, 66, 67
sB0, sB1, sB2, sB3 = 68, 69, 70, 71
sC_LOG2E, sC_G1, sC_EPS6 = 72, 74, 76
sONES = 78
sB4, sB5, sB6, sB7 = 80, 81, 82, 83
sI, sC, sSPIN, sDELTA, sHEAD = 90, 91, 93, 94, 95
sFLG = 79
S_W3F = S_W3
S_W3T = 44
SIZES = {S_WQKV: 512*3072, S_W1: 524288, S_W2: 524288, S_W3: 512*3584, S_WO: 524288, S_W4: 1792*1024}
vLANE, vT, vHH, vL16, vL128 = 1, 2, 3, 4, 5
vAN, vAP = 6, 8
vW1K, vW3, vWAB, vXO, vXE = 10, 14, 18, 22, 26
vJUNK = 27
vG0C = 28
vRES = 30
vA = 38
vT0 = 54
vPUB = 63
vTCH = 50
vTS = 0
PROFILE = not X("NOPROF")
STAMPS = []
def srd(n): return f"s[{n}:{n+3}]"
def vr(a, n=1): return f"v{a}" if n == 1 else f"v[{a}:{a+n-1}]"
def ar(a, n=1): return f"a{a}" if n == 1 else f"a[{a}:{a+n-1}]"
def f2u(x): return struct.unpack("<I", struct.pack("<f", x))[0]

class Ref:
    def __init__(self): self.tok = None
class VQ:
    def __init__(self, e): self.e = e; self.q = []
    def push(self, fn):
        r = Ref(); self.q.append((fn, r)); return r
    def pop(self, n=1):
        for _ in range(n):
            if not self.q: return
            fn, r = self.q.pop(0); r.tok = fn()
    def force(self, r):
        while r.tok is None: self.pop(1)
    def wait(self, r):
        if isinstance(r, (list, tuple)): r = r[-1]
        self.force(r); self.e.wait_vm(r.tok)
    def drain(self): self.pop(len(self.q))
    def take(self, n=None):
        n = len(self.q) if n is None else min(n, len(self.q))
        items, self.q = self.q[:n], self.q[n:]
        return Stag(self.e, items)
class Stag:
    def __init__(self, e, items): self.e = e; self.items = items; self.n0 = None
    def point(self, k):
        e = self.e
        if not self.items: return
        if k == 0: self.n0 = e.vm_n
        else:
            assert e.vm_n == self.n1, "VMEM issued inside a stagger region"
            del e.vm_kinds[self.n0:]; e.vm_n = self.n0
        l = e.skip_begin(f"s_cmp_lg_u32 s{sW}, {k}")
        for fn, r in self.items: r.tok = fn()
        e.skip_end(l)
        self.n1 = e.vm_n

def stamp(e, name):
    if not PROFILE: return
    idx = len(STAMPS); STAMPS.append(str(name)); assert idx < 62
    e(f"s_memtime s[96:97]\ns_waitcnt lgkmcnt(0)\ns_sub_u32 s96, s96, s98\nv_writelane_b32 v{vTS}, s96, {idx}")
    e.ld_done = e.ld_n
def stamp_flush(e):
    if not PROFILE: return
    e(f"s_memrealtime s[96:97]\ns_waitcnt lgkmcnt(0)\nv_writelane_b32 v{vTS}, s96, 63\nv_writelane_b32 v{vTS}, s100, 62")
    e(f"s_lshl_b32 s{sT0}, s2, 2\ns_add_u32 s{sT0}, s{sT0}, s{sW}\ns_lshl_b32 s{sT0}, s{sT0}, 8\ns_add_u32 s{sT0}, s{sT0}, {WS_TS}")
    e(f"v_lshlrev_b32 v{vT0}, 2, v{vLANE}")
    e.vm(f"buffer_store_dword v{vTS}, v{vT0}, {srd(S_WS)}, s{sT0} offen", "store")

def push_dma_group(q, voff, srdn, setup, n=4):
    e = q.e; refs = []
    for j in range(n):
        def fn(j=j):
            if j == 0: e(setup)
            off = f" offset:{1024*j}" if j else ""
            if X("NOVM"): return -1
            return e.vm(f"buffer_load_dwordx4 v{voff+j}, {srd(srdn)}, s{sQA} offen{off} lds")
        refs.append(q.push(fn))
    return refs
def push_touch(q, srdn, share, k0, n):
    e = q.e
    for k in range(n):
        def fn(k=k):
            e(f"s_mul_i32 s{sQA}, s{sJ}, {share}\ns_lshl_b32 s{sT5}, s{sW}, 13\ns_add_u32 s{sQA}, s{sQA}, s{sT5}")
            if k0 + k: e(f"s_add_u32 s{sQA}, s{sQA}, {(k0+k)*32768}")
            return e.vm(f"buffer_load_dword v{vJUNK}, v{vL128}, {srd(srdn)}, s{sQA} offen")
        q.push(fn)

def touch_blk(e, srdn, blk0):
    e(f"s_lshl_b32 s{sQA}, s{sJ}, 2\ns_add_u32 s{sQA}, s{sQA}, s{sW}" + (f"\ns_add_u32 s{sQA}, s{sQA}, {blk0}" if blk0 else "") + f"\ns_lshl_b32 s{sQA}, s{sQA}, 13")
    return e.vm(f"buffer_load_dword v{vJUNK}, v{vL128}, {srd(srdn)}, s{sQA} offen")
def touch16(e, srdn, k):
    en = X("T16", "wo,w4").split(",")
    nm = {S_W2: "w2", S_W3T: "w3", S_WO: "wo", S_W4: "w4"}[srdn]
    if nm not in en: return None
    e(f"s_lshl_b32 s{sQA}, s{sJ}, 2\ns_add_u32 s{sQA}, s{sQA}, s{sW}\ns_lshl_b32 s{sQA}, s{sQA}, 11" + (f"\ns_add_u32 s{sQA}, s{sQA}, {k*262144}" if k else ""))
    e("s_mov_b64 exec, 0xffff")
    tk = e.vm(f"buffer_load_dword v{vJUNK}, v{vL128}, {srd(srdn)}, s{sQA} offen")
    e("s_mov_b64 exec, -1")
    return tk
def touch_chunk(e, c):
    e(f"s_lshl_b32 s{sQA}, s{sJ}, 2\ns_add_u32 s{sQA}, s{sQA}, s{sW}\ns_cmp_lt_u32 s{sQA}, 96")
    e(f"s_cselect_b32 s84, s{S_WQKV}, s{S_W1}\ns_cselect_b32 s85, s{S_WQKV+1}, s{S_W1+1}\ns_cselect_b32 s86, s{S_WQKV+2}, s{S_W1+2}\ns_mov_b32 s87, 0x20000")
    e(f"s_mov_b32 s{sT5}, {c*32768 - 96*1024}\ns_cselect_b32 s{sT5}, {c*98304}, s{sT5}\ns_lshl_b32 s{sQA}, s{sQA}, 10\ns_add_u32 s{sQA}, s{sQA}, s{sT5}")
    e("s_mov_b64 exec, 0xff")
    tk = e.vm(f"buffer_load_dword v{vJUNK}, v{vL128}, s[84:87], s{sQA} offen")
    e("s_mov_b64 exec, -1")
    return tk
def set_exec(n):
    if n <= 32: return f"s_mov_b64 exec, {hex((1 << n) - 1)}" if n < 32 else "s_mov_b32 exec_lo, -1\ns_mov_b32 exec_hi, 0"
    return f"s_mov_b32 exec_hi, {hex((1 << (n - 32)) - 1)}"
def touch_chunks(e, c0, nch):
    e(f"s_lshl_b32 s{sQA}, s{sJ}, 2\ns_add_u32 s{sQA}, s{sQA}, s{sW}\ns_cmp_lt_u32 s{sQA}, 96")
    e(f"s_cselect_b32 s84, s{S_WQKV}, s{S_W1}\ns_cselect_b32 s85, s{S_WQKV+1}, s{S_W1+1}\ns_cselect_b32 s86, s{S_WQKV+2}, s{S_W1+2}\ns_mov_b32 s87, 0x20000")
    e(f"s_mov_b32 s{sT5}, 32768\ns_cselect_b32 s{sT5}, 98304, s{sT5}")
    e(f"v_lshrrev_b32 v{vTCH}, 3, v{vLANE}\nv_mul_lo_u32 v{vTCH}, v{vTCH}, s{sT5}\nv_and_b32 v{vTCH+1}, 7, v{vLANE}\nv_lshlrev_b32 v{vTCH+1}, 7, v{vTCH+1}\nv_add_u32 v{vTCH}, v{vTCH}, v{vTCH+1}")
    e(f"s_mul_i32 s{sT5}, s{sT5}, {c0}\ns_cmp_lt_u32 s{sQA}, 96\ns_cselect_b32 s83, 0, 96\ns_sub_u32 s{sQA}, s{sQA}, s83\ns_lshl_b32 s{sQA}, s{sQA}, 10\ns_add_u32 s{sQA}, s{sQA}, s{sT5}")
    if nch < 8: e(set_exec(8*nch))
    tk = e.vm(f"buffer_load_dword v{vJUNK}, v{vTCH}, s[84:87], s{sQA} offen")
    if nch < 8: e("s_mov_b64 exec, -1")
    return tk
def touch_slow_ab(e, ch=3):
    e(f"s_lshl_b32 s{sQA}, s{sJ}, 2\ns_add_u32 s{sQA}, s{sQA}, s{sW}\ns_cmp_lt_u32 s{sQA}, 96")
    e(f"s_cselect_b32 s84, s{S_WQKV}, s{S_W1}\ns_cselect_b32 s85, s{S_WQKV+1}, s{S_W1+1}\ns_cselect_b32 s86, s{S_WQKV+2}, s{S_W1+2}\ns_mov_b32 s87, 0x20000")
    e(f"s_cselect_b32 s{sT5}, 0, 96\ns_sub_u32 s{sQA}, s{sQA}, s{sT5}\ns_lshl_b32 s{sQA}, s{sQA}, 14\ns_add_u32 s{sQA}, s{sQA}, {ch*128}")
    e(f"v_lshlrev_b32 v{vTCH}, 10, v{vLANE}")
    e("s_mov_b64 exec, 0xffff")
    tk = e.vm(f"buffer_load_dword v{vJUNK}, v{vTCH}, s[84:87], s{sQA} offen")
    e("s_mov_b64 exec, -1")
    return tk
def touch_slow(e, srdn, nrows, ch=3):
    per = nrows // 128
    e(f"s_lshl_b32 s{sQA}, s{sJ}, 2\ns_add_u32 s{sQA}, s{sQA}, s{sW}\ns_mul_i32 s{sQA}, s{sQA}, {per*1024}\ns_add_u32 s{sQA}, s{sQA}, {ch*128}")
    e(f"v_lshlrev_b32 v{vTCH}, 10, v{vLANE}")
    e(set_exec(per))
    tk = e.vm(f"buffer_load_dword v{vJUNK}, v{vTCH}, {srd(srdn)}, s{sQA} offen")
    e("s_mov_b64 exec, -1")
    return tk
def touch_all(e, segs, lanes):
    blk = lanes * 128
    e(f"s_lshl_b32 s{sQA}, s2, 2\ns_add_u32 s{sQA}, s{sQA}, s{sW}")
    sr0 = segs[0][0]
    e(f"s_mov_b32 s84, s{sr0}\ns_mov_b32 s85, s{sr0+1}\ns_mov_b32 s86, {segs[0][1]}\ns_mov_b32 s87, 0x20000\ns_mov_b32 s{sT5}, 0")
    lo = 0
    for k in range(1, len(segs)):
        assert segs[k-1][1] % blk == 0
        lo += segs[k-1][1] // blk
        sr = segs[k][0]
        e(f"s_cmp_ge_u32 s{sQA}, {lo}\ns_cselect_b32 s84, s{sr}, s84\ns_cselect_b32 s85, s{sr+1}, s85\ns_cselect_b32 s86, {segs[k][1]}, s86\ns_cselect_b32 s{sT5}, {lo}, s{sT5}")
    assert lo + -(-segs[-1][1] // blk) <= 1024, lo
    e(f"s_sub_u32 s{sQA}, s{sQA}, s{sT5}\ns_mul_i32 s{sQA}, s{sQA}, {blk}")
    if lanes < 64: e(set_exec(lanes))
    tk = e.vm(f"buffer_load_dword v{vJUNK}, v{vL128}, s[84:87], s{sQA} offen")
    if lanes < 64: e("s_mov_b64 exec, -1")
    return tk
def touch_code(e, label):
    if X("CODETOUCH", "1") == "0": return None
    e(f"s_lshl_b32 s{sT5}, s{sW}, 13\ns_add_u32 s{sT5}, s{sT5}, {label}-L_pc\ns_min_u32 s{sT5}, s{sT5}, L_codeend-L_pc-8192")
    e(f"s_add_u32 s84, s88, s{sT5}\ns_addc_u32 s85, s89, 0")
    return e.vm(f"global_load_dword v{vJUNK}, v{vL128}, s[84:85]")
def touch_dst(e, setup_fn, nlanes):
    if X("DSTTOUCH", "1") == "0": return None
    reg = setup_fn()
    if nlanes < 64: e(f"s_mov_b64 exec, {hex((1 << nlanes) - 1)}")
    tk = e.vm(f"buffer_load_dword v{vJUNK}, v{vL128}, {srd(S_WS)}, s{reg} offen")
    if nlanes < 64: e("s_mov_b64 exec, -1")
    return tk
def touch_round0(e):
    e(f"s_lshl_b32 s{sQA}, s{sJ}, 2\ns_add_u32 s{sQA}, s{sQA}, s{sW}\ns_cmp_lt_u32 s{sQA}, 64")
    for k in range(4): e(f"s_cselect_b32 s{S_DS+k}, s{S_WO+k}, s{S_W4+k}")
    e(f"s_cselect_b32 s{sT5}, 0, 64\ns_sub_u32 s{sQA}, s{sQA}, s{sT5}\ns_lshl_b32 s{sQA}, s{sQA}, 13")
    return e.vm(f"buffer_load_dword v{vJUNK}, v{vL128}, {srd(S_DS)}, s{sQA} offen")
def set_voffW(e, dst, ld):
    t = vT0
    e(f"v_lshrrev_b32 v{t}, 3, v{vLANE}\nv_mul_u32_u24 v{t}, {ld}, v{t}")
    e(f"v_lshrrev_b32 v{t+1}, 2, v{vLANE}\nv_lshrrev_b32 v{t+2}, 4, v{vLANE}\nv_xor_b32 v{t+1}, v{t+1}, v{t+2}\nv_and_b32 v{t+1}, 1, v{t+1}")
    e(f"v_lshlrev_b32 v{t+1}, 6, v{t+1}\nv_and_b32 v{t+2}, 3, v{vLANE}\nv_lshlrev_b32 v{t+2}, 4, v{t+2}")
    e(f"v_add3_u32 v{dst}, v{t}, v{t+1}, v{t+2}")
    for j in range(1, 4): e(f"v_add_u32 v{dst+j}, {j*(8*ld-1024)}, v{dst}")

def flag_store(e, soff, sc):
    e(f"v_mov_b32 v{vT0}, s{sTAG}\nv_mov_b32 v{vT0+1}, 0")
    e(f"v_cmp_eq_u32 vcc, 0, v{vLANE}\ns_and_saveexec_b64 s[{sSAVE}:{sSAVE+1}], vcc")
    e(f"buffer_store_dword v{vT0}, v{vT0+1}, {srd(S_WS)}, s{soff} offen {sc}")
    e(f"s_mov_b64 exec, s[{sSAVE}:{sSAVE+1}]")
def publish(e, setup, always_slow=False, upto=None):
    if upto is None: e.wait_vm_all()
    else: e.wait_vm(upto)
    e("s_barrier")
    l = e.newlabel("Lpub")
    e(f"s_cmp_lg_u32 s{sW}, 0\ns_cbranch_scc1 {l}")
    e(setup)
    if always_slow: flag_store(e, sT2, "sc1")
    else:
        l2 = e.newlabel("Lpub"); l3 = e.newlabel("Lpub")
        e(f"s_cmp_eq_u32 s{sPURE}, 0\ns_cbranch_scc1 {l2}")
        flag_store(e, sT2, "")
        e(f"s_branch {l3}")
        e.label(l2)
        flag_store(e, sT2, "sc1")
        e.label(l3)
    e.label(l)
    e.vm_kinds.append("store"); e.vm_n += 1
def poll(e, setup, nflags):
    l = e.newlabel("Lpoll"); lx = e.newlabel("Lpollx"); ls = e.newlabel("Lpolls")
    e(f"s_cmp_lg_u32 s{sW}, 0\ns_cbranch_scc1 {ls}")
    e(setup)
    e(f"v_lshlrev_b32 v{vT0+1}, 2, v{vLANE}")
    e(f"v_cmp_gt_u32 vcc, {nflags}, v{vLANE}\ns_and_saveexec_b64 s[{sSAVE}:{sSAVE+1}], vcc")
    e(f"s_mov_b32 s{sSPIN}, 0x40000")
    e.label(l)
    e(f"s_sub_u32 s{sSPIN}, s{sSPIN}, 1\ns_cmp_eq_u32 s{sSPIN}, 0\ns_cbranch_scc1 {lx}")
    e(f"buffer_load_dword v{vT0}, v{vT0+1}, {srd(S_WS)}, s{sT2} offen sc1")
    e("s_waitcnt vmcnt(0)")
    e(f"v_cmp_ne_u32 vcc, s{sTAG}, v{vT0}")
    e(f"s_cbranch_vccnz {l}")
    e.label(lx)
    e(f"s_mov_b64 exec, s[{sSAVE}:{sSAVE+1}]")
    e.label(ls)
    e("s_barrier")
def wt(name): return name in X("WT", "pq,h2").split(",")
def flags_async(e, setup, nflags):
    e(setup)
    e(f"s_mov_b32 s{sFLG}, s{sT2}")
    e(f"v_min_u32 v{vPUB}, {nflags-1}, v{vLANE}\nv_lshlrev_b32 v{vPUB}, 2, v{vPUB}")
    return e.vm(f"buffer_load_dword v{vPUB}, v{vPUB}, {srd(S_WS)}, s{sFLG} offen sc1")
def flags_wait(e, tok, nflags):
    e.wait_vm(tok)
    l = e.newlabel("Lfw"); lo = e.newlabel("Lfwo"); t = vT0
    e(f"s_mov_b32 s{sSPIN}, 0x40000")
    e.label(l)
    e(f"v_cmp_ne_u32 vcc, s{sTAG}, v{vPUB}\ns_cbranch_vccz {lo}")
    e(f"s_sub_u32 s{sSPIN}, s{sSPIN}, 1\ns_cmp_eq_u32 s{sSPIN}, 0\ns_cbranch_scc1 {lo}")
    e(f"v_min_u32 v{t+1}, {nflags-1}, v{vLANE}\nv_lshlrev_b32 v{t+1}, 2, v{t+1}")
    e(f"buffer_load_dword v{vPUB}, v{t+1}, {srd(S_WS)}, s{sFLG} offen sc1\ns_waitcnt vmcnt(0)\ns_branch {l}")
    e.label(lo)
def stores2(e, fn, name=None):
    if name and wt(name):
        fn("sc1"); return e.vm_n - 1
    l2 = e.newlabel("Lst"); l3 = e.newlabel("Lst")
    e(f"s_cmp_eq_u32 s{sPURE}, 0\ns_cbranch_scc1 {l2}")
    n0 = e.vm_n; fn(""); n1 = e.vm_n
    e(f"s_branch {l3}")
    e.label(l2)
    del e.vm_kinds[n0:]; e.vm_n = n0
    fn("sc1"); assert e.vm_n == n1
    e.label(l3)
    return n1 - 1
def tr_frag(e, dst, addr, off, second, acc=False):
    r = ar if acc else vr
    e.lds(f"ds_read_b64_tr_b16 {r(dst,2)}, v{addr} offset:{off}")
    return e.lds(f"ds_read_b64_tr_b16 {r(dst+2,2)}, v{addr} offset:{off+second}")
def mfma(e, d, a, b, c=None, aa=False, ba=False):
    A = ar(a, 4) if aa else vr(a, 4); B = ar(b, 4) if ba else vr(b, 4)
    C = vr(d, 16) if c is None else c
    e(f"v_mfma_f32_32x32x16_bf16 {vr(d,16)}, {A}, {B}, {C}")
def interleave(mains, fillers):
    n = len(mains); m = len(fillers); k = 0
    for i, f in enumerate(mains):
        f()
        upto = (m * (i + 1) + n - 1) // n if i + 1 < n else m
        while k < upto: fillers[k](); k += 1
def gelu_pairs(e, accs, rstd, tmp, outs, q=None, npop=0):
    n = len(accs); P = lambda r: vr(r, 2)
    steps = [
        lambda k: f"v_pk_mul_f32 {P(accs[k])}, {P(accs[k])}, {P(rstd)} op_sel_hi:[1,0]",
        lambda k: f"v_pk_mul_f32 {P(tmp[k])}, {P(accs[k])}, {P(accs[k])}",
        lambda k: f"v_pk_fma_f32 {P(tmp[k])}, {P(tmp[k])}, s[{sC_G1}:{sC_G1+1}], {P(vG0C)}",
        lambda k: f"v_pk_mul_f32 {P(tmp[k])}, {P(tmp[k])}, {P(accs[k])}",
        lambda k: f"v_exp_f32 v{tmp[k]}, v{tmp[k]}\nv_exp_f32 v{tmp[k]+1}, v{tmp[k]+1}",
        lambda k: f"v_pk_add_f32 {P(tmp[k])}, {P(tmp[k])}, 1.0 op_sel_hi:[1,0]",
        lambda k: f"v_rcp_f32 v{tmp[k]}, v{tmp[k]}\nv_rcp_f32 v{tmp[k]+1}, v{tmp[k]+1}",
        lambda k: f"v_pk_mul_f32 {P(accs[k])}, {P(accs[k])}, {P(tmp[k])}",
        lambda k: f"v_cvt_pk_bf16_f32 v{outs[k]}, v{accs[k]}, v{accs[k]+1}"]
    left = npop
    for si, st in enumerate(steps):
        for k in range(n): e(st(k))
        if q is not None and left > 0:
            m = -(-left // (len(steps) - si)); q.pop(m); left -= m
def halfsum(e, r, t):
    e(f"v_mov_b32 v{t}, v{r}\nv_permlane32_swap_b32 v{r}, v{t}\nv_add_f32 v{r}, v{r}, v{t}")
def corr_frags(e, cs, negmean, A, B, t):
    if cs is not None:
        e(f"v_cvt_pk_bf16_f32 v{t}, v{cs}, v{cs}\nv_and_b32 v{t}, 0xffff0000, v{t}\nv_sub_f32 v{t}, v{cs}, v{t}")
        e(f"v_cvt_pk_bf16_f32 v{A}, v{cs}, v{t}\nv_mov_b32 v{A+1}, v{A}\nv_mov_b32 v{A+2}, 0\nv_mov_b32 v{A+3}, 0")
    if negmean is not None:
        e(f"v_cvt_pk_bf16_f32 v{B}, v{negmean}, v{negmean}\nv_and_b32 v{t}, 0xffff0000, v{B}\nv_sub_f32 v{t}, v{negmean}, v{t}")
        e(f"v_cvt_pk_bf16_f32 v{B+1}, v{t}, v{t}\nv_mov_b32 v{B+2}, 0\nv_mov_b32 v{B+3}, 0")
def ln_stats(e, S, Q, negmean, rstd, t):
    e(f"v_mul_f32 v{negmean}, 0xbb000000, v{S}\nv_mul_f32 v{t}, 0x3b000000, v{Q}")
    e(f"v_fma_f32 v{t}, -v{negmean}, v{negmean}, v{t}\nv_max_f32 v{t}, 0, v{t}\nv_add_f32 v{t}, 0x3727c5ac, v{t}\nv_rsq_f32 v{rstd}, v{t}")
def frag_soff(e, dst, base, nks, ks_lines, blk=None):
    blk = sI if blk is None else blk
    e(ks_lines)
    e(f"s_lshl_b32 s{sT2}, s{sTB}, 1\ns_add_u32 s{sT2}, s{sT2}, s{blk}\ns_mul_i32 s{sT2}, s{sT2}, {nks}\ns_add_u32 s{sT2}, s{sT2}, s{sT3}")
    e(f"s_lshl_b32 s{sT2}, s{sT2}, 10\ns_add_u32 s{dst}, s{sT2}, {base}")
def own_soff_q(e, base, nks):
    e(f"s_lshl_b32 s{sQA}, s{sTB}, 1\ns_add_u32 s{sQA}, s{sQA}, s{sI}\ns_mul_i32 s{sQA}, s{sQA}, {nks}\ns_lshl_b32 s{sT5}, s{sFB}, 2\ns_add_u32 s{sQA}, s{sQA}, s{sT5}")
    e(f"s_lshl_b32 s{sT5}, s{sC}, 1\ns_add_u32 s{sQA}, s{sQA}, s{sT5}\ns_lshl_b32 s{sQA}, s{sQA}, 10\ns_add_u32 s{sQA}, s{sQA}, {base}")
    return sQA
OWNKS = f"s_lshl_b32 s{sT3}, s{sFB}, 2\ns_lshl_b32 s{sT4}, s{sC}, 1\ns_add_u32 s{sT3}, s{sT3}, s{sT4}"
teamflag = lambda base: f"s_lshl_b32 s{sT2}, s{sU}, 7\ns_lshl_b32 s{sT3}, s{sV}, 2\ns_add_u32 s{sT2}, s{sT2}, s{sT3}\ns_add_u32 s{sT2}, s{sT2}, {base}"

def prologue(e, q):
    e(f"s_cmp_ge_u32 s2, 256\ns_cbranch_scc1 L_end")
    if PROFILE: e("s_memrealtime s[100:101]\ns_memtime s[98:99]")
    e(f"s_getpc_b64 s[{sT0}:{sT0+1}]")
    e.label("L_pc")
    e(f"s_mov_b32 s88, s{sT0}\ns_mov_b32 s89, s{sT1}")
    e("s_load_dwordx16 s[64:79], s[0:1], 0\ns_load_dwordx8 s[80:87], s[0:1], 64")
    for k in range(2):
        e(f"v_lshlrev_b32 v30, 7, v0" + (f"\nv_add_u32 v30, {0x8000*k}, v30" if k else "") + f"\nv_min_u32 v30, L_codeend-L_pc-4, v30\nv_mov_b32 v31, s{sT1}")
        e(f"v_add_co_u32 v30, vcc, s{sT0}, v30\nv_addc_co_u32 v31, vcc, 0, v31, vcc")
        e.vm(f"global_load_dword v{vJUNK}, v[30:31], off")
    e(f"v_and_b32 v{vLANE}, 63, v0\nv_lshrrev_b32 v{vT0}, 6, v0\nv_readfirstlane_b32 s{sW}, v{vT0}")
    e(f"v_and_b32 v{vT}, 31, v{vLANE}\nv_lshrrev_b32 v{vHH}, 5, v{vLANE}\nv_lshlrev_b32 v{vL16}, 4, v{vLANE}\nv_lshlrev_b32 v{vL128}, 7, v{vLANE}")
    e(f"s_and_b32 s{sT2}, s2, 7\ns_lshr_b32 s{sT3}, s2, 3")
    e(f"s_lshr_b32 s{sT4}, s{sT3}, 3\ns_lshl_b32 s{sTB}, s{sT2}, 2\ns_add_u32 s{sTB}, s{sTB}, s{sT4}")
    e(f"s_and_b32 s{sFB}, s{sT3}, 7\ns_lshr_b32 s{sU}, s{sTB}, 1\ns_and_b32 s{sV}, s{sT3}, 15")
    e(f"s_lshr_b32 s{sI}, s{sW}, 1\ns_and_b32 s{sC}, s{sW}, 1\ns_mov_b32 s92, s{sT3}")
    e(f"s_getreg_b32 s{sXCC}, hwreg(HW_REG_XCC_ID, 0, 4)")
    e(f"s_lshr_b32 s{sT2}, s{sFB}, 1\ns_lshr_b32 s{sT3}, s{sT2}, 1\ns_add_u32 s{sT3}, s{sT3}, 1")
    e(f"s_sub_u32 s{sT4}, 0, s{sT3}\ns_bitcmp1_b32 s{sT2}, 0\ns_cselect_b32 s{sDELTA}, s{sT4}, s{sT3}")
    t = vT0
    e(f"s_lshl_b32 s{sT4}, s{sTB}, 6\ns_sub_u32 s{sT4}, s{sT4}, 2")
    e(f"v_and_b32 v{t}, 3, v{vLANE}\nv_lshrrev_b32 v{t+1}, 4, v{vLANE}\nv_xor_b32 v{t}, v{t}, v{t+1}\nv_and_b32 v{t}, 3, v{t}\nv_lshlrev_b32 v{t}, 4, v{t}")
    e(f"v_lshrrev_b32 v{t+1}, 2, v{vLANE}\nv_add_u32 v{t+1}, s{sT4}, v{t+1}")
    for j in range(5):
        e(f"v_add_u32 v{t+2}, {16*j}, v{t+1}\nv_max_i32 v{t+2}, 0, v{t+2}\nv_min_i32 v{t+2}, 2047, v{t+2}")
        e(f"v_lshlrev_b32 v{t+2}, 10, v{t+2}\nv_add_u32 v{t+2}, v{t+2}, v{t}")
        if j == 0: e(f"v_mov_b32 v{vXO}, v{t+2}")
        elif j < 4: e(f"v_subrev_u32 v{vXO+j}, {1024*j}, v{t+2}")
        else: e(f"v_mov_b32 v{vXE}, v{t+2}")
    set_voffW(e, vW1K, 1024)
    set_voffW(e, vWAB, 3072)
    e(f"s_cmp_eq_u32 s{sW}, 3\ns_cselect_b64 vcc, -1, 0")
    for j in range(4): e(f"v_cndmask_b32 v{vWAB+j}, v{vWAB+j}, v{vW1K+j}, vcc")
    e("s_waitcnt lgkmcnt(0)")
    for dst, src, size in [(S_AX, 64, 2097152), (S_WQKV, 66, 512*3072), (S_W1, 72, 524288), (S_WS, 86, WS_SIZE), (S_GW, 80, 1024), (S_W2, 74, 524288),
                           (S_WO, 68, 524288), (S_W3, 76, 512*3584), (S_W4, 78, 1792*1024), (S_OUT, 82, 2097152)]:
        e(f"s_mov_b32 s{dst}, s{src}\ns_mov_b32 s{dst+1}, s{src+1}\ns_mov_b32 s{dst+2}, {size}\ns_mov_b32 s{dst+3}, 0x20000")
    if PROFILE: e(f"v_mov_b32 v{vTS}, 0")
    stamp(e, "karg")
    e(f"s_load_dword s{sTAG}, s[{S_WS}:{S_WS+1}], 0")
    e(f"s_mov_b32 s{sJ}, s92")
    e(f"s_cmp_eq_u32 s{sW}, 3")
    for k in range(4): e(f"s_cselect_b32 s{S_DS+k}, s{S_W1+k}, s{S_WQKV+k}")
    e(f"s_lshl_b32 s{sT2}, s{sW}, 10\ns_cmp_eq_u32 s{sW}, 3\ns_cselect_b32 s{sT2}, 0, s{sT2}\ns_mov_b32 s{sQSTEP}, {32*3072}\ns_cselect_b32 s{sQSTEP}, {32*1024}, s{sQSTEP}")
    e(f"s_lshl_b32 s{sT3}, s{sFB}, 7\ns_add_u32 s{sQW}, s{sT2}, s{sT3}")
    e(f"s_lshl_b32 s{sB0}, s{sW}, 12")
    e(f"s_mul_i32 s{sB1}, s{sW}, {XM}\ns_lshl_b32 s{sB2}, s{sW}, 6")

def push_x(q, qq):
    e = q.e
    refs = push_dma_group(q, vXO, S_AX, f"s_add_u32 m0, s{sB1}, {qq*4*XM}\ns_add_u32 s{sQA}, s{sB2}, {256*qq}")
    def fn():
        e(f"s_add_u32 m0, s{sB1}, {qq*4*XM + 4096}")
        e(f"s_mov_b64 exec, 0xffff")
        tk = -1 if X("NOVM") else e.vm(f"buffer_load_dwordx4 v{vXE}, {srd(S_AX)}, s{sQA} offen lds")
        e(f"s_mov_b64 exec, -1")
        return tk
    refs.append(q.push(fn))
    return refs
def push_wab(q, c):
    return push_dma_group(q, vWAB, S_DS, f"s_add_u32 m0, s{sB0}, {SL(c % 5)}\ns_mov_b32 s{sQA}, s{sQW}\ns_add_u32 s{sQW}, s{sQW}, s{sQSTEP}")
def push_w2(q, k):
    return push_dma_group(q, vW1K, S_W2, f"s_add_u32 m0, s{sB0}, {SL(1+k)}\ns_lshl_b32 s{sQA}, s{sW}, 15\ns_lshl_b32 s{sT5}, s{sFB}, 7\ns_add_u32 s{sQA}, s{sQA}, s{sT5}\ns_add_u32 s{sQA}, s{sQA}, {k*128*1024}")
def w3_lds(g): return g * 8192 if g < 8 else SL(0) + (g - 8) * 8192
def push_w3(q, gl, ps=(0, 1)):
    refs = []
    for p in ps:
        refs += push_dma_group(q, vW3, S_W3, f"s_lshl_b32 s{sQA}, s{sW}, 13\ns_add_u32 m0, s{sQA}, {w3_lds(4*gl) + p*4096}\n"
                               f"s_mul_i32 s{sQA}, s{sW}, {32*3584}\ns_lshl_b32 s{sT5}, s{sV}, 8\ns_add_u32 s{sQA}, s{sQA}, s{sT5}\ns_add_u32 s{sQA}, s{sQA}, {4*gl*32*3584 + 128*p}")
    return refs
def region_m0(reg, slot):
    if reg == "A": return f"s_lshl_b32 s{sQA}, s{sW}, 14\ns_add_u32 m0, s{sQA}, {slot*4096}"
    if reg == "B": return f"s_lshl_b32 s{sQA}, s{sW}, 14\ns_add_u32 m0, s{sQA}, {SL(0) + slot*4096}"
    return f"s_lshl_b32 s{sQA}, s{sW}, 12\ns_add_u32 m0, s{sQA}, {SL(4)}"
def push_wp(q, srdn, rows_per_wave, g, reg, slot):
    return push_dma_group(q, vW1K, srdn, region_m0(reg, slot) + "\n" +
                          f"s_mul_i32 s{sQA}, s{sW}, {rows_per_wave*1024}\ns_lshl_b32 s{sT5}, s{sFB}, 7\ns_add_u32 s{sQA}, s{sQA}, s{sT5}\ns_add_u32 s{sQA}, s{sQA}, {g*32*1024}")
W4LOC = {g: (("A", g) if g < 4 else ("C", 0)) for g in range(5)}
W4LOC.update({5 + g: (("A", g) if g < 4 else ("C", 0)) for g in range(5)})
W4LOC.update({10 + g: ("B", g) for g in range(4)})
def push_w4(q, g):
    reg, slot = W4LOC[g]
    return push_dma_group(q, vW1K, S_W4, region_m0(reg, slot) + "\n" +
                          f"s_lshl_b32 s{sQA}, s{sW}, 15\ns_lshl_b32 s{sT5}, s{sFB}, 7\ns_add_u32 s{sQA}, s{sQA}, s{sT5}\ns_add_u32 s{sQA}, s{sQA}, {g*128*1024}")
def push_wo(q, g): return push_wp(q, S_WO, 128, g, "B", g)
def set_region_addrs(e):
    sel_addrP(e, vA + 4)
    e(f"s_lshl_b32 s{sT2}, s{sW}, 14\nv_add_u32 v{vA}, s{sT2}, v{vA+4}\nv_add_u32 v{vA+1}, s{sT2}, v{vA+5}")
    e(f"v_add_u32 v{vA+2}, {SL(0)}, v{vA}\nv_add_u32 v{vA+3}, {SL(0)}, v{vA+1}")
    e(f"s_lshl_b32 s{sT2}, s{sW}, 12\ns_add_u32 s{sT2}, s{sT2}, {SL(4)}\nv_add_u32 v{vA+4}, s{sT2}, v{vA+4}\nv_add_u32 v{vA+5}, s{sT2}, v{vA+5}")
def region_addr(reg, slot, c):
    return vA + {"A": 0, "B": 2, "C": 4}[reg] + c, (slot*4096 if reg != "C" else 0)
W4A = 128
def w4_to_agpr_fns(e):
    fns = []
    for s in range(10):
        reg, slot = W4LOC[s >> 1]
        for c in range(2):
            a, off = region_addr(reg, slot, c); off += (s & 1)*2048; d = W4A + (2*s + c)*4
            fns.append(lambda a=a, off=off, d=d: e.lds(f"ds_read_b64_tr_b16 {ar(d,2)}, v{a} offset:{off}"))
            fns.append(lambda a=a, off=off, d=d: e.lds(f"ds_read_b64_tr_b16 {ar(d+2,2)}, v{a} offset:{off+1024}"))
    return fns

def common_addr(e):
    t = vT0
    e(f"v_and_b32 v{t}, 15, v{vLANE}\nv_lshrrev_b32 v{t}, 2, v{t}")
    e(f"v_and_b32 v{t+1}, 3, v{vLANE}\nv_lshlrev_b32 v{t+1}, 3, v{t+1}")
    e(f"v_lshrrev_b32 v{t+2}, 4, v{vLANE}\nv_and_b32 v{t+2}, 1, v{t+2}\nv_lshlrev_b32 v{t+2}, 5, v{t+2}")
    e(f"v_add_u32 v{t+1}, v{t+1}, v{t+2}\nv_lshrrev_b32 v{t+2}, 1, v{t}")
    e(f"v_lshlrev_b32 v{t+3}, 7, v{t}\nv_add_u32 v{t+1}, v{t+1}, v{t+3}")
    for c in range(2):
        e(f"v_xor_b32 v{t+3}, {c}, v{t+2}\nv_lshlrev_b32 v{t+3}, 6, v{t+3}\nv_add_u32 v{t+3}, v{t+3}, v{t+1}")
        e(f"v_lshlrev_b32 v{t+4}, 10, v{vHH}\nv_add_u32 v{vAN+c}, v{t+3}, v{t+4}")
        e(f"v_lshlrev_b32 v{t+4}, 9, v{vHH}\nv_add_u32 v{vAP+c}, v{t+3}, v{t+4}")
    set_voffW(e, vW3, 3584)

AQ, AK, AV, AH = 64, 80, 96, 112
def stage_ab1(e, q, xrefs, wrefs):
    t = vT0
    e(f"s_xor_b32 s{sT0}, s{sI}, s{sC}")
    for kind in range(2):
        e(f"s_lshl_b32 s{sT2}, s{sI}, 5\ns_add_u32 s{sT2}, s{sT2}, 2")
        if kind: e(f"s_sub_u32 s{sT2}, s{sT2}, s{sDELTA}")
        e(f"v_add_u32 v{t}, s{sT2}, v{vT}\nv_lshrrev_b32 v{t+1}, 2, v{t}\nv_and_b32 v{t+1}, 3, v{t+1}\nv_lshlrev_b32 v{t}, 6, v{t}")
        for sp in range(2):
            e(f"s_xor_b32 s{sT3}, s{sT0}, {sp}\ns_lshl_b32 s{sT3}, s{sT3}, 1")
            e(f"v_add_u32 v{t+2}, s{sT3}, v{vHH}\nv_xor_b32 v{t+2}, v{t+2}, v{t+1}\nv_lshlrev_b32 v{t+2}, 4, v{t+2}\nv_add_u32 v{vA+2*kind+sp}, v{t}, v{t+2}")
    e(f"s_cmp_eq_u32 s{sC}, 0\ns_cselect_b64 vcc, -1, 0\nv_cndmask_b32 v{t}, v{vAN+1}, v{vAN}, vcc")
    for sp in range(2):
        e(f"s_xor_b32 s{sT3}, s{sT0}, {sp}\ns_lshl_b32 s{sT3}, s{sT3}, 11")
        e(f"s_add_u32 s{sT4}, s{sT3}, {SL(0)}\nv_add_u32 v{vA+4+2*sp}, s{sT4}, v{t}\ns_add_u32 s{sT4}, s{sT3}, {SL(3)}\nv_add_u32 v{vA+5+2*sp}, s{sT4}, v{t}")
    e(f"s_lshl_b32 s{sT3}, s{sT0}, 5\ns_add_u32 s{sT3}, s{sT3}, {PA_GW}\nv_lshlrev_b32 v{vA+8}, 4, v{vHH}\nv_add_u32 v{vA+8}, s{sT3}, v{vA+8}")
    FS2 = [[128, 152], [176, 200]]
    GW2 = [224, 228]
    SUM, SQ, GA, CS = 232, 234, 236, 238
    for r in range(SUM, CS + 2): e(f"v_mov_b32 v{r}, 0")
    def read_fns(c):
        fns = []
        slot = c % 5; seg = 1 if slot >= 3 else 0; off = (slot - 3*seg) * 16384
        for sp in range(2):
            F = FS2[c & 1][sp]
            fns.append(lambda F=F, sp=sp: e.lds(f"ds_read_b128 {vr(F,4)}, v{vA+sp} offset:{c*XM}"))
            fns.append(lambda F=F, sp=sp: e.lds(f"ds_read_b128 {vr(F+4,4)}, v{vA+2+sp} offset:{c*XM}"))
            for m in range(4):
                a = vA + 4 + 2*sp + seg
                fns.append(lambda F=F, m=m, a=a: e.lds(f"ds_read_b64_tr_b16 {vr(F+8+4*m,2)}, v{a} offset:{off + m*4096}"))
                fns.append(lambda F=F, m=m, a=a: e.lds(f"ds_read_b64_tr_b16 {vr(F+10+4*m,2)}, v{a} offset:{off + m*4096 + 512}"))
            if sp == 0: fns.append(lambda: e.lds(f"ds_read_b128 {vr(GW2[c & 1],4)}, v{vA+8} offset:{c*64}"))
        return fns
    def mfma_fns(c):
        fns = []
        for sp in range(2):
            F = FS2[c & 1][sp]; z = "0" if (c == 0 and sp == 0) else None
            for (d, a, b) in [(AQ, F+8, F), (AK, F, F+12), (AV, F, F+16), (AH, F+20, F+4)]:
                fns.append(lambda d=d, a=a, b=b, z=z: mfma(e, d, a, b, c=z))
        return fns
    def dots(c):
        if X("NODOT"): return
        F = FS2[c & 1][0]; G = GW2[c & 1]
        for r in range(4):
            e(f"v_dot2c_f32_bf16 v{SUM+(r&1)}, s{sONES}, v{F+4+r}\nv_dot2c_f32_bf16 v{SQ+(r&1)}, v{F+4+r}, v{F+4+r}")
        for r in range(4):
            e(f"v_dot2c_f32_bf16 v{GA+(r&1)}, v{F+r}, v{G+r}\nv_dot2c_f32_bf16 v{CS+(r&1)}, s{sONES}, v{F+20+r}")
    w2refs = []
    for c in range(17):
        if c < 16:
            q.wait(wrefs[c])
            if c % 4 == 0: q.wait(xrefs[c // 4])
        e.wait_lds_all()
        if c < 16:
            if not X("NOBAR"): e("s_barrier")
            if c >= 1 and c + 4 < 16:
                wrefs[c + 4] = push_wab(q, c + 4)
                if X("NODMA"):
                    for fn, r in q.q: r.tok = -1
                    q.q = []
            if c == 1: xrefs[2] = push_x(q, 2)
            if c == 3: xrefs[3] = push_x(q, 3)
            if c >= 12: w2refs.append(push_w2(q, c - 12))
            extra_push(e, q, c)
        if c in (1, 5, 9, 13): stamp(e, f"ab{c}")
        fill = read_fns(c) if c < 16 else []
        npop = min(len(q.q), 8)
        pops = [lambda: q.pop(1)] * npop
        merged = []
        for k in range(max(len(fill), 1)):
            if k < len(fill): merged.append(fill[k])
            want = (npop * (k + 1)) // max(len(fill), 1)
            while sum(1 for f in merged if f in pops) < want and False: pass
        merged = []; pi = 0
        for k, f in enumerate(fill):
            merged.append(f)
            if k % (4 if npop <= 5 else 2) == 1 and pi < npop: merged.append(pops[pi]); pi += 1
        merged += pops[pi:]
        if c == 0:
            for f in merged: f()
        else:
            if X("DOTFIRST"): dots(c - 1)
            interleave(mfma_fns(c - 1), merged)
            if not X("DOTFIRST"): dots(c - 1)
    e.L.append("L_abend: ; @soft")
    stamp(e, "abmain")
    e(f"s_lshl_b32 s{sT2}, s{sI}, 5\ns_add_u32 s{sT2}, s{sT2}, 2\nv_add_u32 v{t}, s{sT2}, v{vT}\nv_lshrrev_b32 v{t+1}, 2, v{t}\nv_and_b32 v{t+1}, 3, v{t+1}")
    e(f"s_lshl_b32 s{sT2}, s{sFB}, 1\ns_add_u32 s{sT2}, s{sT2}, s{sC}\ns_mul_i32 s{sT2}, s{sT2}, {XM}")
    e(f"v_lshlrev_b32 v{t}, 6, v{t}\nv_lshlrev_b32 v{t+2}, 3, v{vHH}\nv_add3_u32 v{t}, v{t}, v{t+2}, s{sT2}")
    for j in range(4):
        e(f"v_xor_b32 v{t+2}, {j}, v{t+1}\nv_lshlrev_b32 v{t+2}, 4, v{t+2}\nv_add_u32 v{t+2}, v{t+2}, v{t}")
        e.lds(f"ds_read_b64 {vr(vRES+2*j,2)}, v{t+2}")
    e(f"v_add_f32 v{t}, v{SUM}, v{SUM+1}\nv_add_f32 v{t+1}, v{SQ}, v{SQ+1}\nv_add_f32 v{t+2}, v{GA}, v{GA+1}\nv_add_f32 v{t+3}, v{CS}, v{CS+1}")
    e(f"s_lshl_b32 s{sT2}, s{sW}, 10\ns_add_u32 s{sT2}, s{sT2}, {PA_ST}\nv_add_u32 v{vA}, s{sT2}, v{vL16}")
    e.lds(f"ds_write_b128 v{vA}, {vr(t,4)}")
    e.wait_lds_all()
    e("s_barrier")
    if X("ALLTOUCH", "1") != "0" and X("AT1", "ab4") == "ab4":
        touch_all(e, [(S_W3T, 512*3584), (S_WO, 524288), (S_W4, 1792*1024)], 32)
    push_w3(q, 0, (0,)); q.drain(); touch16(e, S_W3T, 3)
    e(f"s_xor_b32 s{sT2}, s{sW}, 1\ns_lshl_b32 s{sT2}, s{sT2}, 10\ns_add_u32 s{sT2}, s{sT2}, {PA_ST}\nv_add_u32 v{vA}, s{sT2}, v{vL16}")
    e(f"s_xor_b32 s{sT2}, s{sW}, 2\ns_lshl_b32 s{sT2}, s{sT2}, 10\ns_add_u32 s{sT2}, s{sT2}, {PA_ST}\nv_add_u32 v{vA+1}, s{sT2}, v{vL16}")
    P = 128
    k0 = e.lds(f"ds_read_b96 {vr(P,3)}, v{vA}")
    k1 = e.lds(f"ds_read_b32 v{P+3}, v{vA+1} offset:12")
    e.wait_lds(k1)
    for r in range(4): e(f"v_add_f32 v{t+r}, v{t+r}, v{P+r}")
    halfsum(e, t, t+4); halfsum(e, t+1, t+4); halfsum(e, t+2, t+4)
    NM, RS = 132, 134
    ln_stats(e, t, t+1, NM, RS, t+4)
    e(f"v_mul_f32 v{t+2}, 0xbfb8aa3b, v{t+2}\nv_exp_f32 v{t+2}, v{t+2}\nv_add_f32 v{t+2}, 1.0, v{t+2}\nv_rcp_f32 v{t+2}, v{t+2}")
    e(f"s_lshl_b32 s{sT2}, s{sI}, 7\ns_add_u32 s{sT2}, s{sT2}, {PA_G}\nv_lshlrev_b32 v{t+5}, 2, v{vT}\nv_add_u32 v{t+5}, s{sT2}, v{t+5}")
    e.lds(f"ds_write_b32 v{t+5}, v{t+2}")
    e(f"s_lshl_b32 s{sT2}, s{sTB}, 6\ns_lshl_b32 s{sT3}, s{sI}, 5\ns_add_u32 s{sT2}, s{sT2}, s{sT3}\ns_sub_u32 s{sT2}, s{sT2}, s{sDELTA}")
    e(f"v_add_u32 v{t+4}, s{sT2}, v{vT}\nv_cmp_gt_u32 vcc, 2048, v{t+4}\nv_cndmask_b32 v{RS}, 0, v{RS}, vcc")
    corr_frags(e, t+3, NM, 136, 140, t+4)
    mfma(e, AH, 136, 140)
    q.drain()
    OUT = 144
    gelu_pairs(e, [AH + 2*k for k in range(4)], RS, [152 + 2*k for k in range(4)], [OUT + k for k in range(4)])
    push_w3(q, 0, (1,)); q.drain(); touch16(e, S_W3T, 4)
    gelu_pairs(e, [AH + 2*k for k in range(4, 8)], RS, [152 + 2*k for k in range(4, 8)], [OUT + k for k in range(4, 8)])
    stamp(e, "b1epi")
    purity(e)
    frag_soff(e, sB3, WS_HSH, 32, OWNKS)
    def st(sc):
        for h in range(2):
            e.vm(f"buffer_store_dwordx4 {vr(OUT+4*h,4)}, v{vL16}, {srd(S_WS)}, s{sB3} offen offset:{1024*h} {sc}", "store")
    tok = stores2(e, st, "h")
    if not wt("x1"):
        touch_dst(e, lambda: own_soff_q(e, WS_X1, 32), 16)
        def st2():
            e(f"s_lshl_b32 s{sQA}, s{sFB}, 1\ns_add_u32 s{sQA}, s{sQA}, s{sC}\ns_lshl_b32 s{sQA}, s{sQA}, 11\ns_lshl_b32 s{sT5}, s{sTB}, 6\ns_add_u32 s{sQA}, s{sQA}, s{sT5}")
            e(f"s_lshl_b32 s{sT5}, s{sI}, 5\ns_add_u32 s{sQA}, s{sQA}, s{sT5}\ns_lshl_b32 s{sQA}, s{sQA}, 3\ns_add_u32 s{sQA}, s{sQA}, {WS_ST2}")
            return sQA
        touch_dst(e, st2, 2)
    return w2refs, tok

def purity(e):
    l = e.newlabel("Lpur"); lx = e.newlabel("Lpurx"); lo = e.newlabel("Lpuro")
    t = vT0
    e.wait_vm(e.pub_ref.tok)
    e(f"s_and_b32 s{sT3}, s{sTAG}, 0xfffffff0\ns_mov_b32 s{sSPIN}, 0x40000")
    e(f"s_lshl_b32 s{sT2}, s{sU}, 7\ns_add_u32 s{sT2}, s{sT2}, {WS_PUB}")
    e.label(l)
    e(f"v_and_b32 v{t+2}, 0xfffffff0, v{vPUB}\nv_cmp_ne_u32 vcc, s{sT3}, v{t+2}\ns_cbranch_vccz {lo}")
    e(f"s_sub_u32 s{sSPIN}, s{sSPIN}, 1\ns_cmp_eq_u32 s{sSPIN}, 0\ns_cbranch_scc1 {lo}")
    e(f"v_and_b32 v{t+1}, 15, v{vLANE}\nv_lshlrev_b32 v{t+1}, 2, v{t+1}")
    e(f"buffer_load_dword v{vPUB}, v{t+1}, {srd(S_WS)}, s{sT2} offen sc1\ns_waitcnt vmcnt(0)\ns_branch {l}")
    e.label(lo)
    e(f"s_or_b32 s{sT3}, s{sT3}, s{sXCC}\nv_cmp_ne_u32 vcc, s{sT3}, v{vPUB}")
    e(f"s_cmp_eq_u64 vcc, 0\ns_cselect_b32 s{sPURE}, 1, 0")
    if X("FORCE_SLOW"): e(f"s_mov_b32 s{sPURE}, 0")

def extra_push(e, q, c):
    if X("CT2", "0") != "0" and c == int(X("CT2", "0")): q.push(lambda: touch_chunks(e, 9, 7))
    if c == 0: q.push(lambda: touch_slow_ab(e))
    if c == 7: q.push(lambda: touch_slow(e, S_W2, 512))
    LA = int(X("CTLA", 7))
    if X("CTOUCH", "0") != "0" and 0 <= c and 5 <= c + LA < 16: q.push(lambda: touch_chunk(e, c + LA))
    T16 = {6: (S_W2, 0), 8: (S_W2, 1), 11: (S_W3T, 0), 12: (S_W3T, 1), 14: (S_W3T, 2)}
    if c in T16: q.push(lambda: touch16(e, *T16[c]))
    if c == int(X("AT2", 12)) and X("ALLTOUCH", "1") != "0" and X("AT1", "ab4") == "ab":
        q.push(lambda: touch_all(e, [(S_W2, 524288), (S_W3T, 512*3584), (S_WO, 524288), (S_W4, 1792*1024)], 64))
    if c == 9: q.push(lambda: touch_code(e, "L_abend"))
    if c == 12 and not wt("h"): q.push(lambda: touch_dst(e, lambda: own_soff_q(e, WS_HSH, 32), 16))

    if c == 8:
        def fn():
            e(f"s_lshl_b32 s{sQA}, s{sU}, 7\ns_add_u32 s{sQA}, s{sQA}, {WS_PUB}\nv_and_b32 v{vPUB}, 15, v{vLANE}\nv_lshlrev_b32 v{vPUB}, 2, v{vPUB}")
            return e.vm(f"buffer_load_dword v{vPUB}, v{vPUB}, {srd(S_WS)}, s{sQA} offen sc1")
        e.pub_ref = q.push(fn)

def sel_addrP(e, dst):
    e(f"s_cmp_eq_u32 s{sC}, 0\ns_cselect_b64 vcc, -1, 0")
    e(f"v_cndmask_b32 v{dst}, v{vAP+1}, v{vAP}, vcc\nv_cndmask_b32 v{dst+1}, v{vAP}, v{vAP+1}, vcc")

PQR = 240
KVD = 80
def a1_epilogue(e, q, w2refs, tokh):
    t = vT0
    def phi_steps(acc, out, tmp):
        P = lambda r: vr(r, 2); st = []
        for k in range(8): st.append(lambda k=k: e(f"v_pk_mul_f32 {P(tmp+2*k)}, {P(acc+2*k)}, s[{sC_LOG2E}:{sC_LOG2E+1}]"))
        for k in range(16): st.append(lambda k=k: e(f"v_min_f32 v{tmp+k}, 0, v{tmp+k}"))
        for k in range(16): st.append(lambda k=k: e(f"v_exp_f32 v{tmp+k}, v{tmp+k}"))
        for k in range(16): st.append(lambda k=k: e(f"v_max_f32 v{acc+k}, 0, v{acc+k}"))
        for k in range(8): st.append(lambda k=k: e(f"v_pk_add_f32 {P(acc+2*k)}, {P(acc+2*k)}, {P(tmp+2*k)}"))
        for k in range(8): st.append(lambda k=k: e(f"v_pk_add_f32 {P(acc+2*k)}, {P(acc+2*k)}, s[{sC_EPS6}:{sC_EPS6+1}]"))
        for k in range(8): st.append(lambda k=k: e(f"v_cvt_pk_bf16_f32 v{out+k}, v{acc+2*k}, v{acc+2*k+1}"))
        return st
    TMP = 112
    PKF, VF, PQF, ONE = 128, 136, PQR, 152
    push_w3(q, 1, (0,)); q.drain(); touch16(e, S_W3T, 5)
    q.wait(w2refs[-1])
    e("s_barrier")
    sel_addrP(e, vA)
    e(f"s_lshl_b32 s{sT2}, s{sC}, 15\ns_add_u32 s{sT2}, s{sT2}, {SL(1)}\nv_add_u32 v{vA}, s{sT2}, v{vA}\nv_add_u32 v{vA+1}, s{sT2}, v{vA+1}")
    rd = []
    for s_ in range(16):
        for c in range(2):
            d = (2*s_ + c)*4
            rd.append(lambda d=d, c=c, s_=s_: e.lds(f"ds_read_b64_tr_b16 {ar(d,2)}, v{vA+c} offset:{s_*2048}"))
            rd.append(lambda d=d, c=c, s_=s_: e.lds(f"ds_read_b64_tr_b16 {ar(d+2,2)}, v{vA+c} offset:{s_*2048+1024}"))
    interleave(phi_steps(AK, PKF, TMP), rd)
    push_w3(q, 1, (1,)); q.drain(); touch16(e, S_W3T, 6)
    for k in range(8): e(f"v_cvt_pk_bf16_f32 v{VF+k}, v{AV+2*k}, v{AV+2*k+1}")
    for k in range(4): e(f"v_mov_b32 v{ONE+k}, s{sONES}")
    D2, D3 = KVD, 96
    mfma(e, D2, PKF, VF, c="0"); mfma(e, D3, PKF, ONE, c="0")
    mfma(e, D2, PKF + 4, VF + 4); mfma(e, D3, PKF + 4, ONE)
    e.wait_lds_all()
    stamp(e, "a1k")
    publish(e, teamflag(WS_FB1), upto=tokh)
    stamp(e, "b1pub")
    push_w3(q, 2); push_w3(q, 3)
    st = phi_steps(AQ, PQF, TMP)
    q.pop(4)
    interleave(st, [lambda: q.pop(1)] * 8)
    e(f"v_and_b32 v{t}, 16, v{vLANE}\nv_cmp_ne_u32 vcc, 0, v{t}")
    for r in range(8): e(f"v_cndmask_b32 v{D2+r}, v{D2+r}, v{D3+r}, vcc")
    for r in range(8): e(f"v_cndmask_b32 v{D2+8+r}, v{D3+8+r}, v{D2+8+r}, vcc")
    q.drain()
    e(f"s_lshl_b32 s{sT2}, s{sC}, 12\ns_add_u32 s{sT2}, s{sT2}, {SL(4)}\nv_add_u32 v{t}, s{sT2}, v{vL16}")
    e.fb1tok = flags_async(e, f"s_lshl_b32 s{sT2}, s{sU}, 7\ns_and_b32 s{sT3}, s{sTB}, 1\ns_lshl_b32 s{sT3}, s{sT3}, 5\ns_add_u32 s{sT2}, s{sT2}, s{sT3}\ns_add_u32 s{sT2}, s{sT2}, {WS_FB1}", 8)
    l1 = e.newlabel("La1"); l2 = e.newlabel("La1")
    e(f"s_cmp_eq_u32 s{sI}, 0\ns_cbranch_scc1 {l1}")
    for rg in range(4): e(f"ds_write_b128 v{t}, {vr(D2+4*rg,4)} offset:{rg*1024}")
    e.label(l1)
    e.wait_lds_all()
    e("s_barrier")
    e(f"s_cmp_lg_u32 s{sI}, 0\ns_cbranch_scc1 {l2}")
    for rg in range(4): e(f"ds_read_b128 {vr(D3+4*rg,4)}, v{t} offset:{rg*1024}")
    e("s_waitcnt lgkmcnt(0)")
    for p in range(8): e(f"v_pk_add_f32 {vr(D2+2*p,2)}, {vr(D2+2*p,2)}, {vr(D3+2*p,2)}")
    e.label(l2)

def kv_store(e):
    t = vT0
    frag_soff(e, sB4, WS_PQ, 32, OWNKS)
    def stq(sc):
        for h in range(2):
            e.vm(f"buffer_store_dwordx4 {vr(PQR+4*h,4)}, v{vL16}, {srd(S_WS)}, s{sB4} offen offset:{1024*h} {sc}", "store!")
    stores2(e, stq, "pq")
    l2 = e.newlabel("Lkv")
    e(f"s_cmp_lg_u32 s{sI}, 0\ns_cbranch_scc1 {l2}")
    e(f"v_and_b32 v{t+1}, 15, v{vT}\nv_mov_b32 v{t+2}, 16")
    e(f"v_and_b32 v{t+3}, 16, v{vLANE}\nv_cmp_ne_u32 vcc, 0, v{t+3}")
    e(f"v_cndmask_b32 v{t+4}, v{t+1}, v{t+2}, vcc\nv_cndmask_b32 v{t+5}, v{t+2}, v{t+1}, vcc")
    e(f"v_mul_u32_u24 v{t+3}, 544, v{vHH}")
    e(f"v_lshlrev_b32 v{t+4}, 5, v{t+4}\nv_add_u32 v{t+4}, v{t+4}, v{t+3}\nv_lshlrev_b32 v{t+5}, 5, v{t+5}\nv_add_u32 v{t+5}, v{t+5}, v{t+3}")
    e(f"s_lshl_b32 s{sT2}, s{sTB}, 3\ns_add_u32 s{sT2}, s{sT2}, s{sFB}\ns_mul_i32 s{sT2}, s{sT2}, 4352\ns_mul_i32 s{sT3}, s{sC}, 2176\ns_add_u32 s{sT2}, s{sT2}, s{sT3}\ns_add_u32 s{sB4}, s{sT2}, {WS_KVP}")
    for h in range(2):
        for qq in range(2):
            e(f"buffer_store_dwordx4 {vr(KVD+8*h+4*qq,4)}, v{t+4+h}, {srd(S_WS)}, s{sB4} offen offset:{1088*h + 16*qq} sc1")
            e.vm_kinds.append("store"); e.vm_n += 1
    e.label(l2)

def stage_b2(e, q):
    ACC = 96; HF = 128
    t = vT0
    frag_soff(e, sB3, WS_HSH, 32, f"s_lshl_b32 s{sT3}, s{sC}, 4")
    th = []
    for s in range(16):
        def fn(s=s):
            if s % 4 == 0: e(f"s_add_u32 s{sQA}, s{sB3}, {(s//4)*4096}")
            return e.vm(f"buffer_load_dwordx4 {vr(HF + 4*s, 4)}, v{vL16}, {srd(S_WS)}, s{sQA} offen offset:{(s&3)*1024} sc1")
        th.append(q.push(fn))
    if X("ALLTOUCH", "1") != "0" and X("AT1", "ab4") == "ab3":
        q.push(lambda: touch_all(e, [(S_WO, 524288), (S_W4, 1792*1024)], 32))
    q.pop(int(X("B2PRE", 8)))
    for s in range(16):
        q.wait(th[s])
        for c in range(2):
            mfma(e, ACC + 16*c, (2*s + c)*4, HF + 4*s, aa=True, c=("0" if s == 0 else None))
            if c == 0: q.pop(1)
    q.drain()
    stamp(e, "b2main")
    e(f"s_lshl_b32 s{sT2}, s{sW}, 12\ns_add_u32 s{sT2}, s{sT2}, {SL(4)}\nv_add_u32 v{vA}, s{sT2}, v{vL16}")
    e(f"s_xor_b32 s{sT2}, s{sW}, 1\ns_lshl_b32 s{sT2}, s{sT2}, 12\ns_add_u32 s{sT2}, s{sT2}, {SL(4)}\nv_add_u32 v{vA+1}, s{sT2}, v{vL16}")
    for rg in range(4): e.lds(f"ds_write_b128 v{vA}, {vr(ACC+16+4*rg,4)} offset:{rg*1024}")
    e.wait_lds_all()
    e("s_barrier")
    tk = [e.lds(f"ds_read_b128 {vr(ACC+16+4*rg,4)}, v{vA+1} offset:{rg*1024}") for rg in range(4)]
    for rg in range(4):
        e.wait_lds(tk[rg])
        for p in range(2): e(f"v_pk_add_f32 {vr(ACC+4*rg+2*p,2)}, {vr(ACC+4*rg+2*p,2)}, {vr(ACC+16+4*rg+2*p,2)}")
    stamp(e, "b2red")
    q.drain(); touch16(e, S_WO, 0)
    for k in range(8):
        e(f"v_lshlrev_b32 v{t}, 16, v{vRES+k}\nv_and_b32 v{t+1}, 0xffff0000, v{vRES+k}")
        e(f"v_pk_add_f32 {vr(ACC+2*k,2)}, {vr(ACC+2*k,2)}, {vr(t,2)}")
        e(f"v_cvt_pk_bf16_f32 v{vRES+k}, v{ACC+2*k}, v{ACC+2*k+1}")
    frag_soff(e, sB3, WS_X1, 32, OWNKS)
    S, Q = 128, 130
    e(f"v_mov_b32 v{S}, 0\nv_mov_b32 v{S+1}, 0\nv_mov_b32 v{Q}, 0\nv_mov_b32 v{Q+1}, 0")
    for k in range(8):
        e(f"v_dot2c_f32_bf16 v{S+(k&1)}, s{sONES}, v{vRES+k}\nv_dot2c_f32_bf16 v{Q+(k&1)}, v{vRES+k}, v{vRES+k}")
    e(f"v_add_f32 v{S}, v{S}, v{S+1}\nv_add_f32 v{S+1}, v{Q}, v{Q+1}")
    halfsum(e, S, t); halfsum(e, S + 1, t)
    e(f"s_lshl_b32 s{sT2}, s{sFB}, 1\ns_add_u32 s{sT2}, s{sT2}, s{sC}\ns_lshl_b32 s{sT2}, s{sT2}, 11")
    e(f"s_lshl_b32 s{sT3}, s{sTB}, 6\ns_add_u32 s{sT2}, s{sT2}, s{sT3}\ns_lshl_b32 s{sT3}, s{sI}, 5\ns_add_u32 s{sT2}, s{sT2}, s{sT3}")
    e(f"s_lshl_b32 s{sT2}, s{sT2}, 3\ns_add_u32 s{sB4}, s{sT2}, {WS_ST2}")
    e(f"v_lshlrev_b32 v{t+2}, 3, v{vT}")
    def st(sc):
        for h in range(2):
            e.vm(f"buffer_store_dwordx4 {vr(vRES+4*h,4)}, v{vL16}, {srd(S_WS)}, s{sB3} offen offset:{1024*h} {sc}", "store")
        e.vm(f"buffer_store_dwordx2 {vr(S,2)}, v{t+2}, {srd(S_WS)}, s{sB4} offen {sc}", "store")
    return stores2(e, st, "x1")

CSA = 132
def b3_colsum(e, part):
    t = vT0
    WT = 136; ND = 6
    if part == 0:
        e(f"s_cmp_eq_u32 s{sC}, 0\ns_cselect_b64 vcc, -1, 0")
        e(f"v_cndmask_b32 v{vA+4}, v{vAP+1}, v{vAP}, vcc\ns_lshl_b32 s{sT2}, s{sI}, 12\nv_add_u32 v{vA+4}, s{sT2}, v{vA+4}\nv_add_u32 v{vA+5}, {SL(0)}, v{vA+4}")
        for r in range(4): e(f"v_mov_b32 v{CSA+r}, 0")
    def csread(s):
        g = s >> 1; off = (g % 8)*8192 + (s & 1)*2048
        return tr_frag(e, WT + (s % ND)*4, vA + 4 + g // 8, off, 1024)
    s0, s1 = 16*part, 16*part + 16
    rds = {s: csread(s) for s in range(s0, s0 + ND - 1)}
    for s in range(s0, s1):
        if s + ND - 1 < s1: rds[s + ND - 1] = csread(s + ND - 1)
        e.wait_lds(rds[s])
        for r in range(4): e(f"v_dot2c_f32_bf16 v{CSA+r}, s{sONES}, v{WT + (s % ND)*4 + r}")
    if part == 1:
        e(f"v_add_f32 v{CSA}, v{CSA}, v{CSA+1}\nv_add_f32 v{CSA+2}, v{CSA+2}, v{CSA+3}\nv_add_f32 v{CSA}, v{CSA}, v{CSA+2}")
        e(f"s_lshl_b32 s{sT2}, s{sW}, 8\ns_add_u32 s{sT2}, s{sT2}, {PA_CS3}\nv_lshlrev_b32 v{t}, 2, v{vLANE}\nv_add_u32 v{t}, s{sT2}, v{t}")
        e.lds(f"ds_write_b32 v{t}, v{CSA}")
        e.wait_lds_all()

def p4a_setup(e):
    e(f"s_xor_b32 s{sT1}, s{sI}, 1")
    frag_soff(e, sB4, WS_PQ, 32, f"s_lshl_b32 s{sT3}, s{sW}, 3")
    frag_soff(e, sB5, WS_PQ, 32, f"s_lshl_b32 s{sT3}, s{sW}, 3", blk=sT1)
    frag_soff(e, sB6, WS_H2, 112, f"s_lshl_b32 s{sT3}, s{sW}, 1")
    frag_soff(e, sB7, WS_H2, 112, f"s_lshl_b32 s{sT3}, s{sW}, 1", blk=sT1)
    e(f"s_lshl_b32 s{sT2}, s{sW}, 13\ns_add_u32 s{sB2}, s{sT2}, {WS_KVT}")
def push_kvt_loads(e, q):
    tk = {}
    for h in range(8):
        def fk(h=h):
            if h % 4 == 0: e(f"s_add_u32 s{sQA}, s{sB2}, {h*1024}")
            return e.vm(f"buffer_load_dwordx4 {ar(4*h,4)}, v{vL16}, {srd(S_WS)}, s{sQA} offen offset:{(h & 3)*1024} sc1")
        tk[h] = q.push(fk)
    return tk
def push_p4a_loads(e, q):
    tp = {}
    for h in range(8):
        for i in range(2):
            def fp(h=h, i=i):
                e(f"s_add_u32 s{sQA}, s{sB4+i}, {h*1024}")
                return e.vm(f"buffer_load_dwordx4 {ar(32 + (2*h+i)*4, 4)}, v{vL16}, {srd(S_WS)}, s{sQA} offen sc1")
            tp[(h, i)] = q.push(fp)
    return tp
def flags_check(e, off, nflags, preloaded):
    l = e.newlabel("Lfc"); lo = e.newlabel("Lfco"); t = vT0
    e(f"s_mov_b32 s{sSPIN}, 0x40000\ns_mov_b32 s{sT2}, {off}")
    e(f"v_lshlrev_b32 v{t+1}, 2, v{vLANE}\nv_cmp_gt_u32 vcc, {nflags}, v{vLANE}\ns_and_saveexec_b64 s[{sSAVE}:{sSAVE+1}], vcc")
    if not preloaded:
        e(f"buffer_load_dword v{vPUB}, v{t+1}, {srd(S_WS)}, s{sT2} offen sc1\ns_waitcnt vmcnt(0)")
    e.label(l)
    e(f"v_cmp_ne_u32 vcc, s{sTAG}, v{vPUB}\ns_cbranch_vccz {lo}")
    e(f"s_sub_u32 s{sSPIN}, s{sSPIN}, 1\ns_cmp_eq_u32 s{sSPIN}, 0\ns_cbranch_scc1 {lo}")
    e(f"buffer_load_dword v{vPUB}, v{t+1}, {srd(S_WS)}, s{sT2} offen sc1\ns_waitcnt vmcnt(0)\ns_branch {l}")
    e.label(lo)
    e(f"s_mov_b64 exec, s[{sSAVE}:{sSAVE+1}]")

def fa1_flag(e):
    l = e.newlabel("Lfa1")
    e(f"s_cmp_lg_u32 s{sW}, 0\ns_cbranch_scc1 {l}")
    e(f"s_lshl_b32 s{sT2}, s{sFB}, 7\ns_lshl_b32 s{sT3}, s{sTB}, 2\ns_add_u32 s{sT2}, s{sT2}, s{sT3}\ns_add_u32 s{sT2}, s{sT2}, {WS_FA1}")
    flag_store(e, sT2, "sc1")
    e.label(l)
    e.vm_kinds.append("store"); e.vm_n += 1
def stage_b3(e, q):
    ACC = 64; t = vT0
    for c in range(2): e(f"v_mov_b32 v{vA+8+2*c}, v{vAP+c}\nv_add_u32 v{vA+8+2*c+1}, {SL(0)}, v{vAP+c}")
    def waddr(s, ft):
        g = s >> 1
        return vA + 8 + 2*(ft & 1) + g // 8, (g % 8)*8192 + (ft >> 1)*4096 + (s & 1)*2048
    e(f"s_lshl_b32 s{sT2}, s{sU}, 2\ns_add_u32 s{sT2}, s{sT2}, s{sW}\ns_lshl_b32 s{sT2}, s{sT2}, 15\ns_add_u32 s{sB3}, s{sT2}, {WS_X1}")
    e(f"s_lshl_b32 s{sT2}, s{sU}, 7\ns_lshl_b32 s{sT3}, s{sW}, 5\ns_add_u32 s{sT2}, s{sT2}, s{sT3}\ns_lshl_b32 s{sT2}, s{sT2}, 3\ns_add_u32 s{sB4}, s{sT2}, {WS_ST2}")
    e(f"v_lshlrev_b32 v{vA+6}, 17, v{vHH}\nv_lshlrev_b32 v{t+1}, 3, v{vT}\nv_add_u32 v{vA+6}, v{vA+6}, v{t+1}")
    CS4 = 152; CA, CB = 160, 176
    e.wait_vm(e.tokkv)
    e("s_barrier")
    fa1_flag(e)
    e(f"v_lshlrev_b32 v{t+2}, 2, v{vLANE}\nv_add_u32 v{t+2}, {PA_CS3}, v{t+2}")
    tc = [e.lds(f"ds_read_b32 v{CS4+k}, v{t+2} offset:{256*k}") for k in range(4)]
    WFS = [192, 208, 224]
    def read_fns(s):
        fns = []
        for ft in range(4):
            a, off = waddr(s, ft); d = WFS[s % 3] + ft*4
            fns.append(lambda a=a, off=off, d=d: e.lds(f"ds_read_b64_tr_b16 {vr(d,2)}, v{a} offset:{off}"))
            fns.append(lambda a=a, off=off, d=d: e.lds(f"ds_read_b64_tr_b16 {vr(d+2,2)}, v{a} offset:{off+1024}"))
        return fns
    e.wait_lds(tc)
    for k in range(4): corr_frags(e, CS4 + k, None, CA + 4*k, None, t)
    rdtok = {}
    for s in range(2):
        for f in read_fns(s): rdtok[s] = f()
    flags_wait(e, e.fb2tok, 16)
    stamp(e, "b3poll")
    STT = 136
    tst = []
    for k in range(8):
        def fn(k=k):
            e(f"s_add_u32 s{sQA}, s{sB4}, {k*16384}")
            return e.vm(f"buffer_load_dwordx2 {vr(STT+2*k,2)}, v{vA+6}, {srd(S_WS)}, s{sQA} offen sc1")
        tst.append(q.push(fn))
    tx = []
    for s in range(32):
        def fn(s=s):
            if s % 4 == 0: e(f"s_add_u32 s{sQA}, s{sB3}, {(s//4)*4096}")
            return e.vm(f"buffer_load_dwordx4 {ar(4*s,4)}, v{vL16}, {srd(S_WS)}, s{sQA} offen offset:{(s&3)*1024} sc1")
        tx.append(q.push(fn))
    st_items = q.q[:8]; q.q = q.q[8:]
    q.q = q.q[:8] + st_items + q.q[8:]
    q.pop(8)
    NM, RS = 240, 242
    def stats_and_corr():
        q.wait(tst[-1])
        for k in range(1, 8): e(f"v_pk_add_f32 {vr(STT,2)}, {vr(STT,2)}, {vr(STT+2*k,2)}")
        halfsum(e, STT, t); halfsum(e, STT + 1, t)
        ln_stats(e, STT, STT + 1, NM, RS, t)
        corr_frags(e, None, NM, None, CB, t)
    stamp(e, "b3st")
    w4 = {}
    for s in range(32):
        if X("FINE") and s in (4, 8, 12, 16, 24): stamp(e, f"b3s{s}")
        e.wait_lds(rdtok[s]); q.wait(tx[s])
        if s == 15:
            e("s_barrier")
            set_region_addrs(e)
            for g in range(5): w4[g] = push_w4(q, g)
        if s in (4, 8, 12, 16, 20, 24): q.push(lambda s=s: touch16(e, S_W4, 1 + (s - 4)//4))
        if s == 10: q.push(lambda: touch_code(e, "L_b3end"))

        if s == int(X("H2T", 27)) and not wt("h2"):
            def h2d():
                e(f"s_lshl_b32 s{sQA}, s{sU}, 2\ns_add_u32 s{sQA}, s{sQA}, s{sW}\ns_mul_i32 s{sQA}, s{sQA}, 112\ns_lshl_b32 s{sT5}, s{sV}, 3\ns_add_u32 s{sQA}, s{sQA}, s{sT5}")
                e(f"s_lshl_b32 s{sQA}, s{sQA}, 10\ns_add_u32 s{sQA}, s{sQA}, {WS_H2}")
                return sQA
            q.push(lambda: touch_dst(e, h2d, 64))
        fill = read_fns(s + 2) if s + 2 < 32 else []
        mains = [(lambda ft=ft: mfma(e, ACC + 16*ft, WFS[s % 3] + ft*4, 4*s, ba=True, c=("0" if s == 0 else None))) for ft in range(4)]
        toks = []
        fl = [(lambda f=f: toks.append(f())) for f in fill]
        fl.insert(2, lambda: q.pop(1)); fl.insert(6, lambda: q.pop(1))
        interleave(mains, fl)
        if toks: rdtok[s + 2] = toks[-1]
        if s == 20: stats_and_corr()
    for k in range(4): mfma(e, ACC + 16*k, CA + 4*k, CB)
    e.L.append("L_b3end: ; @soft")
    stamp(e, "b3main")
    e("s_barrier")
    e(f"s_lshl_b32 s{sT2}, s{sU}, 2\ns_add_u32 s{sT2}, s{sT2}, s{sW}\ns_mul_i32 s{sT2}, s{sT2}, 112\ns_lshl_b32 s{sT3}, s{sV}, 3\ns_add_u32 s{sT2}, s{sT2}, s{sT3}")
    e(f"s_lshl_b32 s{sT2}, s{sT2}, 10\ns_add_u32 s{sB3}, s{sT2}, {WS_H2}\ns_add_u32 s{sB4}, s{sB3}, 4096")
    OUT = 128; TMP = 192
    def gelq(ft, half, npop):
        ks = range(4*half, 4*half + 4)
        gelu_pairs(e, [ACC + 16*ft + 2*k for k in ks], RS, [TMP + 2*k for k in ks], [OUT + 8*ft + k for k in ks], q, npop)
    q.wait(w4[4])
    rdf = w4_to_agpr_fns(e)
    e(f"s_mov_b32 s84, s{sB4}")
    tokst = None
    sB3h, = (sB3,)
    p4a_setup(e)
    wo = [push_wo(q, 0)]
    tp = push_p4a_loads(e, q)
    pq_items = q.q[4:]; q.q = q.q[:4]
    NPQ = int(X("EPIPQ", 8))
    q.q += pq_items[:2]
    wo += [push_wo(q, 1)]
    q.q += pq_items[2:NPQ]
    wo += [push_wo(q, 2), push_wo(q, 3)]
    rest = pq_items[NPQ:]
    nit = len(q.q)
    for ft in range(4):
        for f in rdf[10*ft:10*ft + 10]: f()
        for half in range(2):
            k = 2*ft + half
            want = nit * (k + 1) // 7 if k < 7 else nit
            gelq(ft, half, max(0, want - (nit - len(q.q))))
        def st(sc, ft=ft):
            for h in range(2):
                so = sB3 if ft < 2 else 84
                e.vm(f"buffer_store_dwordx4 {vr(OUT+8*ft+4*h,4)}, v{vL16}, {srd(S_WS)}, s{so} offen offset:{((2*ft+h)&3)*1024} {sc}", "store")
        tokst = stores2(e, st, "h2")
    q.drain()
    stamp(e, "gel3")
    e.wait_lds_all()
    e(f"s_mov_b32 s{sQA}, {WS_FA2}\nv_lshlrev_b32 v{vPUB}, 2, v{vLANE}")
    fa2tok = e.vm(f"buffer_load_dword v{vPUB}, v{vPUB}, {srd(S_WS)}, s{sQA} offen sc1")
    q.q = rest
    e.wait_vm(tokst)
    e("s_barrier")
    lq = e.newlabel("Lp3")
    e(f"s_cmp_lg_u32 s{sW}, 0\ns_cbranch_scc1 {lq}")
    e(teamflag(WS_FB3))
    l2 = e.newlabel("Lp3"); l3 = e.newlabel("Lp3")
    e(f"s_cmp_eq_u32 s{sPURE}, 0\ns_cbranch_scc1 {l2}")
    flag_store(e, sT2, "")
    e(f"s_branch {l3}")
    e.label(l2)
    flag_store(e, sT2, "sc1")
    e.label(l3)
    e.label(lq)
    e.vm_kinds.append("store"); e.vm_n += 1
    stamp(e, "p4pub")
    e.wait_vm(fa2tok)
    flags_check(e, WS_FA2, 32, True)
    stamp(e, "fa2")
    return wo, w4, tp

def stage_a2(e, q):
    t = vT0
    e.wait_vm_all()
    e("s_barrier")
    fa1_flag(e)
    e(f"s_lshl_b32 s{sHEAD}, s{sU}, 1\ns_add_u32 s{sHEAD}, s{sHEAD}, s{sV}\ns_sub_u32 s{sHEAD}, s{sHEAD}, 14")
    poll(e, f"s_lshr_b32 s{sT2}, s{sHEAD}, 2\ns_lshl_b32 s{sT2}, s{sT2}, 7\ns_add_u32 s{sT2}, s{sT2}, {WS_FA1}", 32)
    e(f"v_and_b32 v{t+1}, 15, v{vT}\nv_mov_b32 v{t+2}, 16\nv_and_b32 v{t+3}, 16, v{vLANE}")
    e(f"s_and_b32 s{sT2}, s{sHEAD}, 1\ns_lshl_b32 s{sT2}, s{sT2}, 4\nv_cmp_ne_u32 vcc, s{sT2}, v{t+3}")
    e(f"v_cndmask_b32 v{t+4}, v{t+1}, v{t+2}, vcc")
    e(f"v_mul_u32_u24 v{t+3}, 544, v{vHH}\nv_lshlrev_b32 v{t+4}, 5, v{t+4}\nv_add_u32 v{t+4}, v{t+4}, v{t+3}")
    e(f"s_lshr_b32 s{sT2}, s{sHEAD}, 2\ns_lshl_b32 s{sT3}, s{sW}, 6\ns_add_u32 s{sT2}, s{sT2}, s{sT3}\ns_mul_i32 s{sT2}, s{sT2}, 4352")
    e(f"s_and_b32 s{sT3}, s{sHEAD}, 3\ns_mul_i32 s{sT3}, s{sT3}, 1088\ns_add_u32 s{sT2}, s{sT2}, s{sT3}\ns_add_u32 s{sB3}, s{sT2}, {WS_KVP}")
    B = 64; tk = []
    for k in range(8):
        if k: e(f"s_add_u32 s{sB3}, s{sB3}, {8*4352}")
        for qq in range(2):
            tk.append(e.vm(f"buffer_load_dwordx4 {vr(B+8*k+4*qq,4)}, v{t+4}, {srd(S_WS)}, s{sB3} offen offset:{16*qq} sc1"))
    for k in range(1, 8):
        e.wait_vm(tk[2*k+1])
        for p in range(4): e(f"v_pk_add_f32 {vr(B+2*p,2)}, {vr(B+2*p,2)}, {vr(B+8*k+2*p,2)}")
    e(f"s_lshl_b32 s{sT2}, s{sW}, 11\ns_add_u32 s{sT2}, s{sT2}, {PA_ST}\nv_add_u32 v{t}, s{sT2}, v{vL16}") if False else None
    XB = SL(3)
    e(f"s_lshl_b32 s{sT2}, s{sW}, 11\ns_add_u32 s{sT2}, s{sT2}, {XB}\nv_add_u32 v{t}, s{sT2}, v{vL16}")
    e.lds(f"ds_write_b128 v{t}, {vr(B,4)}"); e.lds(f"ds_write_b128 v{t}, {vr(B+4,4)} offset:1024")
    e.wait_lds_all()
    e("s_barrier")
    l = e.newlabel("La2")
    e(f"s_cmp_lg_u32 s{sW}, 0\ns_cbranch_scc1 {l}")
    e(f"v_add_u32 v{t}, {XB}, v{vL16}")
    for k in range(1, 4):
        e(f"ds_read_b128 {vr(B+8*k,4)}, v{t} offset:{2048*k}\nds_read_b128 {vr(B+8*k+4,4)}, v{t} offset:{2048*k+1024}")
    e("s_waitcnt lgkmcnt(0)")
    for k in range(1, 4):
        for p in range(4): e(f"v_pk_add_f32 {vr(B+2*p,2)}, {vr(B+2*p,2)}, {vr(B+8*k+2*p,2)}")
    for p in range(4): e(f"v_cvt_pk_bf16_f32 v{B+32+p}, v{B+2*p}, v{B+2*p+1}")
    e(f"s_lshl_b32 s{sT2}, s{sHEAD}, 10\ns_add_u32 s{sB3}, s{sT2}, {WS_KVT}")
    e(f"buffer_store_dwordx4 {vr(B+32,4)}, v{vL16}, {srd(S_WS)}, s{sB3} offen sc1")
    e("s_waitcnt vmcnt(0)")
    e(f"s_lshl_b32 s{sT2}, s{sHEAD}, 2\ns_add_u32 s{sT2}, s{sT2}, {WS_FA2}")
    flag_store(e, sT2, "sc1")
    e.label(l)
    e("s_barrier")
    for k in range(1, 7): touch16(e, S_W4, k)
    touch_code(e, "L_b3end")
    set_region_addrs(e)
    w4 = {g: push_w4(q, g) for g in range(5)}
    for g in range(4): push_wo(q, g)
    q.drain()
    e.wait_vm_all()
    for f in w4_to_agpr_fns(e): f()
    e.wait_lds_all()
    p4a_setup(e)
    flags_check(e, WS_FA2, 32, False)
    push_p4a_loads(e, q)
    q.pop(int(X("EPIPQ", 8)))
    q.q = []
    e.wait_vm_all()

def stage_p4(e, q, wo, w4in, tp):
    ACCB, ACCA = 64, 128
    WF = 192
    t = vT0
    l = e.newlabel("Lep")
    e(f"s_or_b32 s{sT2}, s2, s{sW}\ns_cmp_lg_u32 s{sT2}, 0\ns_cbranch_scc1 {l}")
    e(f"s_mov_b32 s{sT2}, {WS_EPOCH}")
    flag_store(e, sT2, "sc1")
    e.label(l)
    e.vm_kinds.append("store"); e.vm_n += 1
    pend = q.q; q.q = []
    tk = push_kvt_loads(e, q)
    kv_items = q.q; q.q = []
    def grab(fn):
        r = fn(); it = q.q; q.q = []; return r, it
    w4in = dict(w4in); w4it = {}
    for g in range(5, 10): w4in[g], w4it[g] = grab(lambda g=g: push_w4(q, g))
    order = kv_items[0:4] + pend[0:2] + kv_items[4:8] + pend[2:]
    for g in range(5, 10): order += w4it[g]
    q.q = order
    q.pop(6)
    G = [208, 210]; OMG = [212, 214]
    e(f"v_lshlrev_b32 v{t}, 2, v{vT}\nv_add_u32 v{t}, {PA_G}, v{t}")
    e(f"s_lshl_b32 s{sT2}, s{sI}, 7\nv_add_u32 v{t+1}, s{sT2}, v{t}\ns_xor_b32 s{sT2}, s{sT2}, 128\nv_add_u32 v{t+2}, s{sT2}, v{t}")
    tg = [e.lds(f"ds_read_b32 v{G[0]}, v{t+1}"), e.lds(f"ds_read_b32 v{G[1]}, v{t+2}")]
    e.wait_lds(tg)
    for i in range(2): e(f"v_sub_f32 v{OMG[i]}, 1.0, v{G[i]}")
    OD = [216, 232]
    OF = [[46, 50], [248, 252]]
    SC = [56, 58]
    def wo_reads(h):
        tok = None
        for c in range(2): tok = tr_frag(e, WF + (h&1)*8 + c*4, vA + 2 + c, h*2048, 1024)
        return tok
    ODS = [[64, 80], [96, 112]]
    def omm_fns(h):
        return [(lambda i=i: e(f"v_mfma_f32_32x32x16_bf16 {vr(ODS[h & 1][i],16)}, {ar(4*h,4)}, {ar(32 + (2*h+i)*4,4)}, 0")) for i in range(2)]
    def oval_fns(h):
        par = h & 1; fns = []
        for i in range(2):
            od = ODS[par][i]
            num = od + (8 if h & 1 else 0); den = od + (0 if h & 1 else 8)
            fns.append(lambda i=i, den=den: e(f"v_add_f32 v{SC[i]}, 0x358637bd, v{den}"))
            fns.append(lambda i=i: e(f"v_rcp_f32 v{SC[i]}, v{SC[i]}"))
        for i in range(2):
            fns.append(lambda i=i: e(f"v_mul_f32 v{SC[i]}, v{SC[i]}, v{G[i]}"))
        for i in range(2):
            od = ODS[par][i]; num = od + (8 if h & 1 else 0)
            for p in range(8): fns.append(lambda i=i, p=p, num=num: e(f"v_mul_f32 v{num+p}, v{num+p}, v{SC[i]}"))
            for p in range(4): fns.append(lambda i=i, p=p, num=num: e(f"v_cvt_pk_bf16_f32 v{OF[par][i]+p}, v{num+2*p}, v{num+2*p+1}"))
        return fns
    def amm_fns(h):
        par = h & 1; fns = []
        for i in range(2):
            for c in range(2):
                fns.append(lambda i=i, c=c: mfma(e, ACCA + (2*i + c)*16, WF + par*8 + c*4, OF[par][i], c=("0" if h == 0 else None)))
        return fns
    def wo_read_fns(h):
        fns = []
        for c in range(2):
            d = WF + (h&1)*8 + c*4
            fns.append(lambda d=d, c=c: e.lds(f"ds_read_b64_tr_b16 {vr(d,2)}, v{vA+2+c} offset:{h*2048}"))
            fns.append(lambda d=d, c=c: e.lds(f"ds_read_b64_tr_b16 {vr(d+2,2)}, v{vA+2+c} offset:{h*2048+1024}"))
        return fns
    def need(h):
        q.wait(tp[(h, 1)]); q.wait(tk[h])
    q.wait(wo[0])
    for f in wo_read_fns(0): f()
    need(0)
    for f in omm_fns(0): f()
    need(1)
    for f in omm_fns(1): f()
    for f in oval_fns(0): f()
    for h in range(8):
        e.wait_lds_all()
        if h + 2 < 8: need(h + 2)
        if h + 1 < 8 and (h + 1) % 2 == 0: q.wait(wo[(h + 1) >> 1])
        if h == 6: e.fb3tok = flags_async(e, f"s_lshl_b32 s{sT2}, s{sU}, 7\ns_add_u32 s{sT2}, s{sT2}, {WS_FB3}", 14)
        mains = amm_fns(h) + (omm_fns(h + 2) if h + 2 < 8 else [])
        fill = (wo_read_fns(h + 1) if h + 1 < 8 else []) + (oval_fns(h + 1) if h + 1 < 8 else [])
        npop = 3 if h < 6 else 0
        for k in range(npop): fill.insert(6 + 9*k, lambda: q.pop(1))
        interleave(mains, fill)
    stamp(e, "p4A")
    q.drain()
    w4 = dict(w4in); w4.update({g: push_w4(q, g) for g in range(10, 14)})
    q.drain()
    flags_wait(e, e.fb3tok, 14)
    stamp(e, "p4pollB")
    HD = 16
    th = {}
    def hpush(s):
        for i in range(2):
            def fn(s=s, i=i):
                e(f"s_add_u32 s{sQA}, s{sB6+i}, {(s >> 1)*8192 + (s & 1)*1024}")
                return e.vm(f"buffer_load_dwordx4 {ar(((s % HD)*2 + i)*4, 4)}, v{vL16}, {srd(S_WS)}, s{sQA} offen sc1")
            th[(s, i)] = q.push(fn)
    for s in range(HD): hpush(s)
    q.pop(10)
    WFS = [192, 200, 216]
    def read_fns(s):
        if s < 10 or s >= 28: return []
        g = s >> 1; reg, slot = W4LOC[g]; fns = []
        for c in range(2):
            a, off = region_addr(reg, slot, c); off += (s & 1)*2048; d = WFS[s % 3] + 4*c
            fns.append(lambda a=a, off=off, d=d: e.lds(f"ds_read_b64_tr_b16 {vr(d,2)}, v{a} offset:{off}"))
            fns.append(lambda a=a, off=off, d=d: e.lds(f"ds_read_b64_tr_b16 {vr(d+2,2)}, v{a} offset:{off+1024}"))
        return fns
    rdtok = {}
    for s in range(28):
        if X("FINE") and s in (1, 5, 10, 16, 22): stamp(e, f"p4s{s}")
        if s + 2 >= 10 and (s + 2) % 2 == 0 and (s + 2) < 28: q.wait(w4[(s + 2) >> 1])
        if s in rdtok: e.wait_lds(rdtok[s])
        q.wait(th[(s, 1)])
        mains = []
        for i in range(2):
            for c in range(2):
                z = "0" if s == 0 else None
                if s < 10:
                    mains.append(lambda i=i, c=c, z=z: mfma(e, ACCB + (2*i + c)*16, W4A + (2*s + c)*4, ((s % HD)*2 + i)*4, aa=True, ba=True, c=z))
                else:
                    mains.append(lambda i=i, c=c, z=z: mfma(e, ACCB + (2*i + c)*16, WFS[s % 3] + 4*c, ((s % HD)*2 + i)*4, ba=True, c=z))
        toks = []
        fl = [(lambda f=f: toks.append(f())) for f in read_fns(s + 2)]
        fl.insert(0, lambda: q.pop(1)); fl.insert(min(3, len(fl)), lambda: q.pop(1))
        interleave(mains, fl)
        if toks: rdtok[s + 2] = toks[-1]
        if s + HD < 28: hpush(s + HD)
    stamp(e, "p4B")
    aw = vA + 8
    e(f"s_lshl_b32 s{sT0}, s{sW}, 14\nv_add_u32 v{aw}, s{sT0}, v{vL16}")
    for k in range(1, 4):
        e(f"s_xor_b32 s{sT0}, s{sW}, {k}\ns_lshl_b32 s{sT0}, s{sT0}, 14\nv_add_u32 v{aw+k}, s{sT0}, v{vL16}")
    def comb(qq):
        i = qq >> 1
        for p in range(8):
            e(f"v_pk_fma_f32 {vr(ACCB+16*qq+2*p,2)}, {vr(ACCB+16*qq+2*p,2)}, {vr(OMG[i],2)}, {vr(ACCA+16*qq+2*p,2)} op_sel_hi:[1,0,1]")
    for k in range(1, 4):
        comb(k)
        for rg in range(4): e.lds(f"ds_write_b128 v{aw}, {vr(ACCB + 16*k + 4*rg, 4)} offset:{(k-1)*4096 + rg*1024}")
    comb(0)
    for k in range(8):
        e(f"v_lshlrev_b32 v{t}, 16, v{vRES+k}\nv_and_b32 v{t+1}, 0xffff0000, v{vRES+k}")
        e(f"v_pk_fma_f32 {vr(ACCB+2*k,2)}, {vr(t,2)}, {vr(OMG[0],2)}, {vr(ACCB+2*k,2)} op_sel_hi:[1,0,1]")
    e.wait_lds_all()
    e("s_barrier")
    toks = []
    for k in range(1, 4):
        for rg in range(4): toks.append(e.lds(f"ds_read_b128 {vr(ACCB + 16*k + 4*rg, 4)}, v{aw+k} offset:{(k-1)*4096 + rg*1024}"))
    for k in range(1, 4):
        e.wait_lds(toks[4*k-1])
        for p in range(8): e(f"v_pk_add_f32 {vr(ACCB+2*p,2)}, {vr(ACCB+2*p,2)}, {vr(ACCB+16*k+2*p,2)}")
    stamp(e, "p4red")
    for k in range(8):
        e(f"v_cvt_pk_bf16_f32 v{128+k}, v{ACCB+2*k}, v{ACCB+2*k+1}")
    for pr in range(2):
        a, b = 128 + 4*pr, 128 + 4*pr + 2
        e(f"v_permlane32_swap_b32 v{a}, v{b}\nv_permlane32_swap_b32 v{a+1}, v{b+1}")
    e(f"s_lshl_b32 s{sT2}, s{sTB}, 6\ns_lshl_b32 s{sT3}, s{sI}, 5\ns_add_u32 s{sT2}, s{sT2}, s{sT3}")
    e(f"v_add_u32 v{t}, s{sT2}, v{vT}\nv_lshlrev_b32 v{t}, 10, v{t}")
    e(f"s_lshl_b32 s{sT2}, s{sFB}, 7\ns_lshl_b32 s{sT3}, s{sC}, 6\ns_add_u32 s{sT2}, s{sT2}, s{sT3}")
    e(f"v_lshlrev_b32 v{t+1}, 4, v{vHH}\nv_add3_u32 v{t}, v{t}, v{t+1}, s{sT2}")
    for pr in range(2):
        e.vm(f"buffer_store_dwordx4 {vr(128+4*pr,4)}, v{t}, {srd(S_OUT)}, 0 offen offset:{32*pr} {X('OUTSC', '')}", "store")

def build():
    e = E(); q = VQ(e)
    prologue(e, q)
    xrefs, wrefs = {}, {}
    AT = X("AT1", "ab4")
    ALLW = [(S_WQKV, 512*3072), (S_W1, 524288), (S_W2, 524288), (S_W3, 512*3584), (S_WO, 524288), (S_W4, 1792*1024)]
    def fg():
        e(f"s_mov_b32 m0, {PA_GW}")
        return e.vm(f"buffer_load_dwordx4 v{vL16}, {srd(S_GW)}, 0 offen lds")
    def t_ab(): touch_all(e, [(S_AX, 2097152), (S_WQKV, 512*3072), (S_W1, 524288)], 32)
    def t_all():
        if AT == "ab4":
            touch_all(e, [(S_WQKV, 512*3072), (S_AX, 2097152), (S_W1, 524288)], 32)
            touch_all(e, [(S_W2, 524288)], 4)
        elif AT == "ab3": touch_all(e, [(S_WQKV, 512*3072), (S_AX, 2097152), (S_W1, 524288), (S_W2, 524288), (S_W3, 512*3584)], 64)
        else: touch_all(e, ALLW, 64)
    ORD = X("ORD", "g w x T C").replace("_", " ").split()
    for o in ORD:
        if o == "T" and X("ALLTOUCH", "1") != "0": q.push(t_ab if AT == "ab" else t_all)
        if o == "g": q.push(fg)
        if o == "x": xrefs[0] = push_x(q, 0)
        if o == "w": wrefs[0] = push_wab(q, 0)
        if o == "C" and X("CT2", "0") != "0": q.push(lambda: touch_chunks(e, 1, 8))
        if o == "S": q.push(lambda: touch_slow_ab(e))
    q.drain()
    wrefs[1] = push_wab(q, 1); xrefs[1] = push_x(q, 1)
    for c in range(2, 5): wrefs[c] = push_wab(q, c)
    common_addr(e)
    q.pop(4)
    for k in range(4): e(f"s_mov_b32 s{S_W3T+k}, s{S_W3+k}")
    e(f"s_cmp_ge_u32 s{sV}, 14\ns_cselect_b32 s{S_W3+2}, 0, s{S_W3+2}")
    e(f"s_mov_b32 s{sC_LOG2E}, 0x3fb8aa3b\ns_mov_b32 s{sC_LOG2E+1}, 0x3fb8aa3b")
    c0 = -2.0 * 0.7978845608028654 * 1.4426950408889634; c1 = c0 * 0.044715
    e(f"s_mov_b32 s{sC_G1}, {f2u(c1):#x}\ns_mov_b32 s{sC_G1+1}, {f2u(c1):#x}")
    e(f"s_mov_b32 s{sC_EPS6}, 0x358637bd\ns_mov_b32 s{sC_EPS6+1}, 0x358637bd\ns_mov_b32 s{sONES}, 0x3f803f80")
    e(f"v_mov_b32 v{vG0C}, {f2u(c0):#x}\nv_mov_b32 v{vG0C+1}, {f2u(c0):#x}")
    stamp(e, "iss14")
    e("s_waitcnt lgkmcnt(0)")
    e(f"s_mul_i32 s{sTAG}, s{sTAG}, 1664525\ns_add_u32 s{sTAG}, s{sTAG}, 1013904223")
    l = e.newlabel("Lpub0")
    e(f"s_cmp_lg_u32 s{sW}, 0\ns_cbranch_scc1 {l}")
    e(teamflag(WS_PUB))
    e(f"s_and_b32 s{sT3}, s{sTAG}, 0xfffffff0\ns_or_b32 s{sT3}, s{sT3}, s{sXCC}")
    e(f"v_mov_b32 v{vT0}, s{sT3}\nv_mov_b32 v{vT0+1}, 0\nv_cmp_eq_u32 vcc, 0, v{vLANE}\ns_and_saveexec_b64 s[{sSAVE}:{sSAVE+1}], vcc")
    e(f"buffer_store_dword v{vT0}, v{vT0+1}, {srd(S_WS)}, s{sT2} offen sc1")
    e(f"s_mov_b64 exec, s[{sSAVE}:{sSAVE+1}]")
    e.label(l)
    e.vm_kinds.append("store"); e.vm_n += 1
    stamp(e, "pro")
    w2refs, tokh = stage_ab1(e, q, xrefs, wrefs)
    stamp(e, "hst")
    a1_epilogue(e, q, w2refs, tokh)
    stamp(e, "a1epi")
    flags_wait(e, e.fb1tok, 8)
    stamp(e, "b2poll")
    tok = stage_b2(e, q)
    kv_store(e)
    tokkv = e.vm_n - 1
    lk = e.newlabel("Lcs")
    e(f"s_cmp_ge_u32 s{sV}, 14\ns_cbranch_scc1 {lk}")
    b3_colsum(e, 0)
    e.label(lk)
    l6 = e.skip_begin(f"s_cmp_lg_u32 s{sI}, 0"); e("s_waitcnt vmcnt(6)"); e.skip_end(l6)
    l2_ = e.skip_begin(f"s_cmp_eq_u32 s{sI}, 0"); e("s_waitcnt vmcnt(2)"); e.skip_end(l2_)
    e.vm_done = tok + 1
    e("s_barrier")
    l = e.newlabel("Lpub")
    e(f"s_cmp_lg_u32 s{sW}, 0\ns_cbranch_scc1 {l}")
    e(teamflag(WS_FB2))
    l2 = e.newlabel("Lpub"); l3 = e.newlabel("Lpub")
    e(f"s_cmp_eq_u32 s{sPURE}, 0\ns_cbranch_scc1 {l2}")
    flag_store(e, sT2, "")
    e(f"s_branch {l3}")
    e.label(l2)
    flag_store(e, sT2, "sc1")
    e.label(l3)
    e.label(l)
    e.vm_kinds.append("store"); e.vm_n += 1
    stamp(e, "b2pub")
    touch_code(e, "L_b3start")
    touch16(e, S_WO, 1); touch16(e, S_W4, 0)
    e.tokkv = tokkv
    la2 = e.newlabel("LA2"); lj = e.newlabel("LJ")
    e(f"s_cmp_ge_u32 s{sV}, 14\ns_cbranch_scc1 {la2}")
    e.L.append("L_b3start: ; @soft")
    e.fb2tok = flags_async(e, f"s_lshl_b32 s{sT2}, s{sU}, 7\ns_add_u32 s{sT2}, s{sT2}, {WS_FB2}", 16)
    b3_colsum(e, 1)
    stamp(e, "b3cs")
    wo, w4, tp = stage_b3(e, q)
    snap = (e.vm_n, list(e.vm_kinds), e.vm_done, e.ld_n, e.ld_done); qsnap = list(q.q); q.q = []
    e(f"s_branch {lj}")
    e.label(la2)
    stage_a2(e, q)
    e.label(lj)
    e.vm_n, e.vm_kinds, e.vm_done, e.ld_n, e.ld_done = snap
    q.q = qsnap
    e.wait_lds_all()
    stage_p4(e, q, wo, w4, tp)
    stamp(e, "end")
    stamp_flush(e)
    e.wait_vm_all()
    e.label("L_end")
    e("s_endpgm")
    e.label("L_codeend")
    body = e.text()
    return kernel_file([dict(name=KN, body=body, grid=256, block=256, lds=LDS_BYTES, vgpr=512, accum=256, sgpr=102)]), e

if __name__ == "__main__":
    txt, e = build()
    open(sys.argv[1], "w").write(txt)
    n = sum(1 for l in txt.split("\n") if l.startswith("    ") and not l.strip().startswith(";"))
    print("instructions:", n, "nops inserted:", e.nops_inserted)
    open(sys.argv[1] + ".stamps", "w").write(" ".join(STAMPS))
```

```python
import sys, os, struct
sys.path.insert(0, os.path.dirname(os.path.abspath(__file__)))
from emit import E
from asmlib import KN, kernel_file
def X(n, d=None):
    v = os.environ.get(n)
    return v if v is not None else d
WS_EPOCH = 0x0
WS_PUB, WS_FB1, WS_FB2, WS_FB3 = 0x1000, 0x2000, 0x3000, 0x4000
WS_FA1 = 0x5000
WS_FA2 = 0x6000
WS_TS = 0x20000
WS_HSH, WS_X1, WS_PQ, WS_ST2, WS_KVT, WS_KVP, WS_H2 = 0x100000, 0x300000, 0x500000, 0x700000, 0x780000, 0x800000, 0x1000000
WS_SIZE = 0x10000000
XM = 4352
def SL(k): return 69632 + 16384 * k
PA = 151552
PA_GW, PA_G, PA_ST, PA_CS3 = PA, PA + 1024, PA + 1536, PA + 5632
LDS_BYTES = 163840
P4B = 36864
S_AX, S_WQKV, S_WO, S_DS, S_W1, S_W2, S_W3, S_W4, S_OUT, S_WS, S_GW = 4, 8, 12, 16, 20, 24, 28, 32, 36, 40, 44
sW, sTB, sFB, sU, sV, sTAG, sPURE, sXCC = 48, 49, 50, 51, 52, 53, 54, 55
sT0, sT1, sT2, sT3, sT4, sT5 = 56, 57, 58, 59, 60, 61
sSAVE = 62
sQA, sQW, sQSTEP, sJ = 64, 65, 66, 67
sB0, sB1, sB2, sB3 = 68, 69, 70, 71
sC_LOG2E, sC_G1, sC_EPS6 = 72, 74, 76
sONES = 78
sB4, sB5, sB6, sB7 = 80, 81, 82, 83
sI, sC, sSPIN, sDELTA, sHEAD = 90, 91, 93, 94, 95
sFLG = 79
S_W3F = S_W3
S_W3T = 44
SIZES = {S_WQKV: 512*3072, S_W1: 524288, S_W2: 524288, S_W3: 512*3584, S_WO: 524288, S_W4: 1792*1024}
vLANE, vT, vHH, vL16, vL128 = 1, 2, 3, 4, 5
vAN, vAP = 6, 8
vW1K, vW3, vWAB, vXO, vXE = 10, 14, 18, 22, 26
vJUNK = 27
vG0C = 28
vRES = 30
vA = 38
vT0 = 54
vPUB = 63
vTCH = 50
vTS = 0
PROFILE = not X("NOPROF")
STAMPS = []
def srd(n): return f"s[{n}:{n+3}]"
def vr(a, n=1): return f"v{a}" if n == 1 else f"v[{a}:{a+n-1}]"
def ar(a, n=1): return f"a{a}" if n == 1 else f"a[{a}:{a+n-1}]"
def f2u(x): return struct.unpack("<I", struct.pack("<f", x))[0]

class Ref:
    def __init__(self): self.tok = None
class VQ:
    def __init__(self, e): self.e = e; self.q = []
    def push(self, fn):
        r = Ref(); self.q.append((fn, r)); return r
    def pop(self, n=1):
        for _ in range(n):
            if not self.q: return
            fn, r = self.q.pop(0); r.tok = fn()
    def force(self, r):
        while r.tok is None: self.pop(1)
    def wait(self, r):
        if isinstance(r, (list, tuple)): r = r[-1]
        self.force(r); self.e.wait_vm(r.tok)
    def drain(self): self.pop(len(self.q))
    def take(self, n=None):
        n = len(self.q) if n is None else min(n, len(self.q))
        items, self.q = self.q[:n], self.q[n:]
        return Stag(self.e, items)
class Stag:
    def __init__(self, e, items): self.e = e; self.items = items; self.n0 = None
    def point(self, k):
        e = self.e
        if not self.items: return
        if k == 0: self.n0 = e.vm_n
        else:
            assert e.vm_n == self.n1, "VMEM issued inside a stagger region"
            del e.vm_kinds[self.n0:]; e.vm_n = self.n0
        l = e.skip_begin(f"s_cmp_lg_u32 s{sW}, {k}")
        for fn, r in self.items: r.tok = fn()
        e.skip_end(l)
        self.n1 = e.vm_n

def stamp(e, name):
    if not PROFILE: return
    idx = len(STAMPS); STAMPS.append(str(name)); assert idx < 62
    e(f"s_memtime s[96:97]\ns_waitcnt lgkmcnt(0)\ns_sub_u32 s96, s96, s98\nv_writelane_b32 v{vTS}, s96, {idx}")
    e.ld_done = e.ld_n
def stamp_flush(e):
    if not PROFILE: return
    e(f"s_memrealtime s[96:97]\ns_waitcnt lgkmcnt(0)\nv_writelane_b32 v{vTS}, s96, 63\nv_writelane_b32 v{vTS}, s100, 62")
    e(f"s_lshl_b32 s{sT0}, s2, 2\ns_add_u32 s{sT0}, s{sT0}, s{sW}\ns_lshl_b32 s{sT0}, s{sT0}, 8\ns_add_u32 s{sT0}, s{sT0}, {WS_TS}")
    e(f"v_lshlrev_b32 v{vT0}, 2, v{vLANE}")
    e.vm(f"buffer_store_dword v{vTS}, v{vT0}, {srd(S_WS)}, s{sT0} offen", "store")

def push_dma_group(q, voff, srdn, setup, n=4):
    e = q.e; refs = []
    for j in range(n):
        def fn(j=j):
            if j == 0: e(setup)
            off = f" offset:{1024*j}" if j else ""
            if X("NOVM"): return -1
            return e.vm(f"buffer_load_dwordx4 v{voff+j}, {srd(srdn)}, s{sQA} offen{off} lds")
        refs.append(q.push(fn))
    return refs
def push_touch(q, srdn, share, k0, n):
    e = q.e
    for k in range(n):
        def fn(k=k):
            e(f"s_mul_i32 s{sQA}, s{sJ}, {share}\ns_lshl_b32 s{sT5}, s{sW}, 13\ns_add_u32 s{sQA}, s{sQA}, s{sT5}")
            if k0 + k: e(f"s_add_u32 s{sQA}, s{sQA}, {(k0+k)*32768}")
            return e.vm(f"buffer_load_dword v{vJUNK}, v{vL128}, {srd(srdn)}, s{sQA} offen")
        q.push(fn)

def touch_blk(e, srdn, blk0):
    e(f"s_lshl_b32 s{sQA}, s{sJ}, 2\ns_add_u32 s{sQA}, s{sQA}, s{sW}" + (f"\ns_add_u32 s{sQA}, s{sQA}, {blk0}" if blk0 else "") + f"\ns_lshl_b32 s{sQA}, s{sQA}, 13")
    return e.vm(f"buffer_load_dword v{vJUNK}, v{vL128}, {srd(srdn)}, s{sQA} offen")
def touch16(e, srdn, k):
    en = X("T16", "wo,w4").split(",")
    nm = {S_W2: "w2", S_W3T: "w3", S_WO: "wo", S_W4: "w4"}[srdn]
    if nm not in en: return None
    e(f"s_lshl_b32 s{sQA}, s{sJ}, 2\ns_add_u32 s{sQA}, s{sQA}, s{sW}\ns_lshl_b32 s{sQA}, s{sQA}, 11" + (f"\ns_add_u32 s{sQA}, s{sQA}, {k*262144}" if k else ""))
    e("s_mov_b64 exec, 0xffff")
    tk = e.vm(f"buffer_load_dword v{vJUNK}, v{vL128}, {srd(srdn)}, s{sQA} offen")
    e("s_mov_b64 exec, -1")
    return tk
def touch_chunk(e, c):
    e(f"s_lshl_b32 s{sQA}, s{sJ}, 2\ns_add_u32 s{sQA}, s{sQA}, s{sW}\ns_cmp_lt_u32 s{sQA}, 96")
    e(f"s_cselect_b32 s84, s{S_WQKV}, s{S_W1}\ns_cselect_b32 s85, s{S_WQKV+1}, s{S_W1+1}\ns_cselect_b32 s86, s{S_WQKV+2}, s{S_W1+2}\ns_mov_b32 s87, 0x20000")
    e(f"s_mov_b32 s{sT5}, {c*32768 - 96*1024}\ns_cselect_b32 s{sT5}, {c*98304}, s{sT5}\ns_lshl_b32 s{sQA}, s{sQA}, 10\ns_add_u32 s{sQA}, s{sQA}, s{sT5}")
    e("s_mov_b64 exec, 0xff")
    tk = e.vm(f"buffer_load_dword v{vJUNK}, v{vL128}, s[84:87], s{sQA} offen")
    e("s_mov_b64 exec, -1")
    return tk
def set_exec(n):
    if n <= 32: return f"s_mov_b64 exec, {hex((1 << n) - 1)}" if n < 32 else "s_mov_b32 exec_lo, -1\ns_mov_b32 exec_hi, 0"
    return f"s_mov_b32 exec_hi, {hex((1 << (n - 32)) - 1)}"
def touch_chunks(e, c0, nch):
    e(f"s_lshl_b32 s{sQA}, s{sJ}, 2\ns_add_u32 s{sQA}, s{sQA}, s{sW}\ns_cmp_lt_u32 s{sQA}, 96")
    e(f"s_cselect_b32 s84, s{S_WQKV}, s{S_W1}\ns_cselect_b32 s85, s{S_WQKV+1}, s{S_W1+1}\ns_cselect_b32 s86, s{S_WQKV+2}, s{S_W1+2}\ns_mov_b32 s87, 0x20000")
    e(f"s_mov_b32 s{sT5}, 32768\ns_cselect_b32 s{sT5}, 98304, s{sT5}")
    e(f"v_lshrrev_b32 v{vTCH}, 3, v{vLANE}\nv_mul_lo_u32 v{vTCH}, v{vTCH}, s{sT5}\nv_and_b32 v{vTCH+1}, 7, v{vLANE}\nv_lshlrev_b32 v{vTCH+1}, 7, v{vTCH+1}\nv_add_u32 v{vTCH}, v{vTCH}, v{vTCH+1}")
    e(f"s_mul_i32 s{sT5}, s{sT5}, {c0}\ns_cmp_lt_u32 s{sQA}, 96\ns_cselect_b32 s83, 0, 96\ns_sub_u32 s{sQA}, s{sQA}, s83\ns_lshl_b32 s{sQA}, s{sQA}, 10\ns_add_u32 s{sQA}, s{sQA}, s{sT5}")
    if nch < 8: e(set_exec(8*nch))
    tk = e.vm(f"buffer_load_dword v{vJUNK}, v{vTCH}, s[84:87], s{sQA} offen")
    if nch < 8: e("s_mov_b64 exec, -1")
    return tk
def touch_slow_ab(e, ch=3):
    e(f"s_lshl_b32 s{sQA}, s{sJ}, 2\ns_add_u32 s{sQA}, s{sQA}, s{sW}\ns_cmp_lt_u32 s{sQA}, 96")
    e(f"s_cselect_b32 s84, s{S_WQKV}, s{S_W1}\ns_cselect_b32 s85, s{S_WQKV+1}, s{S_W1+1}\ns_cselect_b32 s86, s{S_WQKV+2}, s{S_W1+2}\ns_mov_b32 s87, 0x20000")
    e(f"s_cselect_b32 s{sT5}, 0, 96\ns_sub_u32 s{sQA}, s{sQA}, s{sT5}\ns_lshl_b32 s{sQA}, s{sQA}, 14\ns_add_u32 s{sQA}, s{sQA}, {ch*128}")
    e(f"v_lshlrev_b32 v{vTCH}, 10, v{vLANE}")
    e("s_mov_b64 exec, 0xffff")
    tk = e.vm(f"buffer_load_dword v{vJUNK}, v{vTCH}, s[84:87], s{sQA} offen")
    e("s_mov_b64 exec, -1")
    return tk
def touch_slow(e, srdn, nrows, ch=3):
    per = nrows // 128
    e(f"s_lshl_b32 s{sQA}, s{sJ}, 2\ns_add_u32 s{sQA}, s{sQA}, s{sW}\ns_mul_i32 s{sQA}, s{sQA}, {per*1024}\ns_add_u32 s{sQA}, s{sQA}, {ch*128}")
    e(f"v_lshlrev_b32 v{vTCH}, 10, v{vLANE}")
    e(set_exec(per))
    tk = e.vm(f"buffer_load_dword v{vJUNK}, v{vTCH}, {srd(srdn)}, s{sQA} offen")
    e("s_mov_b64 exec, -1")
    return tk
def touch_all(e, segs, lanes):
    blk = lanes * 128
    e(f"s_lshl_b32 s{sQA}, s2, 2\ns_add_u32 s{sQA}, s{sQA}, s{sW}")
    sr0 = segs[0][0]
    e(f"s_mov_b32 s84, s{sr0}\ns_mov_b32 s85, s{sr0+1}\ns_mov_b32 s86, {segs[0][1]}\ns_mov_b32 s87, 0x20000\ns_mov_b32 s{sT5}, 0")
    lo = 0
    for k in range(1, len(segs)):
        assert segs[k-1][1] % blk == 0
        lo += segs[k-1][1] // blk
        sr = segs[k][0]
        e(f"s_cmp_ge_u32 s{sQA}, {lo}\ns_cselect_b32 s84, s{sr}, s84\ns_cselect_b32 s85, s{sr+1}, s85\ns_cselect_b32 s86, {segs[k][1]}, s86\ns_cselect_b32 s{sT5}, {lo}, s{sT5}")
    assert lo + -(-segs[-1][1] // blk) <= 1024, lo
    e(f"s_sub_u32 s{sQA}, s{sQA}, s{sT5}\ns_mul_i32 s{sQA}, s{sQA}, {blk}")
    if lanes < 64: e(set_exec(lanes))
    tk = e.vm(f"buffer_load_dword v{vJUNK}, v{vL128}, s[84:87], s{sQA} offen")
    if lanes < 64: e("s_mov_b64 exec, -1")
    return tk
def touch_code(e, label):
    if X("CODETOUCH", "0") == "0": return None
    e(f"s_lshl_b32 s{sT5}, s{sW}, 13\ns_add_u32 s{sT5}, s{sT5}, {label}-L_pc\ns_min_u32 s{sT5}, s{sT5}, L_codeend-L_pc-8192")
    e(f"s_add_u32 s84, s88, s{sT5}\ns_addc_u32 s85, s89, 0")
    e(f"v_mov_b32 v{vTCH+1}, s85\nv_add_co_u32 v{vTCH}, vcc, s84, v{vL128}\nv_addc_co_u32 v{vTCH+1}, vcc, 0, v{vTCH+1}, vcc")
    return e.vm(f"global_load_dword v{vJUNK}, v[{vTCH}:{vTCH+1}], off")
def touch_dst(e, setup_fn, nlanes):
    if X("DSTTOUCH", "1") == "0": return None
    reg = setup_fn()
    if nlanes < 64: e(f"s_mov_b64 exec, {hex((1 << nlanes) - 1)}")
    tk = e.vm(f"buffer_load_dword v{vJUNK}, v{vL128}, {srd(S_WS)}, s{reg} offen")
    if nlanes < 64: e("s_mov_b64 exec, -1")
    return tk
def touch_round0(e):
    e(f"s_lshl_b32 s{sQA}, s{sJ}, 2\ns_add_u32 s{sQA}, s{sQA}, s{sW}\ns_cmp_lt_u32 s{sQA}, 64")
    for k in range(4): e(f"s_cselect_b32 s{S_DS+k}, s{S_WO+k}, s{S_W4+k}")
    e(f"s_cselect_b32 s{sT5}, 0, 64\ns_sub_u32 s{sQA}, s{sQA}, s{sT5}\ns_lshl_b32 s{sQA}, s{sQA}, 13")
    return e.vm(f"buffer_load_dword v{vJUNK}, v{vL128}, {srd(S_DS)}, s{sQA} offen")
def set_voffW(e, dst, ld):
    t = vT0
    e(f"v_lshrrev_b32 v{t}, 3, v{vLANE}\nv_mul_u32_u24 v{t}, {ld}, v{t}")
    e(f"v_lshrrev_b32 v{t+1}, 2, v{vLANE}\nv_lshrrev_b32 v{t+2}, 4, v{vLANE}\nv_xor_b32 v{t+1}, v{t+1}, v{t+2}\nv_and_b32 v{t+1}, 1, v{t+1}")
    e(f"v_lshlrev_b32 v{t+1}, 6, v{t+1}\nv_and_b32 v{t+2}, 3, v{vLANE}\nv_lshlrev_b32 v{t+2}, 4, v{t+2}")
    e(f"v_add3_u32 v{dst}, v{t}, v{t+1}, v{t+2}")
    for j in range(1, 4): e(f"v_add_u32 v{dst+j}, {j*(8*ld-1024)}, v{dst}")

def flag_store(e, soff, sc):
    e(f"v_mov_b32 v{vT0}, s{sTAG}\nv_mov_b32 v{vT0+1}, 0")
    e(f"v_cmp_eq_u32 vcc, 0, v{vLANE}\ns_and_saveexec_b64 s[{sSAVE}:{sSAVE+1}], vcc")
    e(f"buffer_store_dword v{vT0}, v{vT0+1}, {srd(S_WS)}, s{soff} offen {sc}")
    e(f"s_mov_b64 exec, s[{sSAVE}:{sSAVE+1}]")
def publish(e, setup, always_slow=False, upto=None):
    if upto is None: e.wait_vm_all()
    else: e.wait_vm(upto)
    e("s_barrier")
    l = e.newlabel("Lpub")
    e(f"s_cmp_lg_u32 s{sW}, 0\ns_cbranch_scc1 {l}")
    e(setup)
    if always_slow: flag_store(e, sT2, "sc1")
    else:
        l2 = e.newlabel("Lpub"); l3 = e.newlabel("Lpub")
        e(f"s_cmp_eq_u32 s{sPURE}, 0\ns_cbranch_scc1 {l2}")
        flag_store(e, sT2, "")
        e(f"s_branch {l3}")
        e.label(l2)
        flag_store(e, sT2, "sc1")
        e.label(l3)
    e.label(l)
    e.vm_kinds.append("store"); e.vm_n += 1
def poll(e, setup, nflags):
    l = e.newlabel("Lpoll"); lx = e.newlabel("Lpollx"); ls = e.newlabel("Lpolls")
    e(f"s_cmp_lg_u32 s{sW}, 0\ns_cbranch_scc1 {ls}")
    e(setup)
    e(f"v_lshlrev_b32 v{vT0+1}, 2, v{vLANE}")
    e(f"v_cmp_gt_u32 vcc, {nflags}, v{vLANE}\ns_and_saveexec_b64 s[{sSAVE}:{sSAVE+1}], vcc")
    e(f"s_mov_b32 s{sSPIN}, 0x40000")
    e.label(l)
    e(f"s_sub_u32 s{sSPIN}, s{sSPIN}, 1\ns_cmp_eq_u32 s{sSPIN}, 0\ns_cbranch_scc1 {lx}")
    e(f"buffer_load_dword v{vT0}, v{vT0+1}, {srd(S_WS)}, s{sT2} offen sc1")
    e("s_waitcnt vmcnt(0)")
    e(f"v_cmp_ne_u32 vcc, s{sTAG}, v{vT0}")
    e(f"s_cbranch_vccnz {l}")
    e.label(lx)
    e(f"s_mov_b64 exec, s[{sSAVE}:{sSAVE+1}]")
    e.label(ls)
    e("s_barrier")
def wt(name): return name in X("WT", "pq,h2").split(",")
def flags_async(e, setup, nflags):
    e(setup)
    e(f"s_mov_b32 s{sFLG}, s{sT2}")
    e(f"v_min_u32 v{vPUB}, {nflags-1}, v{vLANE}\nv_lshlrev_b32 v{vPUB}, 2, v{vPUB}")
    return e.vm(f"buffer_load_dword v{vPUB}, v{vPUB}, {srd(S_WS)}, s{sFLG} offen sc1")
def flags_wait(e, tok, nflags):
    e.wait_vm(tok)
    l = e.newlabel("Lfw"); lo = e.newlabel("Lfwo"); t = vT0
    e(f"s_mov_b32 s{sSPIN}, 0x40000")
    e.label(l)
    e(f"v_cmp_ne_u32 vcc, s{sTAG}, v{vPUB}\ns_cbranch_vccz {lo}")
    e(f"s_sub_u32 s{sSPIN}, s{sSPIN}, 1\ns_cmp_eq_u32 s{sSPIN}, 0\ns_cbranch_scc1 {lo}")
    e(f"v_min_u32 v{t+1}, {nflags-1}, v{vLANE}\nv_lshlrev_b32 v{t+1}, 2, v{t+1}")
    if int(X("SLP", 0)): e(f"s_sleep {int(X('SLP', 0))}")
    e(f"buffer_load_dword v{vPUB}, v{t+1}, {srd(S_WS)}, s{sFLG} offen sc1\ns_waitcnt vmcnt(0)\ns_branch {l}")
    e.label(lo)
def stores2(e, fn, name=None):
    if name and wt(name):
        fn("sc1"); return e.vm_n - 1
    l2 = e.newlabel("Lst"); l3 = e.newlabel("Lst")
    e(f"s_cmp_eq_u32 s{sPURE}, 0\ns_cbranch_scc1 {l2}")
    n0 = e.vm_n; fn(""); n1 = e.vm_n
    e(f"s_branch {l3}")
    e.label(l2)
    del e.vm_kinds[n0:]; e.vm_n = n0
    fn("sc1"); assert e.vm_n == n1
    e.label(l3)
    return n1 - 1
def tr_frag(e, dst, addr, off, second, acc=False):
    r = ar if acc else vr
    e.lds(f"ds_read_b64_tr_b16 {r(dst,2)}, v{addr} offset:{off}")
    return e.lds(f"ds_read_b64_tr_b16 {r(dst+2,2)}, v{addr} offset:{off+second}")
def mfma(e, d, a, b, c=None, aa=False, ba=False):
    A = ar(a, 4) if aa else vr(a, 4); B = ar(b, 4) if ba else vr(b, 4)
    C = vr(d, 16) if c is None else c
    e(f"v_mfma_f32_32x32x16_bf16 {vr(d,16)}, {A}, {B}, {C}")
def interleave(mains, fillers):
    n = len(mains); m = len(fillers); k = 0
    for i, f in enumerate(mains):
        f()
        upto = (m * (i + 1) + n - 1) // n if i + 1 < n else m
        while k < upto: fillers[k](); k += 1
def gelu_pairs(e, accs, rstd, tmp, outs, q=None, npop=0):
    n = len(accs); P = lambda r: vr(r, 2)
    steps = [
        lambda k: f"v_pk_mul_f32 {P(accs[k])}, {P(accs[k])}, {P(rstd)} op_sel_hi:[1,0]",
        lambda k: f"v_pk_mul_f32 {P(tmp[k])}, {P(accs[k])}, {P(accs[k])}",
        lambda k: f"v_pk_fma_f32 {P(tmp[k])}, {P(tmp[k])}, s[{sC_G1}:{sC_G1+1}], {P(vG0C)}",
        lambda k: f"v_pk_mul_f32 {P(tmp[k])}, {P(tmp[k])}, {P(accs[k])}",
        lambda k: f"v_exp_f32 v{tmp[k]}, v{tmp[k]}\nv_exp_f32 v{tmp[k]+1}, v{tmp[k]+1}",
        lambda k: f"v_pk_add_f32 {P(tmp[k])}, {P(tmp[k])}, 1.0 op_sel_hi:[1,0]",
        lambda k: f"v_rcp_f32 v{tmp[k]}, v{tmp[k]}\nv_rcp_f32 v{tmp[k]+1}, v{tmp[k]+1}",
        lambda k: f"v_pk_mul_f32 {P(accs[k])}, {P(accs[k])}, {P(tmp[k])}",
        lambda k: f"v_cvt_pk_bf16_f32 v{outs[k]}, v{accs[k]}, v{accs[k]+1}"]
    left = npop
    for si, st in enumerate(steps):
        for k in range(n): e(st(k))
        if q is not None and left > 0:
            m = -(-left // (len(steps) - si)); q.pop(m); left -= m
def halfsum(e, r, t):
    e(f"v_mov_b32 v{t}, v{r}\nv_permlane32_swap_b32 v{r}, v{t}\nv_add_f32 v{r}, v{r}, v{t}")
def corr_frags(e, cs, negmean, A, B, t):
    if cs is not None:
        e(f"v_cvt_pk_bf16_f32 v{t}, v{cs}, v{cs}\nv_and_b32 v{t}, 0xffff0000, v{t}\nv_sub_f32 v{t}, v{cs}, v{t}")
        e(f"v_cvt_pk_bf16_f32 v{A}, v{cs}, v{t}\nv_mov_b32 v{A+1}, v{A}\nv_mov_b32 v{A+2}, 0\nv_mov_b32 v{A+3}, 0")
    if negmean is not None:
        e(f"v_cvt_pk_bf16_f32 v{B}, v{negmean}, v{negmean}\nv_and_b32 v{t}, 0xffff0000, v{B}\nv_sub_f32 v{t}, v{negmean}, v{t}")
        e(f"v_cvt_pk_bf16_f32 v{B+1}, v{t}, v{t}\nv_mov_b32 v{B+2}, 0\nv_mov_b32 v{B+3}, 0")
def ln_stats(e, S, Q, negmean, rstd, t):
    e(f"v_mul_f32 v{negmean}, 0xbb000000, v{S}\nv_mul_f32 v{t}, 0x3b000000, v{Q}")
    e(f"v_fma_f32 v{t}, -v{negmean}, v{negmean}, v{t}\nv_max_f32 v{t}, 0, v{t}\nv_add_f32 v{t}, 0x3727c5ac, v{t}\nv_rsq_f32 v{rstd}, v{t}")
def frag_soff(e, dst, base, nks, ks_lines, blk=None):
    blk = sI if blk is None else blk
    e(ks_lines)
    e(f"s_lshl_b32 s{sT2}, s{sTB}, 1\ns_add_u32 s{sT2}, s{sT2}, s{blk}\ns_mul_i32 s{sT2}, s{sT2}, {nks}\ns_add_u32 s{sT2}, s{sT2}, s{sT3}")
    e(f"s_lshl_b32 s{sT2}, s{sT2}, 10\ns_add_u32 s{dst}, s{sT2}, {base}")
def own_soff_q(e, base, nks):
    e(f"s_lshl_b32 s{sQA}, s{sTB}, 1\ns_add_u32 s{sQA}, s{sQA}, s{sI}\ns_mul_i32 s{sQA}, s{sQA}, {nks}\ns_lshl_b32 s{sT5}, s{sFB}, 2\ns_add_u32 s{sQA}, s{sQA}, s{sT5}")
    e(f"s_lshl_b32 s{sT5}, s{sC}, 1\ns_add_u32 s{sQA}, s{sQA}, s{sT5}\ns_lshl_b32 s{sQA}, s{sQA}, 10\ns_add_u32 s{sQA}, s{sQA}, {base}")
    return sQA
OWNKS = f"s_lshl_b32 s{sT3}, s{sFB}, 2\ns_lshl_b32 s{sT4}, s{sC}, 1\ns_add_u32 s{sT3}, s{sT3}, s{sT4}"
teamflag = lambda base: f"s_lshl_b32 s{sT2}, s{sU}, 7\ns_lshl_b32 s{sT3}, s{sV}, 2\ns_add_u32 s{sT2}, s{sT2}, s{sT3}\ns_add_u32 s{sT2}, s{sT2}, {base}"

def prologue(e, q):
    e(f"s_cmp_ge_u32 s2, 256\ns_cbranch_scc1 L_end")
    if PROFILE: e("s_memrealtime s[100:101]\ns_memtime s[98:99]")
    e(f"s_getpc_b64 s[{sT0}:{sT0+1}]")
    e.label("L_pc")
    e(f"s_mov_b32 s88, s{sT0}\ns_mov_b32 s89, s{sT1}")
    e("s_load_dwordx16 s[64:79], s[0:1], 0\ns_load_dwordx8 s[80:87], s[0:1], 64")
    for k in range(2):
        e(f"v_lshlrev_b32 v30, 7, v0" + (f"\nv_add_u32 v30, {0x8000*k}, v30" if k else "") + f"\nv_min_u32 v30, L_codeend-L_pc-4, v30\nv_mov_b32 v31, s{sT1}")
        e(f"v_add_co_u32 v30, vcc, s{sT0}, v30\nv_addc_co_u32 v31, vcc, 0, v31, vcc")
        e.vm(f"global_load_dword v{vJUNK}, v[30:31], off")
    e(f"v_and_b32 v{vLANE}, 63, v0\nv_lshrrev_b32 v{vT0}, 6, v0\nv_readfirstlane_b32 s{sW}, v{vT0}")
    e(f"v_and_b32 v{vT}, 31, v{vLANE}\nv_lshrrev_b32 v{vHH}, 5, v{vLANE}\nv_lshlrev_b32 v{vL16}, 4, v{vLANE}\nv_lshlrev_b32 v{vL128}, 7, v{vLANE}")
    e(f"s_and_b32 s{sT2}, s2, 7\ns_lshr_b32 s{sT3}, s2, 3")
    e(f"s_lshr_b32 s{sT4}, s{sT3}, 3\ns_lshl_b32 s{sTB}, s{sT2}, 2\ns_add_u32 s{sTB}, s{sTB}, s{sT4}")
    e(f"s_and_b32 s{sFB}, s{sT3}, 7\ns_lshr_b32 s{sU}, s{sTB}, 1\ns_and_b32 s{sV}, s{sT3}, 15")
    e(f"s_lshr_b32 s{sI}, s{sW}, 1\ns_and_b32 s{sC}, s{sW}, 1\ns_mov_b32 s92, s{sT3}")
    e(f"s_getreg_b32 s{sXCC}, hwreg(HW_REG_XCC_ID, 0, 4)")
    e(f"s_lshr_b32 s{sT2}, s{sFB}, 1\ns_lshr_b32 s{sT3}, s{sT2}, 1\ns_add_u32 s{sT3}, s{sT3}, 1")
    e(f"s_sub_u32 s{sT4}, 0, s{sT3}\ns_bitcmp1_b32 s{sT2}, 0\ns_cselect_b32 s{sDELTA}, s{sT4}, s{sT3}")
    t = vT0
    e(f"s_lshl_b32 s{sT4}, s{sTB}, 6\ns_sub_u32 s{sT4}, s{sT4}, 2")
    e(f"v_and_b32 v{t}, 3, v{vLANE}\nv_lshrrev_b32 v{t+1}, 4, v{vLANE}\nv_xor_b32 v{t}, v{t}, v{t+1}\nv_and_b32 v{t}, 3, v{t}\nv_lshlrev_b32 v{t}, 4, v{t}")
    e(f"v_lshrrev_b32 v{t+1}, 2, v{vLANE}\nv_add_u32 v{t+1}, s{sT4}, v{t+1}")
    for j in range(5):
        e(f"v_add_u32 v{t+2}, {16*j}, v{t+1}\nv_max_i32 v{t+2}, 0, v{t+2}\nv_min_i32 v{t+2}, 2047, v{t+2}")
        e(f"v_lshlrev_b32 v{t+2}, 10, v{t+2}\nv_add_u32 v{t+2}, v{t+2}, v{t}")
        if j == 0: e(f"v_mov_b32 v{vXO}, v{t+2}")
        elif j < 4: e(f"v_subrev_u32 v{vXO+j}, {1024*j}, v{t+2}")
        else: e(f"v_mov_b32 v{vXE}, v{t+2}")
    set_voffW(e, vW1K, 1024)
    set_voffW(e, vWAB, 3072)
    e(f"s_cmp_eq_u32 s{sW}, 3\ns_cselect_b64 vcc, -1, 0")
    for j in range(4): e(f"v_cndmask_b32 v{vWAB+j}, v{vWAB+j}, v{vW1K+j}, vcc")
    e("s_waitcnt lgkmcnt(0)")
    for dst, src, size in [(S_AX, 64, 2097152), (S_WQKV, 66, 512*3072), (S_W1, 72, 524288), (S_WS, 86, WS_SIZE), (S_GW, 80, 1024), (S_W2, 74, 524288),
                           (S_WO, 68, 524288), (S_W3, 76, 512*3584), (S_W4, 78, 1792*1024), (S_OUT, 82, 2097152)]:
        e(f"s_mov_b32 s{dst}, s{src}\ns_mov_b32 s{dst+1}, s{src+1}\ns_mov_b32 s{dst+2}, {size}\ns_mov_b32 s{dst+3}, 0x20000")
    if PROFILE: e(f"v_mov_b32 v{vTS}, 0")
    stamp(e, "karg")
    e(f"s_load_dword s{sTAG}, s[{S_WS}:{S_WS+1}], 0")
    e(f"s_mov_b32 s{sJ}, s92")
    e(f"s_cmp_eq_u32 s{sW}, 3")
    for k in range(4): e(f"s_cselect_b32 s{S_DS+k}, s{S_W1+k}, s{S_WQKV+k}")
    e(f"s_lshl_b32 s{sT2}, s{sW}, 10\ns_cmp_eq_u32 s{sW}, 3\ns_cselect_b32 s{sT2}, 0, s{sT2}\ns_mov_b32 s{sQSTEP}, {32*3072}\ns_cselect_b32 s{sQSTEP}, {32*1024}, s{sQSTEP}")
    e(f"s_lshl_b32 s{sT3}, s{sFB}, 7\ns_add_u32 s{sQW}, s{sT2}, s{sT3}")
    e(f"s_lshl_b32 s{sB0}, s{sW}, 12")
    e(f"s_mul_i32 s{sB1}, s{sW}, {XM}\ns_lshl_b32 s{sB2}, s{sW}, 6")

def push_x(q, qq):
    e = q.e
    refs = push_dma_group(q, vXO, S_AX, f"s_add_u32 m0, s{sB1}, {qq*4*XM}\ns_add_u32 s{sQA}, s{sB2}, {256*qq}")
    def fn():
        e(f"s_add_u32 m0, s{sB1}, {qq*4*XM + 4096}")
        e(f"s_mov_b64 exec, 0xffff")
        tk = -1 if X("NOVM") else e.vm(f"buffer_load_dwordx4 v{vXE}, {srd(S_AX)}, s{sQA} offen lds")
        e(f"s_mov_b64 exec, -1")
        return tk
    refs.append(q.push(fn))
    return refs
def push_wab(q, c):
    return push_dma_group(q, vWAB, S_DS, f"s_add_u32 m0, s{sB0}, {SL(c % 5)}\ns_mov_b32 s{sQA}, s{sQW}\ns_add_u32 s{sQW}, s{sQW}, s{sQSTEP}")
def push_w2(q, k):
    return push_dma_group(q, vW1K, S_W2, f"s_add_u32 m0, s{sB0}, {SL(1+k)}\ns_lshl_b32 s{sQA}, s{sW}, 15\ns_lshl_b32 s{sT5}, s{sFB}, 7\ns_add_u32 s{sQA}, s{sQA}, s{sT5}\ns_add_u32 s{sQA}, s{sQA}, {k*128*1024}")
def w3_lds(g): return g * 8192 if g < 8 else SL(0) + (g - 8) * 8192
def push_w3(q, gl, ps=(0, 1)):
    refs = []
    for p in ps:
        refs += push_dma_group(q, vW3, S_W3, f"s_lshl_b32 s{sQA}, s{sW}, 13\ns_add_u32 m0, s{sQA}, {w3_lds(4*gl) + p*4096}\n"
                               f"s_mul_i32 s{sQA}, s{sW}, {32*3584}\ns_lshl_b32 s{sT5}, s{sV}, 8\ns_add_u32 s{sQA}, s{sQA}, s{sT5}\ns_add_u32 s{sQA}, s{sQA}, {4*gl*32*3584 + 128*p}")
    return refs
def region_m0(reg, slot):
    if reg == "A": return f"s_lshl_b32 s{sQA}, s{sW}, 14\ns_add_u32 m0, s{sQA}, {slot*4096}"
    if reg == "B": return f"s_lshl_b32 s{sQA}, s{sW}, 14\ns_add_u32 m0, s{sQA}, {SL(0) + slot*4096}"
    return f"s_lshl_b32 s{sQA}, s{sW}, 12\ns_add_u32 m0, s{sQA}, {SL(4)}"
def push_wp(q, srdn, rows_per_wave, g, reg, slot):
    return push_dma_group(q, vW1K, srdn, region_m0(reg, slot) + "\n" +
                          f"s_mul_i32 s{sQA}, s{sW}, {rows_per_wave*1024}\ns_lshl_b32 s{sT5}, s{sFB}, 7\ns_add_u32 s{sQA}, s{sQA}, s{sT5}\ns_add_u32 s{sQA}, s{sQA}, {g*32*1024}")
W4LOC = {g: (("A", g) if g < 4 else ("C", 0)) for g in range(5)}
W4LOC.update({5 + g: (("A", g) if g < 4 else ("C", 0)) for g in range(5)})
W4LOC.update({10 + g: ("B", g) for g in range(4)})
def push_w4(q, g):
    reg, slot = W4LOC[g]
    return push_dma_group(q, vW1K, S_W4, region_m0(reg, slot) + "\n" +
                          f"s_lshl_b32 s{sQA}, s{sW}, 15\ns_lshl_b32 s{sT5}, s{sFB}, 7\ns_add_u32 s{sQA}, s{sQA}, s{sT5}\ns_add_u32 s{sQA}, s{sQA}, {g*128*1024}")
def push_wo(q, g): return push_wp(q, S_WO, 128, g, "B", g)
def set_region_addrs(e):
    sel_addrP(e, vA + 4)
    e(f"s_lshl_b32 s{sT2}, s{sW}, 14\nv_add_u32 v{vA}, s{sT2}, v{vA+4}\nv_add_u32 v{vA+1}, s{sT2}, v{vA+5}")
    e(f"v_add_u32 v{vA+2}, {SL(0)}, v{vA}\nv_add_u32 v{vA+3}, {SL(0)}, v{vA+1}")
    e(f"s_lshl_b32 s{sT2}, s{sW}, 12\ns_add_u32 s{sT2}, s{sT2}, {SL(4)}\nv_add_u32 v{vA+4}, s{sT2}, v{vA+4}\nv_add_u32 v{vA+5}, s{sT2}, v{vA+5}")
def region_addr(reg, slot, c):
    return vA + {"A": 0, "B": 2, "C": 4}[reg] + c, (slot*4096 if reg != "C" else 0)
W4A = 128
def w4_to_agpr_fns(e):
    fns = []
    for s in range(10):
        reg, slot = W4LOC[s >> 1]
        for c in range(2):
            a, off = region_addr(reg, slot, c); off += (s & 1)*2048; d = W4A + (2*s + c)*4
            fns.append(lambda a=a, off=off, d=d: e.lds(f"ds_read_b64_tr_b16 {ar(d,2)}, v{a} offset:{off}"))
            fns.append(lambda a=a, off=off, d=d: e.lds(f"ds_read_b64_tr_b16 {ar(d+2,2)}, v{a} offset:{off+1024}"))
    return fns

def common_addr(e):
    t = vT0
    e(f"v_and_b32 v{t}, 15, v{vLANE}\nv_lshrrev_b32 v{t}, 2, v{t}")
    e(f"v_and_b32 v{t+1}, 3, v{vLANE}\nv_lshlrev_b32 v{t+1}, 3, v{t+1}")
    e(f"v_lshrrev_b32 v{t+2}, 4, v{vLANE}\nv_and_b32 v{t+2}, 1, v{t+2}\nv_lshlrev_b32 v{t+2}, 5, v{t+2}")
    e(f"v_add_u32 v{t+1}, v{t+1}, v{t+2}\nv_lshrrev_b32 v{t+2}, 1, v{t}")
    e(f"v_lshlrev_b32 v{t+3}, 7, v{t}\nv_add_u32 v{t+1}, v{t+1}, v{t+3}")
    for c in range(2):
        e(f"v_xor_b32 v{t+3}, {c}, v{t+2}\nv_lshlrev_b32 v{t+3}, 6, v{t+3}\nv_add_u32 v{t+3}, v{t+3}, v{t+1}")
        e(f"v_lshlrev_b32 v{t+4}, 10, v{vHH}\nv_add_u32 v{vAN+c}, v{t+3}, v{t+4}")
        e(f"v_lshlrev_b32 v{t+4}, 9, v{vHH}\nv_add_u32 v{vAP+c}, v{t+3}, v{t+4}")
    set_voffW(e, vW3, 3584)

AQ, AK, AV, AH = 64, 80, 96, 112
def stage_ab1(e, q, xrefs, wrefs):
    t = vT0
    e(f"s_xor_b32 s{sT0}, s{sI}, s{sC}")
    for kind in range(2):
        e(f"s_lshl_b32 s{sT2}, s{sI}, 5\ns_add_u32 s{sT2}, s{sT2}, 2")
        if kind: e(f"s_sub_u32 s{sT2}, s{sT2}, s{sDELTA}")
        e(f"v_add_u32 v{t}, s{sT2}, v{vT}\nv_lshrrev_b32 v{t+1}, 2, v{t}\nv_and_b32 v{t+1}, 3, v{t+1}\nv_lshlrev_b32 v{t}, 6, v{t}")
        for sp in range(2):
            e(f"s_xor_b32 s{sT3}, s{sT0}, {sp}\ns_lshl_b32 s{sT3}, s{sT3}, 1")
            e(f"v_add_u32 v{t+2}, s{sT3}, v{vHH}\nv_xor_b32 v{t+2}, v{t+2}, v{t+1}\nv_lshlrev_b32 v{t+2}, 4, v{t+2}\nv_add_u32 v{vA+2*kind+sp}, v{t}, v{t+2}")
    e(f"s_cmp_eq_u32 s{sC}, 0\ns_cselect_b64 vcc, -1, 0\nv_cndmask_b32 v{t}, v{vAN+1}, v{vAN}, vcc")
    for sp in range(2):
        e(f"s_xor_b32 s{sT3}, s{sT0}, {sp}\ns_lshl_b32 s{sT3}, s{sT3}, 11")
        e(f"s_add_u32 s{sT4}, s{sT3}, {SL(0)}\nv_add_u32 v{vA+4+2*sp}, s{sT4}, v{t}\ns_add_u32 s{sT4}, s{sT3}, {SL(3)}\nv_add_u32 v{vA+5+2*sp}, s{sT4}, v{t}")
    e(f"s_lshl_b32 s{sT3}, s{sT0}, 5\ns_add_u32 s{sT3}, s{sT3}, {PA_GW}\nv_lshlrev_b32 v{vA+8}, 4, v{vHH}\nv_add_u32 v{vA+8}, s{sT3}, v{vA+8}")
    FS2 = [[128, 152], [176, 200]]
    GW2 = [224, 228]
    SUM, SQ, GA, CS = 232, 234, 236, 238
    for r in range(SUM, CS + 2): e(f"v_mov_b32 v{r}, 0")
    def read_fns(c):
        fns = []
        slot = c % 5; seg = 1 if slot >= 3 else 0; off = (slot - 3*seg) * 16384
        for sp in range(2):
            F = FS2[c & 1][sp]
            fns.append(lambda F=F, sp=sp: e.lds(f"ds_read_b128 {vr(F,4)}, v{vA+sp} offset:{c*XM}"))
            fns.append(lambda F=F, sp=sp: e.lds(f"ds_read_b128 {vr(F+4,4)}, v{vA+2+sp} offset:{c*XM}"))
            for m in range(4):
                a = vA + 4 + 2*sp + seg
                fns.append(lambda F=F, m=m, a=a: e.lds(f"ds_read_b64_tr_b16 {vr(F+8+4*m,2)}, v{a} offset:{off + m*4096}"))
                fns.append(lambda F=F, m=m, a=a: e.lds(f"ds_read_b64_tr_b16 {vr(F+10+4*m,2)}, v{a} offset:{off + m*4096 + 512}"))
            if sp == 0: fns.append(lambda: e.lds(f"ds_read_b128 {vr(GW2[c & 1],4)}, v{vA+8} offset:{c*64}"))
        return fns
    def mfma_fns(c):
        fns = []
        for sp in range(2):
            F = FS2[c & 1][sp]; z = "0" if (c == 0 and sp == 0) else None
            for (d, a, b) in [(AQ, F+8, F), (AK, F, F+12), (AV, F, F+16), (AH, F+20, F+4)]:
                fns.append(lambda d=d, a=a, b=b, z=z: mfma(e, d, a, b, c=z))
        return fns
    def dots(c):
        if X("NODOT"): return
        F = FS2[c & 1][0]; G = GW2[c & 1]
        for r in range(4):
            e(f"v_dot2c_f32_bf16 v{SUM+(r&1)}, s{sONES}, v{F+4+r}\nv_dot2c_f32_bf16 v{SQ+(r&1)}, v{F+4+r}, v{F+4+r}")
        for r in range(4):
            e(f"v_dot2c_f32_bf16 v{GA+(r&1)}, v{F+r}, v{G+r}\nv_dot2c_f32_bf16 v{CS+(r&1)}, s{sONES}, v{F+20+r}")
    w2refs = []
    for c in range(17):
        if c < 16:
            q.wait(wrefs[c])
            if c % 4 == 0: q.wait(xrefs[c // 4])
        e.wait_lds_all()
        if c < 16:
            if not X("NOBAR"): e("s_barrier")
            if c >= 1 and c + 4 < 16:
                wrefs[c + 4] = push_wab(q, c + 4)
                if X("NODMA"):
                    for fn, r in q.q: r.tok = -1
                    q.q = []
            if c == 1: xrefs[2] = push_x(q, 2)
            if c == 3: xrefs[3] = push_x(q, 3)
            if c >= 12: w2refs.append(push_w2(q, c - 12))
            extra_push(e, q, c)
        if c in (1, 5, 9, 13): stamp(e, f"ab{c}")
        fill = read_fns(c) if c < 16 else []
        npop = min(len(q.q), 8)
        pops = [lambda: q.pop(1)] * npop
        merged = []
        for k in range(max(len(fill), 1)):
            if k < len(fill): merged.append(fill[k])
            want = (npop * (k + 1)) // max(len(fill), 1)
            while sum(1 for f in merged if f in pops) < want and False: pass
        merged = []; pi = 0
        for k, f in enumerate(fill):
            merged.append(f)
            if k % (4 if npop <= 5 else 2) == 1 and pi < npop: merged.append(pops[pi]); pi += 1
        merged += pops[pi:]
        if c == 0:
            for f in merged: f()
        else:
            if X("DOTFIRST"): dots(c - 1)
            interleave(mfma_fns(c - 1), merged)
            if not X("DOTFIRST"): dots(c - 1)
    e.L.append("L_abend: ; @soft")
    stamp(e, "abmain")
    e(f"s_lshl_b32 s{sT2}, s{sI}, 5\ns_add_u32 s{sT2}, s{sT2}, 2\nv_add_u32 v{t}, s{sT2}, v{vT}\nv_lshrrev_b32 v{t+1}, 2, v{t}\nv_and_b32 v{t+1}, 3, v{t+1}")
    e(f"s_lshl_b32 s{sT2}, s{sFB}, 1\ns_add_u32 s{sT2}, s{sT2}, s{sC}\ns_mul_i32 s{sT2}, s{sT2}, {XM}")
    e(f"v_lshlrev_b32 v{t}, 6, v{t}\nv_lshlrev_b32 v{t+2}, 3, v{vHH}\nv_add3_u32 v{t}, v{t}, v{t+2}, s{sT2}")
    for j in range(4):
        e(f"v_xor_b32 v{t+2}, {j}, v{t+1}\nv_lshlrev_b32 v{t+2}, 4, v{t+2}\nv_add_u32 v{t+2}, v{t+2}, v{t}")
        e.lds(f"ds_read_b64 {vr(vRES+2*j,2)}, v{t+2}")
    e(f"v_add_f32 v{t}, v{SUM}, v{SUM+1}\nv_add_f32 v{t+1}, v{SQ}, v{SQ+1}\nv_add_f32 v{t+2}, v{GA}, v{GA+1}\nv_add_f32 v{t+3}, v{CS}, v{CS+1}")
    e(f"s_lshl_b32 s{sT2}, s{sW}, 10\ns_add_u32 s{sT2}, s{sT2}, {PA_ST}\nv_add_u32 v{vA}, s{sT2}, v{vL16}")
    e.lds(f"ds_write_b128 v{vA}, {vr(t,4)}")
    e.wait_lds_all()
    e("s_barrier")
    if X("ALLTOUCH", "1") != "0" and X("AT1", "ab4") == "ab4":
        touch_all(e, [(S_W3T, 512*3584), (S_WO, 524288), (S_W4, 1792*1024)], 32)
    push_w3(q, 0, (0,)); q.drain(); touch16(e, S_W3T, 3)
    e(f"s_xor_b32 s{sT2}, s{sW}, 1\ns_lshl_b32 s{sT2}, s{sT2}, 10\ns_add_u32 s{sT2}, s{sT2}, {PA_ST}\nv_add_u32 v{vA}, s{sT2}, v{vL16}")
    e(f"s_xor_b32 s{sT2}, s{sW}, 2\ns_lshl_b32 s{sT2}, s{sT2}, 10\ns_add_u32 s{sT2}, s{sT2}, {PA_ST}\nv_add_u32 v{vA+1}, s{sT2}, v{vL16}")
    P = 128
    k0 = e.lds(f"ds_read_b96 {vr(P,3)}, v{vA}")
    k1 = e.lds(f"ds_read_b32 v{P+3}, v{vA+1} offset:12")
    e.wait_lds(k1)
    for r in range(4): e(f"v_add_f32 v{t+r}, v{t+r}, v{P+r}")
    halfsum(e, t, t+4); halfsum(e, t+1, t+4); halfsum(e, t+2, t+4)
    NM, RS = 132, 134
    ln_stats(e, t, t+1, NM, RS, t+4)
    e(f"v_mul_f32 v{t+2}, 0xbfb8aa3b, v{t+2}\nv_exp_f32 v{t+2}, v{t+2}\nv_add_f32 v{t+2}, 1.0, v{t+2}\nv_rcp_f32 v{t+2}, v{t+2}")
    e(f"s_lshl_b32 s{sT2}, s{sI}, 7\ns_add_u32 s{sT2}, s{sT2}, {PA_G}\nv_lshlrev_b32 v{t+5}, 2, v{vT}\nv_add_u32 v{t+5}, s{sT2}, v{t+5}")
    e.lds(f"ds_write_b32 v{t+5}, v{t+2}")
    e(f"s_lshl_b32 s{sT2}, s{sTB}, 6\ns_lshl_b32 s{sT3}, s{sI}, 5\ns_add_u32 s{sT2}, s{sT2}, s{sT3}\ns_sub_u32 s{sT2}, s{sT2}, s{sDELTA}")
    e(f"v_add_u32 v{t+4}, s{sT2}, v{vT}\nv_cmp_gt_u32 vcc, 2048, v{t+4}\nv_cndmask_b32 v{RS}, 0, v{RS}, vcc")
    corr_frags(e, t+3, NM, 136, 140, t+4)
    mfma(e, AH, 136, 140)
    q.drain()
    OUT = 144
    gelu_pairs(e, [AH + 2*k for k in range(4)], RS, [152 + 2*k for k in range(4)], [OUT + k for k in range(4)])
    push_w3(q, 0, (1,)); q.drain(); touch16(e, S_W3T, 4)
    gelu_pairs(e, [AH + 2*k for k in range(4, 8)], RS, [152 + 2*k for k in range(4, 8)], [OUT + k for k in range(4, 8)])
    stamp(e, "b1epi")
    purity(e)
    frag_soff(e, sB3, WS_HSH, 32, OWNKS)
    def st(sc):
        for h in range(2):
            e.vm(f"buffer_store_dwordx4 {vr(OUT+4*h,4)}, v{vL16}, {srd(S_WS)}, s{sB3} offen offset:{1024*h} {sc}", "store")
    tok = stores2(e, st, "h")
    if not wt("x1"):
        touch_dst(e, lambda: own_soff_q(e, WS_X1, 32), 16)
        def st2():
            e(f"s_lshl_b32 s{sQA}, s{sFB}, 1\ns_add_u32 s{sQA}, s{sQA}, s{sC}\ns_lshl_b32 s{sQA}, s{sQA}, 11\ns_lshl_b32 s{sT5}, s{sTB}, 6\ns_add_u32 s{sQA}, s{sQA}, s{sT5}")
            e(f"s_lshl_b32 s{sT5}, s{sI}, 5\ns_add_u32 s{sQA}, s{sQA}, s{sT5}\ns_lshl_b32 s{sQA}, s{sQA}, 3\ns_add_u32 s{sQA}, s{sQA}, {WS_ST2}")
            return sQA
        touch_dst(e, st2, 2)
    return w2refs, tok

def purity(e):
    l = e.newlabel("Lpur"); lx = e.newlabel("Lpurx"); lo = e.newlabel("Lpuro")
    t = vT0
    e.wait_vm(e.pub_ref.tok)
    e(f"s_and_b32 s{sT3}, s{sTAG}, 0xfffffff0\ns_mov_b32 s{sSPIN}, 0x40000")
    e(f"s_lshl_b32 s{sT2}, s{sU}, 7\ns_add_u32 s{sT2}, s{sT2}, {WS_PUB}")
    e.label(l)
    e(f"v_and_b32 v{t+2}, 0xfffffff0, v{vPUB}\nv_cmp_ne_u32 vcc, s{sT3}, v{t+2}\ns_cbranch_vccz {lo}")
    e(f"s_sub_u32 s{sSPIN}, s{sSPIN}, 1\ns_cmp_eq_u32 s{sSPIN}, 0\ns_cbranch_scc1 {lo}")
    e(f"v_and_b32 v{t+1}, 15, v{vLANE}\nv_lshlrev_b32 v{t+1}, 2, v{t+1}")
    e(f"buffer_load_dword v{vPUB}, v{t+1}, {srd(S_WS)}, s{sT2} offen sc1\ns_waitcnt vmcnt(0)\ns_branch {l}")
    e.label(lo)
    e(f"s_or_b32 s{sT3}, s{sT3}, s{sXCC}\nv_cmp_ne_u32 vcc, s{sT3}, v{vPUB}")
    e(f"s_cmp_eq_u64 vcc, 0\ns_cselect_b32 s{sPURE}, 1, 0")
    if X("FORCE_SLOW"): e(f"s_mov_b32 s{sPURE}, 0")

def extra_push(e, q, c):
    if X("CT2", "0") != "0" and c == int(X("CT2", "0")): q.push(lambda: touch_chunks(e, 9, 7))
    if c == 0: q.push(lambda: touch_slow_ab(e))
    if c == 7: q.push(lambda: touch_slow(e, S_W2, 512))
    LA = int(X("CTLA", 7))
    if X("CTOUCH", "0") != "0" and 0 <= c and 5 <= c + LA < 16: q.push(lambda: touch_chunk(e, c + LA))
    T16 = {6: (S_W2, 0), 8: (S_W2, 1), 11: (S_W3T, 0), 12: (S_W3T, 1), 14: (S_W3T, 2)}
    if c in T16: q.push(lambda: touch16(e, *T16[c]))
    if c == int(X("AT2", 12)) and X("ALLTOUCH", "1") != "0" and X("AT1", "ab4") == "ab":
        q.push(lambda: touch_all(e, [(S_W2, 524288), (S_W3T, 512*3584), (S_WO, 524288), (S_W4, 1792*1024)], 64))
    if c == 9: q.push(lambda: touch_code(e, "L_abend"))
    if c == 12 and not wt("h"): q.push(lambda: touch_dst(e, lambda: own_soff_q(e, WS_HSH, 32), 16))

    if c == 8:
        def fn():
            e(f"s_lshl_b32 s{sQA}, s{sU}, 7\ns_add_u32 s{sQA}, s{sQA}, {WS_PUB}\nv_and_b32 v{vPUB}, 15, v{vLANE}\nv_lshlrev_b32 v{vPUB}, 2, v{vPUB}")
            return e.vm(f"buffer_load_dword v{vPUB}, v{vPUB}, {srd(S_WS)}, s{sQA} offen sc1")
        e.pub_ref = q.push(fn)

def sel_addrP(e, dst):
    e(f"s_cmp_eq_u32 s{sC}, 0\ns_cselect_b64 vcc, -1, 0")
    e(f"v_cndmask_b32 v{dst}, v{vAP+1}, v{vAP}, vcc\nv_cndmask_b32 v{dst+1}, v{vAP}, v{vAP+1}, vcc")

PQR = 240
KVD = 80
def a1_epilogue(e, q, w2refs, tokh):
    t = vT0
    def phi_steps(acc, out, tmp):
        P = lambda r: vr(r, 2); st = []
        for k in range(8): st.append(lambda k=k: e(f"v_pk_mul_f32 {P(tmp+2*k)}, {P(acc+2*k)}, s[{sC_LOG2E}:{sC_LOG2E+1}]"))
        for k in range(16): st.append(lambda k=k: e(f"v_min_f32 v{tmp+k}, 0, v{tmp+k}"))
        for k in range(16): st.append(lambda k=k: e(f"v_exp_f32 v{tmp+k}, v{tmp+k}"))
        for k in range(16): st.append(lambda k=k: e(f"v_max_f32 v{acc+k}, 0, v{acc+k}"))
        for k in range(8): st.append(lambda k=k: e(f"v_pk_add_f32 {P(acc+2*k)}, {P(acc+2*k)}, {P(tmp+2*k)}"))
        for k in range(8): st.append(lambda k=k: e(f"v_pk_add_f32 {P(acc+2*k)}, {P(acc+2*k)}, s[{sC_EPS6}:{sC_EPS6+1}]"))
        for k in range(8): st.append(lambda k=k: e(f"v_cvt_pk_bf16_f32 v{out+k}, v{acc+2*k}, v{acc+2*k+1}"))
        return st
    TMP = 112
    PKF, VF, PQF, ONE = 128, 136, PQR, 152
    push_w3(q, 1, (0,)); q.drain(); touch16(e, S_W3T, 5)
    q.wait(w2refs[-1])
    e("s_barrier")
    sel_addrP(e, vA)
    e(f"s_lshl_b32 s{sT2}, s{sC}, 15\ns_add_u32 s{sT2}, s{sT2}, {SL(1)}\nv_add_u32 v{vA}, s{sT2}, v{vA}\nv_add_u32 v{vA+1}, s{sT2}, v{vA+1}")
    rd = []
    for s_ in range(16):
        for c in range(2):
            d = (2*s_ + c)*4
            rd.append(lambda d=d, c=c, s_=s_: e.lds(f"ds_read_b64_tr_b16 {ar(d,2)}, v{vA+c} offset:{s_*2048}"))
            rd.append(lambda d=d, c=c, s_=s_: e.lds(f"ds_read_b64_tr_b16 {ar(d+2,2)}, v{vA+c} offset:{s_*2048+1024}"))
    interleave(phi_steps(AK, PKF, TMP), rd)
    push_w3(q, 1, (1,)); q.drain(); touch16(e, S_W3T, 6)
    for k in range(8): e(f"v_cvt_pk_bf16_f32 v{VF+k}, v{AV+2*k}, v{AV+2*k+1}")
    for k in range(4): e(f"v_mov_b32 v{ONE+k}, s{sONES}")
    D2, D3 = KVD, 96
    mfma(e, D2, PKF, VF, c="0"); mfma(e, D3, PKF, ONE, c="0")
    mfma(e, D2, PKF + 4, VF + 4); mfma(e, D3, PKF + 4, ONE)
    e.wait_lds_all()
    stamp(e, "a1k")
    publish(e, teamflag(WS_FB1), upto=tokh)
    stamp(e, "b1pub")
    push_w3(q, 2); push_w3(q, 3)
    st = phi_steps(AQ, PQF, TMP)
    q.pop(4)
    interleave(st, [lambda: q.pop(1)] * 8)
    e(f"v_and_b32 v{t}, 16, v{vLANE}\nv_cmp_ne_u32 vcc, 0, v{t}")
    for r in range(8): e(f"v_cndmask_b32 v{D2+r}, v{D2+r}, v{D3+r}, vcc")
    for r in range(8): e(f"v_cndmask_b32 v{D2+8+r}, v{D3+8+r}, v{D2+8+r}, vcc")
    q.drain()
    e(f"s_lshl_b32 s{sT2}, s{sC}, 12\ns_add_u32 s{sT2}, s{sT2}, {SL(4)}\nv_add_u32 v{t}, s{sT2}, v{vL16}")
    e.fb1tok = flags_async(e, f"s_lshl_b32 s{sT2}, s{sU}, 7\ns_and_b32 s{sT3}, s{sTB}, 1\ns_lshl_b32 s{sT3}, s{sT3}, 5\ns_add_u32 s{sT2}, s{sT2}, s{sT3}\ns_add_u32 s{sT2}, s{sT2}, {WS_FB1}", 8)
    l1 = e.newlabel("La1"); l2 = e.newlabel("La1")
    e(f"s_cmp_eq_u32 s{sI}, 0\ns_cbranch_scc1 {l1}")
    for rg in range(4): e(f"ds_write_b128 v{t}, {vr(D2+4*rg,4)} offset:{rg*1024}")
    e.label(l1)
    e.wait_lds_all()
    e("s_barrier")
    e(f"s_cmp_lg_u32 s{sI}, 0\ns_cbranch_scc1 {l2}")
    for rg in range(4): e(f"ds_read_b128 {vr(D3+4*rg,4)}, v{t} offset:{rg*1024}")
    e("s_waitcnt lgkmcnt(0)")
    for p in range(8): e(f"v_pk_add_f32 {vr(D2+2*p,2)}, {vr(D2+2*p,2)}, {vr(D3+2*p,2)}")
    e.label(l2)

def kv_store(e):
    t = vT0
    frag_soff(e, sB4, WS_PQ, 32, OWNKS)
    def stq(sc):
        for h in range(2):
            e.vm(f"buffer_store_dwordx4 {vr(PQR+4*h,4)}, v{vL16}, {srd(S_WS)}, s{sB4} offen offset:{1024*h} {sc}", "store")
    stores2(e, stq, "pq")
    l2 = e.newlabel("Lkv")
    e(f"s_cmp_lg_u32 s{sI}, 0\ns_cbranch_scc1 {l2}")
    e(f"v_and_b32 v{t+1}, 15, v{vT}\nv_mov_b32 v{t+2}, 16")
    e(f"v_and_b32 v{t+3}, 16, v{vLANE}\nv_cmp_ne_u32 vcc, 0, v{t+3}")
    e(f"v_cndmask_b32 v{t+4}, v{t+1}, v{t+2}, vcc\nv_cndmask_b32 v{t+5}, v{t+2}, v{t+1}, vcc")
    e(f"v_mul_u32_u24 v{t+3}, 544, v{vHH}")
    e(f"v_lshlrev_b32 v{t+4}, 5, v{t+4}\nv_add_u32 v{t+4}, v{t+4}, v{t+3}\nv_lshlrev_b32 v{t+5}, 5, v{t+5}\nv_add_u32 v{t+5}, v{t+5}, v{t+3}")
    e(f"s_lshl_b32 s{sT2}, s{sTB}, 3\ns_add_u32 s{sT2}, s{sT2}, s{sFB}\ns_mul_i32 s{sT2}, s{sT2}, 4352\ns_mul_i32 s{sT3}, s{sC}, 2176\ns_add_u32 s{sT2}, s{sT2}, s{sT3}\ns_add_u32 s{sB4}, s{sT2}, {WS_KVP}")
    for h in range(2):
        for qq in range(2):
            e(f"buffer_store_dwordx4 {vr(KVD+8*h+4*qq,4)}, v{t+4+h}, {srd(S_WS)}, s{sB4} offen offset:{1088*h + 16*qq} sc1")
            e.vm_kinds.append("store"); e.vm_n += 1
    e.label(l2)

def stage_b2(e, q):
    ACC = 96; HF = 128
    t = vT0
    frag_soff(e, sB3, WS_HSH, 32, f"s_lshl_b32 s{sT3}, s{sC}, 4")
    th = []
    for s in range(16):
        def fn(s=s):
            if s % 4 == 0: e(f"s_add_u32 s{sQA}, s{sB3}, {(s//4)*4096}")
            return e.vm(f"buffer_load_dwordx4 {vr(HF + 4*s, 4)}, v{vL16}, {srd(S_WS)}, s{sQA} offen offset:{(s&3)*1024} sc1")
        th.append(q.push(fn))
    if X("ALLTOUCH", "1") != "0" and X("AT1", "ab4") == "ab3":
        q.push(lambda: touch_all(e, [(S_WO, 524288), (S_W4, 1792*1024)], 32))
    q.pop(int(X("B2PRE", 8)))
    for s in range(16):
        q.wait(th[s])
        for c in range(2):
            mfma(e, ACC + 16*c, (2*s + c)*4, HF + 4*s, aa=True, c=("0" if s == 0 else None))
            if c == 0: q.pop(1)
    q.drain()
    kv_store(e)
    stamp(e, "b2main")
    e(f"s_lshl_b32 s{sT2}, s{sW}, 12\ns_add_u32 s{sT2}, s{sT2}, {SL(4)}\nv_add_u32 v{vA}, s{sT2}, v{vL16}")
    e(f"s_xor_b32 s{sT2}, s{sW}, 1\ns_lshl_b32 s{sT2}, s{sT2}, 12\ns_add_u32 s{sT2}, s{sT2}, {SL(4)}\nv_add_u32 v{vA+1}, s{sT2}, v{vL16}")
    for rg in range(4): e.lds(f"ds_write_b128 v{vA}, {vr(ACC+16+4*rg,4)} offset:{rg*1024}")
    e.wait_lds_all()
    e("s_barrier")
    tk = [e.lds(f"ds_read_b128 {vr(ACC+16+4*rg,4)}, v{vA+1} offset:{rg*1024}") for rg in range(4)]
    for rg in range(4):
        e.wait_lds(tk[rg])
        for p in range(2): e(f"v_pk_add_f32 {vr(ACC+4*rg+2*p,2)}, {vr(ACC+4*rg+2*p,2)}, {vr(ACC+16+4*rg+2*p,2)}")
    stamp(e, "b2red")
    q.drain(); touch16(e, S_WO, 0)
    for k in range(8):
        e(f"v_lshlrev_b32 v{t}, 16, v{vRES+k}\nv_and_b32 v{t+1}, 0xffff0000, v{vRES+k}")
        e(f"v_pk_add_f32 {vr(ACC+2*k,2)}, {vr(ACC+2*k,2)}, {vr(t,2)}")
        e(f"v_cvt_pk_bf16_f32 v{vRES+k}, v{ACC+2*k}, v{ACC+2*k+1}")
    frag_soff(e, sB3, WS_X1, 32, OWNKS)
    S, Q = 128, 130
    e(f"v_mov_b32 v{S}, 0\nv_mov_b32 v{S+1}, 0\nv_mov_b32 v{Q}, 0\nv_mov_b32 v{Q+1}, 0")
    for k in range(8):
        e(f"v_dot2c_f32_bf16 v{S+(k&1)}, s{sONES}, v{vRES+k}\nv_dot2c_f32_bf16 v{Q+(k&1)}, v{vRES+k}, v{vRES+k}")
    e(f"v_add_f32 v{S}, v{S}, v{S+1}\nv_add_f32 v{S+1}, v{Q}, v{Q+1}")
    halfsum(e, S, t); halfsum(e, S + 1, t)
    e(f"s_lshl_b32 s{sT2}, s{sFB}, 1\ns_add_u32 s{sT2}, s{sT2}, s{sC}\ns_lshl_b32 s{sT2}, s{sT2}, 11")
    e(f"s_lshl_b32 s{sT3}, s{sTB}, 6\ns_add_u32 s{sT2}, s{sT2}, s{sT3}\ns_lshl_b32 s{sT3}, s{sI}, 5\ns_add_u32 s{sT2}, s{sT2}, s{sT3}")
    e(f"s_lshl_b32 s{sT2}, s{sT2}, 3\ns_add_u32 s{sB4}, s{sT2}, {WS_ST2}")
    e(f"v_lshlrev_b32 v{t+2}, 3, v{vT}")
    def st(sc):
        for h in range(2):
            e.vm(f"buffer_store_dwordx4 {vr(vRES+4*h,4)}, v{vL16}, {srd(S_WS)}, s{sB3} offen offset:{1024*h} {sc}", "store")
        e.vm(f"buffer_store_dwordx2 {vr(S,2)}, v{t+2}, {srd(S_WS)}, s{sB4} offen {sc}", "store")
    return stores2(e, st, "x1")

CSA = 132
def b3_colsum(e, part):
    t = vT0
    WT = 136; ND = 6
    if part == 0:
        e(f"s_cmp_eq_u32 s{sC}, 0\ns_cselect_b64 vcc, -1, 0")
        e(f"v_cndmask_b32 v{vA+4}, v{vAP+1}, v{vAP}, vcc\ns_lshl_b32 s{sT2}, s{sI}, 12\nv_add_u32 v{vA+4}, s{sT2}, v{vA+4}\nv_add_u32 v{vA+5}, {SL(0)}, v{vA+4}")
        for r in range(4): e(f"v_mov_b32 v{CSA+r}, 0")
    def csread(s):
        g = s >> 1; off = (g % 8)*8192 + (s & 1)*2048
        return tr_frag(e, WT + (s % ND)*4, vA + 4 + g // 8, off, 1024)
    s0, s1 = 16*part, 16*part + 16
    rds = {s: csread(s) for s in range(s0, s0 + ND - 1)}
    for s in range(s0, s1):
        if s + ND - 1 < s1: rds[s + ND - 1] = csread(s + ND - 1)
        e.wait_lds(rds[s])
        for r in range(4): e(f"v_dot2c_f32_bf16 v{CSA+r}, s{sONES}, v{WT + (s % ND)*4 + r}")
    if part == 1:
        e(f"v_add_f32 v{CSA}, v{CSA}, v{CSA+1}\nv_add_f32 v{CSA+2}, v{CSA+2}, v{CSA+3}\nv_add_f32 v{CSA}, v{CSA}, v{CSA+2}")
        e(f"s_lshl_b32 s{sT2}, s{sW}, 8\ns_add_u32 s{sT2}, s{sT2}, {PA_CS3}\nv_lshlrev_b32 v{t}, 2, v{vLANE}\nv_add_u32 v{t}, s{sT2}, v{t}")
        e.lds(f"ds_write_b32 v{t}, v{CSA}")
        e.wait_lds_all()

def p4a_setup(e):
    e(f"s_xor_b32 s{sT1}, s{sI}, 1")
    frag_soff(e, sB4, WS_PQ, 32, f"s_lshl_b32 s{sT3}, s{sW}, 3")
    frag_soff(e, sB5, WS_PQ, 32, f"s_lshl_b32 s{sT3}, s{sW}, 3", blk=sT1)
    frag_soff(e, sB6, WS_H2, 112, f"s_lshl_b32 s{sT3}, s{sW}, 1")
    frag_soff(e, sB7, WS_H2, 112, f"s_lshl_b32 s{sT3}, s{sW}, 1", blk=sT1)
    e(f"s_lshl_b32 s{sT2}, s{sW}, 13\ns_add_u32 s{sB2}, s{sT2}, {WS_KVT}")
def push_kvt_loads(e, q):
    tk = {}
    for h in range(8):
        def fk(h=h):
            if h % 4 == 0: e(f"s_add_u32 s{sQA}, s{sB2}, {h*1024}")
            return e.vm(f"buffer_load_dwordx4 {ar(4*h,4)}, v{vL16}, {srd(S_WS)}, s{sQA} offen offset:{(h & 3)*1024} sc1")
        tk[h] = q.push(fk)
    return tk
def push_p4a_loads(e, q):
    tp = {}
    for h in range(8):
        for i in range(2):
            def fp(h=h, i=i):
                e(f"s_add_u32 s{sQA}, s{sB4+i}, {h*1024}")
                return e.vm(f"buffer_load_dwordx4 {ar(32 + (2*h+i)*4, 4)}, v{vL16}, {srd(S_WS)}, s{sQA} offen sc1")
            tp[(h, i)] = q.push(fp)
    return tp
def flags_check(e, off, nflags, preloaded):
    l = e.newlabel("Lfc"); lo = e.newlabel("Lfco"); t = vT0
    e(f"s_mov_b32 s{sSPIN}, 0x40000\ns_mov_b32 s{sT2}, {off}")
    e(f"v_lshlrev_b32 v{t+1}, 2, v{vLANE}\nv_cmp_gt_u32 vcc, {nflags}, v{vLANE}\ns_and_saveexec_b64 s[{sSAVE}:{sSAVE+1}], vcc")
    if not preloaded:
        e(f"buffer_load_dword v{vPUB}, v{t+1}, {srd(S_WS)}, s{sT2} offen sc1\ns_waitcnt vmcnt(0)")
    e.label(l)
    e(f"v_cmp_ne_u32 vcc, s{sTAG}, v{vPUB}\ns_cbranch_vccz {lo}")
    e(f"s_sub_u32 s{sSPIN}, s{sSPIN}, 1\ns_cmp_eq_u32 s{sSPIN}, 0\ns_cbranch_scc1 {lo}")
    if int(X("SLP", 0)): e(f"s_sleep {int(X('SLP', 0))}")
    e(f"buffer_load_dword v{vPUB}, v{t+1}, {srd(S_WS)}, s{sT2} offen sc1\ns_waitcnt vmcnt(0)\ns_branch {l}")
    e.label(lo)
    e(f"s_mov_b64 exec, s[{sSAVE}:{sSAVE+1}]")

def stage_b3(e, q):
    ACC = 64; t = vT0
    for c in range(2): e(f"v_mov_b32 v{vA+8+2*c}, v{vAP+c}\nv_add_u32 v{vA+8+2*c+1}, {SL(0)}, v{vAP+c}")
    def waddr(s, ft):
        g = s >> 1
        return vA + 8 + 2*(ft & 1) + g // 8, (g % 8)*8192 + (ft >> 1)*4096 + (s & 1)*2048
    e(f"s_lshl_b32 s{sT2}, s{sU}, 2\ns_add_u32 s{sT2}, s{sT2}, s{sW}\ns_lshl_b32 s{sT2}, s{sT2}, 15\ns_add_u32 s{sB3}, s{sT2}, {WS_X1}")
    e(f"s_lshl_b32 s{sT2}, s{sU}, 7\ns_lshl_b32 s{sT3}, s{sW}, 5\ns_add_u32 s{sT2}, s{sT2}, s{sT3}\ns_lshl_b32 s{sT2}, s{sT2}, 3\ns_add_u32 s{sB4}, s{sT2}, {WS_ST2}")
    e(f"v_lshlrev_b32 v{vA+6}, 17, v{vHH}\nv_lshlrev_b32 v{t+1}, 3, v{vT}\nv_add_u32 v{vA+6}, v{vA+6}, v{t+1}")
    CS4 = 152; CA, CB = 160, 176
    e("s_barrier")
    e(f"v_lshlrev_b32 v{t+2}, 2, v{vLANE}\nv_add_u32 v{t+2}, {PA_CS3}, v{t+2}")
    tc = [e.lds(f"ds_read_b32 v{CS4+k}, v{t+2} offset:{256*k}") for k in range(4)]
    WFS = [192, 208, 224]
    def read_fns(s):
        fns = []
        for ft in range(4):
            a, off = waddr(s, ft); d = WFS[s % 3] + ft*4
            fns.append(lambda a=a, off=off, d=d: e.lds(f"ds_read_b64_tr_b16 {vr(d,2)}, v{a} offset:{off}"))
            fns.append(lambda a=a, off=off, d=d: e.lds(f"ds_read_b64_tr_b16 {vr(d+2,2)}, v{a} offset:{off+1024}"))
        return fns
    e.wait_lds(tc)
    for k in range(4): corr_frags(e, CS4 + k, None, CA + 4*k, None, t)
    rdtok = {}
    for s in range(2):
        for f in read_fns(s): rdtok[s] = f()
    flags_wait(e, e.fb2tok, 16)
    stamp(e, "b3poll")
    STT = 136
    tst = []
    for k in range(8):
        def fn(k=k):
            e(f"s_add_u32 s{sQA}, s{sB4}, {k*16384}")
            return e.vm(f"buffer_load_dwordx2 {vr(STT+2*k,2)}, v{vA+6}, {srd(S_WS)}, s{sQA} offen sc1")
        tst.append(q.push(fn))
    tx = []
    for s in range(32):
        def fn(s=s):
            if s % 4 == 0: e(f"s_add_u32 s{sQA}, s{sB3}, {(s//4)*4096}")
            return e.vm(f"buffer_load_dwordx4 {ar(4*s,4)}, v{vL16}, {srd(S_WS)}, s{sQA} offen offset:{(s&3)*1024} sc1")
        tx.append(q.push(fn))
    q.pop(8 + 6)
    q.wait(tst[-1])
    for k in range(1, 8): e(f"v_pk_add_f32 {vr(STT,2)}, {vr(STT,2)}, {vr(STT+2*k,2)}")
    halfsum(e, STT, t); halfsum(e, STT + 1, t)
    NM, RS = 240, 242
    ln_stats(e, STT, STT + 1, NM, RS, t)
    corr_frags(e, None, NM, None, CB, t)
    for k in range(4):
        mfma(e, ACC + 16*k, CA + 4*k, CB, c="0"); q.pop(1)
    stamp(e, "b3st")
    w4 = {}
    for s in range(32):
        if X("FINE") and s in (4, 8, 12, 16, 24): stamp(e, f"b3s{s}")
        e.wait_lds(rdtok[s]); q.wait(tx[s])
        if s == 15:
            e("s_barrier")
            set_region_addrs(e)
            for g in range(5): w4[g] = push_w4(q, g)
        if s in (4, 8, 12, 16, 20, 24): q.push(lambda s=s: touch16(e, S_W4, 1 + (s - 4)//4))
        if s == 10: q.push(lambda: touch_code(e, "L_b3end"))

        if s == int(X("H2T", 27)) and not wt("h2"):
            def h2d():
                e(f"s_lshl_b32 s{sQA}, s{sU}, 2\ns_add_u32 s{sQA}, s{sQA}, s{sW}\ns_mul_i32 s{sQA}, s{sQA}, 112\ns_lshl_b32 s{sT5}, s{sV}, 3\ns_add_u32 s{sQA}, s{sQA}, s{sT5}")
                e(f"s_lshl_b32 s{sQA}, s{sQA}, 10\ns_add_u32 s{sQA}, s{sQA}, {WS_H2}")
                return sQA
            q.push(lambda: touch_dst(e, h2d, 64))
        fill = read_fns(s + 2) if s + 2 < 32 else []
        mains = [(lambda ft=ft: mfma(e, ACC + 16*ft, WFS[s % 3] + ft*4, 4*s, ba=True)) for ft in range(4)]
        toks = []
        fl = [(lambda f=f: toks.append(f())) for f in fill]
        fl.insert(2, lambda: q.pop(1)); fl.insert(6, lambda: q.pop(1))
        interleave(mains, fl)
        if toks: rdtok[s + 2] = toks[-1]
    e.L.append("L_b3end: ; @soft")
    stamp(e, "b3main")
    e("s_barrier")
    e(f"s_lshl_b32 s{sT2}, s{sU}, 2\ns_add_u32 s{sT2}, s{sT2}, s{sW}\ns_mul_i32 s{sT2}, s{sT2}, 112\ns_lshl_b32 s{sT3}, s{sV}, 3\ns_add_u32 s{sT2}, s{sT2}, s{sT3}")
    e(f"s_lshl_b32 s{sT2}, s{sT2}, 10\ns_add_u32 s{sB3}, s{sT2}, {WS_H2}\ns_add_u32 s{sB4}, s{sB3}, 4096")
    OUT = 128; TMP = 192
    def gelq(ft, half, npop):
        ks = range(4*half, 4*half + 4)
        gelu_pairs(e, [ACC + 16*ft + 2*k for k in ks], RS, [TMP + 2*k for k in ks], [OUT + 8*ft + k for k in ks], q, npop)
    q.wait(w4[4])
    rdf = w4_to_agpr_fns(e)
    e(f"s_mov_b32 s84, s{sB4}")
    tokst = None
    sB3h, = (sB3,)
    p4a_setup(e)
    wo = [push_wo(q, 0)]
    tp = push_p4a_loads(e, q)
    pq_items = q.q[4:]; q.q = q.q[:4]
    NPQ = int(X("EPIPQ", 8))
    q.q += pq_items[:2]
    wo += [push_wo(q, 1)]
    q.q += pq_items[2:NPQ]
    wo += [push_wo(q, 2), push_wo(q, 3)]
    rest = pq_items[NPQ:]
    nit = len(q.q)
    for ft in range(4):
        for f in rdf[10*ft:10*ft + 10]: f()
        for half in range(2):
            k = 2*ft + half
            want = nit * (k + 1) // 7 if k < 7 else nit
            gelq(ft, half, max(0, want - (nit - len(q.q))))
        def st(sc, ft=ft):
            for h in range(2):
                so = sB3 if ft < 2 else 84
                e.vm(f"buffer_store_dwordx4 {vr(OUT+8*ft+4*h,4)}, v{vL16}, {srd(S_WS)}, s{so} offen offset:{((2*ft+h)&3)*1024} {sc}", "store")
        tokst = stores2(e, st, "h2")
    q.drain()
    stamp(e, "gel3")
    e.wait_lds_all()
    e(f"s_mov_b32 s{sQA}, {WS_FA2}\nv_lshlrev_b32 v{vPUB}, 2, v{vLANE}")
    fa2tok = e.vm(f"buffer_load_dword v{vPUB}, v{vPUB}, {srd(S_WS)}, s{sQA} offen sc1")
    q.q = rest
    e.wait_vm(tokst)
    e("s_barrier")
    lq = e.newlabel("Lp3")
    e(f"s_cmp_lg_u32 s{sW}, 0\ns_cbranch_scc1 {lq}")
    e(teamflag(WS_FB3))
    l2 = e.newlabel("Lp3"); l3 = e.newlabel("Lp3")
    e(f"s_cmp_eq_u32 s{sPURE}, 0\ns_cbranch_scc1 {l2}")
    flag_store(e, sT2, "")
    e(f"s_branch {l3}")
    e.label(l2)
    flag_store(e, sT2, "sc1")
    e.label(l3)
    e.label(lq)
    e.vm_kinds.append("store"); e.vm_n += 1
    stamp(e, "p4pub")
    e.wait_vm(fa2tok)
    flags_check(e, WS_FA2, 32, True)
    stamp(e, "fa2")
    return wo, w4, tp

def stage_a2(e, q):
    t = vT0
    e(f"s_lshl_b32 s{sHEAD}, s{sU}, 1\ns_add_u32 s{sHEAD}, s{sHEAD}, s{sV}\ns_sub_u32 s{sHEAD}, s{sHEAD}, 14")
    poll(e, f"s_lshr_b32 s{sT2}, s{sHEAD}, 2\ns_lshl_b32 s{sT2}, s{sT2}, 7\ns_add_u32 s{sT2}, s{sT2}, {WS_FA1}", 32)
    e(f"v_and_b32 v{t+1}, 15, v{vT}\nv_mov_b32 v{t+2}, 16\nv_and_b32 v{t+3}, 16, v{vLANE}")
    e(f"s_and_b32 s{sT2}, s{sHEAD}, 1\ns_lshl_b32 s{sT2}, s{sT2}, 4\nv_cmp_ne_u32 vcc, s{sT2}, v{t+3}")
    e(f"v_cndmask_b32 v{t+4}, v{t+1}, v{t+2}, vcc")
    e(f"v_mul_u32_u24 v{t+3}, 544, v{vHH}\nv_lshlrev_b32 v{t+4}, 5, v{t+4}\nv_add_u32 v{t+4}, v{t+4}, v{t+3}")
    e(f"s_lshr_b32 s{sT2}, s{sHEAD}, 2\ns_lshl_b32 s{sT3}, s{sW}, 6\ns_add_u32 s{sT2}, s{sT2}, s{sT3}\ns_mul_i32 s{sT2}, s{sT2}, 4352")
    e(f"s_and_b32 s{sT3}, s{sHEAD}, 3\ns_mul_i32 s{sT3}, s{sT3}, 1088\ns_add_u32 s{sT2}, s{sT2}, s{sT3}\ns_add_u32 s{sB3}, s{sT2}, {WS_KVP}")
    B = 64; tk = []
    for k in range(8):
        if k: e(f"s_add_u32 s{sB3}, s{sB3}, {8*4352}")
        for qq in range(2):
            tk.append(e.vm(f"buffer_load_dwordx4 {vr(B+8*k+4*qq,4)}, v{t+4}, {srd(S_WS)}, s{sB3} offen offset:{16*qq} sc1"))
    for k in range(1, 8):
        e.wait_vm(tk[2*k+1])
        for p in range(4): e(f"v_pk_add_f32 {vr(B+2*p,2)}, {vr(B+2*p,2)}, {vr(B+8*k+2*p,2)}")
    e(f"s_lshl_b32 s{sT2}, s{sW}, 11\ns_add_u32 s{sT2}, s{sT2}, {PA_ST}\nv_add_u32 v{t}, s{sT2}, v{vL16}") if False else None
    XB = SL(3)
    e(f"s_lshl_b32 s{sT2}, s{sW}, 11\ns_add_u32 s{sT2}, s{sT2}, {XB}\nv_add_u32 v{t}, s{sT2}, v{vL16}")
    e.lds(f"ds_write_b128 v{t}, {vr(B,4)}"); e.lds(f"ds_write_b128 v{t}, {vr(B+4,4)} offset:1024")
    e.wait_lds_all()
    e("s_barrier")
    l = e.newlabel("La2")
    e(f"s_cmp_lg_u32 s{sW}, 0\ns_cbranch_scc1 {l}")
    e(f"v_add_u32 v{t}, {XB}, v{vL16}")
    for k in range(1, 4):
        e(f"ds_read_b128 {vr(B+8*k,4)}, v{t} offset:{2048*k}\nds_read_b128 {vr(B+8*k+4,4)}, v{t} offset:{2048*k+1024}")
    e("s_waitcnt lgkmcnt(0)")
    for k in range(1, 4):
        for p in range(4): e(f"v_pk_add_f32 {vr(B+2*p,2)}, {vr(B+2*p,2)}, {vr(B+8*k+2*p,2)}")
    for p in range(4): e(f"v_cvt_pk_bf16_f32 v{B+32+p}, v{B+2*p}, v{B+2*p+1}")
    e(f"s_lshl_b32 s{sT2}, s{sHEAD}, 10\ns_add_u32 s{sB3}, s{sT2}, {WS_KVT}")
    e(f"buffer_store_dwordx4 {vr(B+32,4)}, v{vL16}, {srd(S_WS)}, s{sB3} offen sc1")
    e("s_waitcnt vmcnt(0)")
    e(f"s_lshl_b32 s{sT2}, s{sHEAD}, 2\ns_add_u32 s{sT2}, s{sT2}, {WS_FA2}")
    flag_store(e, sT2, "sc1")
    e.label(l)
    e("s_barrier")
    for k in range(1, 7): touch16(e, S_W4, k)
    touch_code(e, "L_b3end")
    set_region_addrs(e)
    w4 = {g: push_w4(q, g) for g in range(5)}
    for g in range(4): push_wo(q, g)
    q.drain()
    e.wait_vm_all()
    for f in w4_to_agpr_fns(e): f()
    e.wait_lds_all()
    p4a_setup(e)
    flags_check(e, WS_FA2, 32, False)
    push_p4a_loads(e, q)
    q.pop(int(X("EPIPQ", 8)))
    q.q = []
    e.wait_vm_all()

def stage_p4(e, q, wo, w4in, tp):
    ACCB, ACCA = 64, 128
    WF = 192
    t = vT0
    l = e.newlabel("Lep")
    e(f"s_or_b32 s{sT2}, s2, s{sW}\ns_cmp_lg_u32 s{sT2}, 0\ns_cbranch_scc1 {l}")
    e(f"s_mov_b32 s{sT2}, {WS_EPOCH}")
    flag_store(e, sT2, "sc1")
    e.label(l)
    e.vm_kinds.append("store"); e.vm_n += 1
    pend = q.q; q.q = []
    tk = push_kvt_loads(e, q)
    kv_items = q.q; q.q = []
    def grab(fn):
        r = fn(); it = q.q; q.q = []; return r, it
    w4in = dict(w4in); w4it = {}
    for g in range(5, 10): w4in[g], w4it[g] = grab(lambda g=g: push_w4(q, g))
    order = kv_items[0:4] + pend[0:2] + kv_items[4:8] + pend[2:]
    for g in range(5, 10): order += w4it[g]
    q.q = order
    q.pop(6)
    G = [208, 210]; OMG = [212, 214]
    e(f"v_lshlrev_b32 v{t}, 2, v{vT}\nv_add_u32 v{t}, {PA_G}, v{t}")
    e(f"s_lshl_b32 s{sT2}, s{sI}, 7\nv_add_u32 v{t+1}, s{sT2}, v{t}\ns_xor_b32 s{sT2}, s{sT2}, 128\nv_add_u32 v{t+2}, s{sT2}, v{t}")
    tg = [e.lds(f"ds_read_b32 v{G[0]}, v{t+1}"), e.lds(f"ds_read_b32 v{G[1]}, v{t+2}")]
    e.wait_lds(tg)
    for i in range(2): e(f"v_sub_f32 v{OMG[i]}, 1.0, v{G[i]}")
    OD = [216, 232]
    OF = [[46, 50], [248, 252]]
    SC = [56, 58]
    def wo_reads(h):
        tok = None
        for c in range(2): tok = tr_frag(e, WF + (h&1)*8 + c*4, vA + 2 + c, h*2048, 1024)
        return tok
    ODS = [[64, 80], [96, 112]]
    def omm_fns(h):
        return [(lambda i=i: e(f"v_mfma_f32_32x32x16_bf16 {vr(ODS[h & 1][i],16)}, {ar(4*h,4)}, {ar(32 + (2*h+i)*4,4)}, 0")) for i in range(2)]
    def oval_fns(h):
        par = h & 1; fns = []
        for i in range(2):
            od = ODS[par][i]
            num = od + (8 if h & 1 else 0); den = od + (0 if h & 1 else 8)
            fns.append(lambda i=i, den=den: e(f"v_add_f32 v{SC[i]}, 0x358637bd, v{den}"))
            fns.append(lambda i=i: e(f"v_rcp_f32 v{SC[i]}, v{SC[i]}"))
        for i in range(2):
            fns.append(lambda i=i: e(f"v_mul_f32 v{SC[i]}, v{SC[i]}, v{G[i]}"))
        for i in range(2):
            od = ODS[par][i]; num = od + (8 if h & 1 else 0)
            for p in range(8): fns.append(lambda i=i, p=p, num=num: e(f"v_mul_f32 v{num+p}, v{num+p}, v{SC[i]}"))
            for p in range(4): fns.append(lambda i=i, p=p, num=num: e(f"v_cvt_pk_bf16_f32 v{OF[par][i]+p}, v{num+2*p}, v{num+2*p+1}"))
        return fns
    def amm_fns(h):
        par = h & 1; fns = []
        for i in range(2):
            for c in range(2):
                fns.append(lambda i=i, c=c: mfma(e, ACCA + (2*i + c)*16, WF + par*8 + c*4, OF[par][i], c=("0" if h == 0 else None)))
        return fns
    def wo_read_fns(h):
        fns = []
        for c in range(2):
            d = WF + (h&1)*8 + c*4
            fns.append(lambda d=d, c=c: e.lds(f"ds_read_b64_tr_b16 {vr(d,2)}, v{vA+2+c} offset:{h*2048}"))
            fns.append(lambda d=d, c=c: e.lds(f"ds_read_b64_tr_b16 {vr(d+2,2)}, v{vA+2+c} offset:{h*2048+1024}"))
        return fns
    def need(h):
        q.wait(tp[(h, 1)]); q.wait(tk[h])
    q.wait(wo[0])
    for f in wo_read_fns(0): f()
    need(0)
    for f in omm_fns(0): f()
    need(1)
    for f in omm_fns(1): f()
    for f in oval_fns(0): f()
    for h in range(8):
        e.wait_lds_all()
        if h + 2 < 8: need(h + 2)
        if h + 1 < 8 and (h + 1) % 2 == 0: q.wait(wo[(h + 1) >> 1])
        if h == 6: e.fb3tok = flags_async(e, f"s_lshl_b32 s{sT2}, s{sU}, 7\ns_add_u32 s{sT2}, s{sT2}, {WS_FB3}", 14)
        mains = amm_fns(h) + (omm_fns(h + 2) if h + 2 < 8 else [])
        fill = (wo_read_fns(h + 1) if h + 1 < 8 else []) + (oval_fns(h + 1) if h + 1 < 8 else [])
        npop = 3 if h < 6 else 0
        for k in range(npop): fill.insert(6 + 9*k, lambda: q.pop(1))
        interleave(mains, fill)
    stamp(e, "p4A")
    q.drain()
    w4 = dict(w4in); w4.update({g: push_w4(q, g) for g in range(10, 14)})
    q.drain()
    flags_wait(e, e.fb3tok, 14)
    stamp(e, "p4pollB")
    HD = 16
    th = {}
    def hpush(s):
        for i in range(2):
            def fn(s=s, i=i):
                e(f"s_add_u32 s{sQA}, s{sB6+i}, {(s >> 1)*8192 + (s & 1)*1024}")
                return e.vm(f"buffer_load_dwordx4 {ar(((s % HD)*2 + i)*4, 4)}, v{vL16}, {srd(S_WS)}, s{sQA} offen sc1")
            th[(s, i)] = q.push(fn)
    for s in range(HD): hpush(s)
    q.pop(10)
    WFS = [192, 200, 216]
    def read_fns(s):
        if s < 10 or s >= 28: return []
        g = s >> 1; reg, slot = W4LOC[g]; fns = []
        for c in range(2):
            a, off = region_addr(reg, slot, c); off += (s & 1)*2048; d = WFS[s % 3] + 4*c
            fns.append(lambda a=a, off=off, d=d: e.lds(f"ds_read_b64_tr_b16 {vr(d,2)}, v{a} offset:{off}"))
            fns.append(lambda a=a, off=off, d=d: e.lds(f"ds_read_b64_tr_b16 {vr(d+2,2)}, v{a} offset:{off+1024}"))
        return fns
    rdtok = {}
    for s in range(28):
        if X("FINE") and s in (1, 5, 10, 16, 22): stamp(e, f"p4s{s}")
        if s + 2 >= 10 and (s + 2) % 2 == 0 and (s + 2) < 28: q.wait(w4[(s + 2) >> 1])
        if s in rdtok: e.wait_lds(rdtok[s])
        q.wait(th[(s, 1)])
        mains = []
        for i in range(2):
            for c in range(2):
                z = "0" if s == 0 else None
                if s < 10:
                    mains.append(lambda i=i, c=c, z=z: mfma(e, ACCB + (2*i + c)*16, W4A + (2*s + c)*4, ((s % HD)*2 + i)*4, aa=True, ba=True, c=z))
                else:
                    mains.append(lambda i=i, c=c, z=z: mfma(e, ACCB + (2*i + c)*16, WFS[s % 3] + 4*c, ((s % HD)*2 + i)*4, ba=True, c=z))
        toks = []
        fl = [(lambda f=f: toks.append(f())) for f in read_fns(s + 2)]
        fl.insert(0, lambda: q.pop(1)); fl.insert(min(3, len(fl)), lambda: q.pop(1))
        interleave(mains, fl)
        if toks: rdtok[s + 2] = toks[-1]
        if s + HD < 28: hpush(s + HD)
    stamp(e, "p4B")
    for i in range(2):
        for c in range(2):
            qq = 2*i + c
            for p in range(8):
                e(f"v_pk_fma_f32 {vr(ACCB+16*qq+2*p,2)}, {vr(ACCB+16*qq+2*p,2)}, {vr(OMG[i],2)}, {vr(ACCA+16*qq+2*p,2)} op_sel_hi:[1,0,1]")
    aw = vA + 8
    e(f"s_lshl_b32 s{sT0}, s{sW}, 14\nv_add_u32 v{aw}, s{sT0}, v{vL16}")
    for k in range(1, 4):
        for rg in range(4): e.lds(f"ds_write_b128 v{aw}, {vr(ACCB + 16*k + 4*rg, 4)} offset:{(k-1)*4096 + rg*1024}")
    for k in range(1, 4):
        e(f"s_xor_b32 s{sT0}, s{sW}, {k}\ns_lshl_b32 s{sT0}, s{sT0}, 14\nv_add_u32 v{aw+k}, s{sT0}, v{vL16}")
    e.wait_lds_all()
    e("s_barrier")
    toks = []
    for k in range(1, 4):
        for rg in range(4): toks.append(e.lds(f"ds_read_b128 {vr(ACCB + 16*k + 4*rg, 4)}, v{aw+k} offset:{(k-1)*4096 + rg*1024}"))
    for k in range(1, 4):
        e.wait_lds(toks[4*k-1])
        for p in range(8): e(f"v_pk_add_f32 {vr(ACCB+2*p,2)}, {vr(ACCB+2*p,2)}, {vr(ACCB+16*k+2*p,2)}")
    stamp(e, "p4red")
    for k in range(8):
        e(f"v_lshlrev_b32 v{t}, 16, v{vRES+k}\nv_and_b32 v{t+1}, 0xffff0000, v{vRES+k}")
        e(f"v_pk_fma_f32 {vr(ACCB+2*k,2)}, {vr(t,2)}, {vr(OMG[0],2)}, {vr(ACCB+2*k,2)} op_sel_hi:[1,0,1]")
        e(f"v_cvt_pk_bf16_f32 v{128+k}, v{ACCB+2*k}, v{ACCB+2*k+1}")
    for pr in range(2):
        a, b = 128 + 4*pr, 128 + 4*pr + 2
        e(f"v_permlane32_swap_b32 v{a}, v{b}\nv_permlane32_swap_b32 v{a+1}, v{b+1}")
    e(f"s_lshl_b32 s{sT2}, s{sTB}, 6\ns_lshl_b32 s{sT3}, s{sI}, 5\ns_add_u32 s{sT2}, s{sT2}, s{sT3}")
    e(f"v_add_u32 v{t}, s{sT2}, v{vT}\nv_lshlrev_b32 v{t}, 10, v{t}")
    e(f"s_lshl_b32 s{sT2}, s{sFB}, 7\ns_lshl_b32 s{sT3}, s{sC}, 6\ns_add_u32 s{sT2}, s{sT2}, s{sT3}")
    e(f"v_lshlrev_b32 v{t+1}, 4, v{vHH}\nv_add3_u32 v{t}, v{t}, v{t+1}, s{sT2}")
    for pr in range(2):
        e.vm(f"buffer_store_dwordx4 {vr(128+4*pr,4)}, v{t}, {srd(S_OUT)}, 0 offen offset:{32*pr} {X('OUTSC', '')}", "store")

def build():
    e = E(); q = VQ(e)
    prologue(e, q)
    xrefs, wrefs = {}, {}
    AT = X("AT1", "ab4")
    ALLW = [(S_WQKV, 512*3072), (S_W1, 524288), (S_W2, 524288), (S_W3, 512*3584), (S_WO, 524288), (S_W4, 1792*1024)]
    def fg():
        e(f"s_mov_b32 m0, {PA_GW}")
        return e.vm(f"buffer_load_dwordx4 v{vL16}, {srd(S_GW)}, 0 offen lds")
    def t_ab(): touch_all(e, [(S_AX, 2097152), (S_WQKV, 512*3072), (S_W1, 524288)], 32)
    def t_all():
        if AT == "ab4":
            touch_all(e, [(S_WQKV, 512*3072), (S_AX, 2097152), (S_W1, 524288)], 32)
            touch_all(e, [(S_W2, 524288)], 4)
        elif AT == "ab3": touch_all(e, [(S_WQKV, 512*3072), (S_AX, 2097152), (S_W1, 524288), (S_W2, 524288), (S_W3, 512*3584)], 64)
        else: touch_all(e, ALLW, 64)
    ORD = X("ORD", "g w x T C").replace("_", " ").split()
    for o in ORD:
        if o == "T" and X("ALLTOUCH", "1") != "0": q.push(t_ab if AT == "ab" else t_all)
        if o == "g": q.push(fg)
        if o == "x": xrefs[0] = push_x(q, 0)
        if o == "w": wrefs[0] = push_wab(q, 0)
        if o == "C" and X("CT2", "0") != "0": q.push(lambda: touch_chunks(e, 1, 8))
        if o == "S": q.push(lambda: touch_slow_ab(e))
    q.drain()
    wrefs[1] = push_wab(q, 1); xrefs[1] = push_x(q, 1)
    for c in range(2, 5): wrefs[c] = push_wab(q, c)
    common_addr(e)
    q.pop(4)
    for k in range(4): e(f"s_mov_b32 s{S_W3T+k}, s{S_W3+k}")
    e(f"s_cmp_ge_u32 s{sV}, 14\ns_cselect_b32 s{S_W3+2}, 0, s{S_W3+2}")
    e(f"s_mov_b32 s{sC_LOG2E}, 0x3fb8aa3b\ns_mov_b32 s{sC_LOG2E+1}, 0x3fb8aa3b")
    c0 = -2.0 * 0.7978845608028654 * 1.4426950408889634; c1 = c0 * 0.044715
    e(f"s_mov_b32 s{sC_G1}, {f2u(c1):#x}\ns_mov_b32 s{sC_G1+1}, {f2u(c1):#x}")
    e(f"s_mov_b32 s{sC_EPS6}, 0x358637bd\ns_mov_b32 s{sC_EPS6+1}, 0x358637bd\ns_mov_b32 s{sONES}, 0x3f803f80")
    e(f"v_mov_b32 v{vG0C}, {f2u(c0):#x}\nv_mov_b32 v{vG0C+1}, {f2u(c0):#x}")
    stamp(e, "iss14")
    e("s_waitcnt lgkmcnt(0)")
    e(f"s_mul_i32 s{sTAG}, s{sTAG}, 1664525\ns_add_u32 s{sTAG}, s{sTAG}, 1013904223")
    l = e.newlabel("Lpub0")
    e(f"s_cmp_lg_u32 s{sW}, 0\ns_cbranch_scc1 {l}")
    e(teamflag(WS_PUB))
    e(f"s_and_b32 s{sT3}, s{sTAG}, 0xfffffff0\ns_or_b32 s{sT3}, s{sT3}, s{sXCC}")
    e(f"v_mov_b32 v{vT0}, s{sT3}\nv_mov_b32 v{vT0+1}, 0\nv_cmp_eq_u32 vcc, 0, v{vLANE}\ns_and_saveexec_b64 s[{sSAVE}:{sSAVE+1}], vcc")
    e(f"buffer_store_dword v{vT0}, v{vT0+1}, {srd(S_WS)}, s{sT2} offen sc1")
    e(f"s_mov_b64 exec, s[{sSAVE}:{sSAVE+1}]")
    e.label(l)
    e.vm_kinds.append("store"); e.vm_n += 1
    stamp(e, "pro")
    w2refs, tokh = stage_ab1(e, q, xrefs, wrefs)
    stamp(e, "hst")
    a1_epilogue(e, q, w2refs, tokh)
    stamp(e, "a1epi")
    flags_wait(e, e.fb1tok, 8)
    stamp(e, "b2poll")
    tok = stage_b2(e, q)
    touch_code(e, "L_b3start")
    tok = e.vm_n - 1 if False else tok
    lk = e.newlabel("Lcs")
    e(f"s_cmp_ge_u32 s{sV}, 14\ns_cbranch_scc1 {lk}")
    b3_colsum(e, 0)
    e.label(lk)
    publish(e, teamflag(WS_FB2))
    l = e.newlabel("Lfa1")
    e(f"s_cmp_lg_u32 s{sW}, 0\ns_cbranch_scc1 {l}")
    e(f"s_lshl_b32 s{sT2}, s{sFB}, 7\ns_lshl_b32 s{sT3}, s{sTB}, 2\ns_add_u32 s{sT2}, s{sT2}, s{sT3}\ns_add_u32 s{sT2}, s{sT2}, {WS_FA1}")
    flag_store(e, sT2, "sc1")
    e.label(l)
    e.vm_kinds.append("store"); e.vm_n += 1
    stamp(e, "b2pub")
    touch16(e, S_WO, 1); touch16(e, S_W4, 0)
    la2 = e.newlabel("LA2"); lj = e.newlabel("LJ")
    e(f"s_cmp_ge_u32 s{sV}, 14\ns_cbranch_scc1 {la2}")
    e.L.append("L_b3start: ; @soft")
    e.fb2tok = flags_async(e, f"s_lshl_b32 s{sT2}, s{sU}, 7\ns_add_u32 s{sT2}, s{sT2}, {WS_FB2}", 16)
    b3_colsum(e, 1)
    stamp(e, "b3cs")
    wo, w4, tp = stage_b3(e, q)
    snap = (e.vm_n, list(e.vm_kinds), e.vm_done, e.ld_n, e.ld_done); qsnap = list(q.q); q.q = []
    e(f"s_branch {lj}")
    e.label(la2)
    stage_a2(e, q)
    e.label(lj)
    e.vm_n, e.vm_kinds, e.vm_done, e.ld_n, e.ld_done = snap
    q.q = qsnap
    e.wait_lds_all()
    stage_p4(e, q, wo, w4, tp)
    stamp(e, "end")
    stamp_flush(e)
    e.wait_vm_all()
    e.label("L_end")
    e("s_endpgm")
    e.label("L_codeend")
    body = e.text()
    return kernel_file([dict(name=KN, body=body, grid=256, block=256, lds=LDS_BYTES, vgpr=512, accum=256, sgpr=102)]), e

if __name__ == "__main__":
    txt, e = build()
    open(sys.argv[1], "w").write(txt)
    n = sum(1 for l in txt.split("\n") if l.startswith("    ") and not l.strip().startswith(";"))
    print("instructions:", n, "nops inserted:", e.nops_inserted)
    open(sys.argv[1] + ".stamps", "w").write(" ".join(STAMPS))
```
